```python
import torch

def _softmax(x, axis=-1):
    return torch.softmax(x, dim=axis)
def _gelu(x):
    return torch.nn.functional.gelu(x, approximate="tanh")
def _silu(x):
    return torch.nn.functional.silu(x)
def _sigmoid(x):
    return torch.sigmoid(x)
def _layernorm(x, axis=-1, eps=1e-5):
    m = x.mean(dim=axis, keepdim=True)
    v = x.var(dim=axis, keepdim=True, unbiased=False)
    return (x - m) / torch.sqrt(v + eps)
def _scatter_add(tgt, idx, src, axis=0):
    return tgt.clone().index_add_(axis, idx, src)
def _segment_sum(src, seg, n):
    out = torch.zeros((n,) + src.shape[1:], dtype=src.dtype)
    return out.index_add_(0, seg, src)
def _pad(x, pw):
    flat = tuple(v for pair in reversed(pw) for v in pair)
    return torch.nn.functional.pad(x, flat)

kernel_name = 'sequential_preLN__sliding_block__moe_arch_mod__prompt'

def setup_inputs():

    _w = (lambda a: (lambda t: t.to(torch.bfloat16) if t.is_floating_point() else t)(torch.as_tensor(a)))
    def _A_setup():
        B, S, D = 1, 2048, 1024
        return {
            "x": _w((lambda *s: torch.randn(*s, dtype=torch.bfloat16) * 0.05)(B, S, D)),
            "wqkv": _w((lambda *s: torch.randn(*s, dtype=torch.bfloat16) * 0.05)(D, 3 * D)),
            "wo": _w((lambda *s: torch.randn(*s, dtype=torch.bfloat16) * 0.05)(D, D)),
        }
    _A_in = _A_setup()

    def _B_setup():
        B, S, D, F, C = 1, 2048, 1024, 3584, 2
        return {
            "x": _w((lambda *s: torch.randn(*s, dtype=torch.bfloat16) * 0.05)(B, S, D)),
            "w_r": _w((lambda *s: torch.randn(*s, dtype=torch.bfloat16) * 0.05)(D)),
            "w_gate": _w((lambda *s: torch.randn(*s, dtype=torch.bfloat16) * 0.05)(D, F)),
            "w_up": _w((lambda *s: torch.randn(*s, dtype=torch.bfloat16) * 0.05)(D, F)),
            "w_down": _w((lambda *s: torch.randn(*s, dtype=torch.bfloat16) * 0.05)(F, D)),
        }
    _B_in = _B_setup()

    return {
        "A_x": _A_in["x"],
        "A_wqkv": _A_in["wqkv"],
        "A_wo": _A_in["wo"],
        "B_x": _B_in["x"],
        "B_w_r": _B_in["w_r"],
        "B_w_gate": _B_in["w_gate"],
        "B_w_up": _B_in["w_up"],
        "B_w_down": _B_in["w_down"],
    }

def reference(A_x, A_wqkv, A_wo, B_x, B_w_r, B_w_gate, B_w_up, B_w_down):
    def _A_ref(x, wqkv, wo):
        B, S, D = x.shape
        H = 32; Dh = D // H; W = 256
        qkv = (lambda x, *d: x.permute(*d))((x @ wqkv).reshape(B, S, 3, H, Dh), 2, 0, 3, 1, 4)
        q, k, v = qkv[0], qkv[1], qkv[2]
        scores = torch.einsum("bhqd,bhkd->bhqk", q, k) * (Dh ** -0.5)
        idx = torch.arange(S)
        mask = (idx[:, None] - idx[None, :] >= 0) & (idx[:, None] - idx[None, :] < W)
        scores = torch.where(mask[None, None], scores, -1e9)
        p = _softmax(scores, axis=-1)
        o = torch.einsum("bhqk,bhkd->bhqd", p, v)
        return (lambda x, *d: x.permute(*d))(o, 0, 2, 1, 3).reshape(B, S, D) @ wo

    def _B_ref(x, w_r, w_gate, w_up, w_down):
        B, S, D = x.shape
        C = 2
        r = x @ w_r
        idx = torch.argsort(-r, axis=-1)[:, :C]
        idx_e = (lambda x, n, axis: torch.repeat_interleave(x, n, dim=axis))(idx.reshape(B, C, 1), D, axis=2)
        x_sel = (lambda x, i, axis: torch.take_along_dim(x, i, dim=axis))(x, idx_e, axis=1)
        g = _silu(x_sel @ w_gate)
        u = x_sel @ w_up
        y = (g * u) @ w_down
        r_sel = _sigmoid((lambda x, i, axis: torch.take_along_dim(x, i, dim=axis))(r, idx, axis=1))
        y = y * r_sel.reshape(B, C, 1)
        b_off = (torch.arange(B) * S).reshape(B, 1)
        flat_idx = (idx + b_off).reshape(B * C)
        zero = (x * 0.0).reshape(B * S, D)
        upd = _scatter_add(zero, flat_idx, y.reshape(B * C, D), axis=0)
        return x + upd.reshape(B, S, D)

    x = A_x
    h = x + _A_ref(_layernorm(x, axis=-1), A_wqkv, A_wo)
    h2 = h + _B_ref(_layernorm(h, axis=-1), B_w_r, B_w_gate, B_w_up, B_w_down)
    return h2
```

```python
import re
import sys

sys.setrecursionlimit(1000000)

REG_RE = re.compile(r'(?<![\w.])([vsa])\[(\d+):(\d+)\]|(?<![\w.\[])([vsa])(\d+)(?![\w\[])|(?<![\w.])(vcc_lo|vcc_hi|vcc|exec_lo|exec_hi|exec|m0|scc)(?![\w])')
TRANS = ('v_exp_', 'v_log_', 'v_rcp_', 'v_rsq_', 'v_sqrt_', 'v_sin_', 'v_cos_')


def regs_of(tok):
    out = []
    for m in REG_RE.finditer(tok):
        if m.group(1):
            out += [f'{m.group(1)}{i}' for i in range(int(m.group(2)), int(m.group(3)) + 1)]
        elif m.group(4):
            out.append(f'{m.group(4)}{m.group(5)}')
        else:
            r = m.group(6)
            if r.startswith('vcc'):
                r = 'vcc'
            if r.startswith('exec'):
                r = 'exec'
            out.append(r)
    return out


def split_ops(s):
    ops, depth, cur = [], 0, ''
    for ch in s:
        if ch in '[(':
            depth += 1
        if ch in '])':
            depth -= 1
        if ch == ',' and depth == 0:
            ops.append(cur.strip())
            cur = ''
        else:
            cur += ch
    if cur.strip():
        ops.append(cur.strip())
    return ops


class Ins:
    __slots__ = ('text', 'mn', 'ops', 'cls', 'defs', 'uses', 'passes', 'mA', 'mB', 'mC', 'trans', 'target',
                 'lds_dma', 'is_store', 'is_load', 'wide_store', 'store_data', 'nop', 'dpp', 'permlane', 'rdlane',
                 'vm', 'lgkm', 'wait', 'line', 'sgpr_const_uses', 'opsel_dst', 'lanesel')

    def __init__(self, text, line=0):
        self.text = text
        self.line = line
        t = text.split(';')[0].strip()
        parts = t.split(None, 1)
        self.mn = mn = parts[0]
        rest = parts[1] if len(parts) > 1 else ''
        self.ops = ops = split_ops(rest)
        self.defs, self.uses = set(), set()
        self.passes = 0
        self.mA = self.mB = self.mC = ()
        self.trans = False
        self.target = None
        self.lds_dma = self.is_store = self.is_load = self.wide_store = False
        self.store_data = ()
        self.nop = 0
        self.dpp = self.permlane = self.rdlane = False
        self.vm = self.lgkm = False
        self.wait = None
        self.sgpr_const_uses = set()
        self.opsel_dst = False
        self.lanesel = set()
        R = [regs_of(o) for o in ops]
        allr = [r for x in R for r in x]
        if mn.startswith('v_mfma'):
            self.cls = 'mfma'
            self.passes = 8 if '32x32' in mn else 4
            self.defs = set(R[0])
            self.mA, self.mB, self.mC = tuple(R[1]), tuple(R[2]), tuple(R[3])
            self.uses = set(R[1] + R[2] + R[3])
        elif mn.startswith('v_'):
            self.cls = 'valu'
            self.trans = mn.startswith(TRANS)
            self.dpp = ('quad_perm' in rest or 'row_' in rest or mn.endswith('_dpp') or 'wave_' in rest)
            if mn.startswith('v_permlane') and 'swap' in mn:
                self.permlane = True
                self.defs = set(R[0] + R[1])
                self.uses = set(R[0] + R[1])
            elif mn.startswith(('v_add_co', 'v_sub_co', 'v_subrev_co', 'v_addc_co', 'v_subb_co', 'v_mad_u64', 'v_div_scale')):
                self.defs = set(R[0] + R[1])
                self.uses = set(r for x in R[2:] for r in x)
            elif mn.startswith('v_swap'):
                self.defs = set(R[0] + R[1])
                self.uses = set(R[0] + R[1])
            else:
                self.defs = set(R[0])
                self.uses = set(r for x in R[1:] for r in x)
                if mn.startswith(('v_fmac', 'v_pk_fmac', 'v_dot2c', 'v_writelane', 'v_mac')) or self.dpp or 'UNUSED_PRESERVE' in rest:
                    self.uses |= set(R[0])
                if mn.startswith('v_cndmask') and len(ops) == 3:
                    self.uses.add('vcc')
                if mn.startswith(('v_readlane', 'v_readfirstlane')):
                    self.rdlane = True
                if mn.startswith(('v_readlane', 'v_writelane')) and len(R) > 2:
                    self.lanesel = set(r for r in R[2] if r[0] == 's' or r == 'vcc')
                if mn.startswith('v_cmpx'):
                    self.defs.add('exec')
            if 'dst_sel:' in rest and 'dst_sel:DWORD' not in rest:
                self.opsel_dst = True
            m = re.search(r'op_sel:\[([01,]+)\]', rest)
            if m and not mn.startswith('v_pk_') and m.group(1).split(',')[-1] == '1' and len(m.group(1).split(',')) == len(ops):
                self.opsel_dst = True
            self.sgpr_const_uses = set(r for r in self.uses if r[0] == 's' or r == 'vcc')
            self.uses.add('exec')
        elif mn.startswith('ds_'):
            self.cls = 'ds'
            self.lgkm = True
            if mn.startswith(('ds_read', 'ds_bpermute', 'ds_permute', 'ds_swizzle')) or '_rtn' in mn:
                self.defs = set(R[0])
                self.uses = set(r for x in R[1:] for r in x)
                self.is_load = True
            else:
                self.uses = set(allr)
            self.uses.add('exec')
        elif mn.startswith(('buffer_', 'global_')):
            self.cls = 'vmem'
            self.vm = True
            toks = rest.split()
            if mn in ('buffer_wbl2', 'buffer_inv'):
                pass
            elif 'lds' in toks or '_lds_' in mn:
                self.lds_dma = True
                self.uses = set(allr) | {'m0'}
            elif '_load_' in mn:
                self.defs = set(R[0])
                self.uses = set(r for x in R[1:] for r in x)
                self.is_load = True
            elif '_store_' in mn:
                self.uses = set(allr)
                self.is_store = True
                data = R[0] if mn.startswith('buffer_') else R[1]
                self.store_data = tuple(data)
                self.wide_store = mn.endswith(('x3', 'x4'))
            elif '_atomic_' in mn:
                self.uses = set(allr)
                if 'sc0' in toks:
                    self.defs = set(R[0])
                    self.is_load = True
            else:
                raise ValueError('unknown vmem ' + text)
            self.uses.add('exec')
        elif mn.startswith(('s_load', 's_memtime', 's_memrealtime', 's_buffer_load', 's_atomic')):
            self.cls = 'smem'
            self.lgkm = True
            self.defs = set(R[0])
            self.uses = set(r for x in R[1:] for r in x)
            self.is_load = True
        elif mn.startswith('s_'):
            self.cls = 'salu'
            if mn == 's_nop':
                self.nop = int(ops[0], 0) + 1
            elif mn == 's_waitcnt':
                w = {}
                for k, v in re.findall(r'(vmcnt|lgkmcnt|expcnt)\((\d+)\)', rest):
                    w[k] = int(v)
                self.wait = w
            elif mn.startswith(('s_cbranch', 's_branch')):
                self.target = ops[0]
                if 'vcc' in mn:
                    self.uses = {'vcc'}
                if 'exec' in mn:
                    self.uses = {'exec'}
                if 'scc' in mn:
                    self.uses = {'scc'}
            elif mn in ('s_barrier', 's_endpgm', 's_setprio', 's_sleep', 's_sethalt', 's_setreg_imm32_b32'):
                pass
            elif mn.startswith('s_cmp') or mn.startswith('s_bitcmp'):
                self.uses = set(allr)
                self.defs = {'scc'}
            elif 'saveexec' in mn:
                self.defs = set(R[0]) | {'exec', 'scc'}
                self.uses = set(R[1]) | {'exec'}
            elif mn.startswith(('s_addk', 's_mulk')):
                self.defs = set(R[0]) | {'scc'}
                self.uses = set(R[0])
            elif mn.startswith('s_getreg'):
                self.defs = set(R[0])
            else:
                self.defs = set(R[0])
                self.uses = set(r for x in R[1:] for r in x)
                if mn.startswith(('s_cselect', 's_addc', 's_subb', 's_cmov')):
                    self.uses.add('scc')
                if not mn.startswith(('s_mov', 's_cselect', 's_mul_', 's_movk', 's_cmov', 's_getpc', 's_bfm')):
                    self.defs.add('scc')
        else:
            raise ValueError('cannot parse: ' + text)

    @property
    def slots(self):
        return self.nop if self.nop else 1


WINDOW = 22


def need_states(prev, ins):
    need = 0
    why = ''

    def up(n, w):
        nonlocal need, why
        if n > need:
            need, why = n, w
    pv = set(r for r in prev.defs if r[0] in 'va' and r != 'vcc')
    if prev.cls == 'valu':
        if ins.cls == 'mfma' and pv & ins.uses:
            up(2, 'VALU->MFMA')
        if prev.trans and ins.cls == 'valu' and not ins.trans and pv & ins.uses:
            up(1, 'trans->VALU')
        if prev.trans and ins.cls in ('vmem', 'ds') and pv & ins.uses:
            up(1, 'trans->mem (safe pad)')
        if ins.cls == 'valu' and ins.rdlane and pv & ins.uses:
            up(1, 'VALU->readlane')
        if ins.cls == 'valu' and ins.dpp and pv & ins.uses:
            up(2, 'VALU->DPP')
        if ins.cls == 'valu' and ins.permlane and pv & ins.uses:
            up(2, 'VALU->permlane')
        if prev.opsel_dst and ins.cls == 'valu' and pv & (ins.uses | ins.defs):
            up(1, 'opsel dst')
        ps = set(r for r in prev.defs if r[0] == 's' or r == 'vcc')
        if ps:
            if ins.cls == 'valu' and ps & ins.sgpr_const_uses:
                up(2, 'VALU sgpr->VALU const')
            if ins.cls == 'valu' and ps & ins.lanesel:
                up(4, 'VALU sgpr->lanesel')
            if ins.cls == 'vmem' and ps & ins.uses:
                up(5, 'VALU sgpr->VMEM')
            if ins.cls in ('salu', 'smem') and ps & ins.uses:
                up(2, 'VALU sgpr->SALU (safe pad)')
        if 'exec' in prev.defs:
            up(5, 'VALU exec write')
    if prev.cls == 'mfma':
        p8 = prev.passes == 8
        D = prev.defs
        if ins.cls == 'mfma':
            if D & set(ins.mA) or D & set(ins.mB):
                up(12 if p8 else 8, 'MFMA D->A/B')
            if D & set(ins.mC):
                if not (set(ins.mC) == D and ins.passes == prev.passes):
                    up(10 if p8 else 6, 'MFMA D->C overlap')
            if D & ins.defs and not (D & set(ins.mC)):
                up(10 if p8 else 6, 'MFMA D->D WAW (safe pad)')
        elif ins.cls in ('valu', 'vmem', 'ds'):
            if D & (ins.uses | ins.defs):
                up(12 if p8 else 8, 'MFMA D->VALU/mem')
            if ins.cls == 'valu' and set(prev.mC) & ins.defs:
                up(7 if p8 else 3, 'MFMA C WAR')
            if ins.cls in ('vmem', 'ds') and set(prev.mC) & ins.defs:
                up(7 if p8 else 3, 'MFMA C WAR by load (safe pad)')
    if prev.cls == 'salu' and 'm0' in prev.defs and ins.lds_dma:
        up(1, 'm0->LDS DMA')
    if prev.cls == 'vmem' and prev.wide_store:
        sd = set(prev.store_data)
        if sd & ins.defs:
            up(2 if ins.cls == 'valu' else 1, 'wide store WAR')
    return need, why


class Asm:
    def __init__(self):
        self.lines = []
        self.uid = 0

    def __call__(self, text):
        for l in text.split('\n'):
            l = l.strip()
            if l:
                self.lines.append(l)

    def label(self, name):
        self.lines.append(name + ':')

    def newlabel(self, base):
        self.uid += 1
        return f'L_{base}_{self.uid}'

    def comment(self, c):
        self.lines.append('; ' + c)


def is_instr(l):
    if not l or l.startswith((';', '.')) or l.rstrip().endswith(':'):
        return False
    return True


def autonop(lines):
    out = []
    window = []
    added = 0
    for l in lines:
        if not is_instr(l):
            out.append(l)
            continue
        ins = Ins(l)
        req = 0
        why = ''
        for p, age in window:
            n, w = need_states(p, ins)
            if n - age > req:
                req, why = n - age, w
        if req > 0:
            added += 1
            r = req
            while r > 0:
                k = min(r, 16)
                out.append(f's_nop {k - 1}')
                r -= k
            for e in window:
                e[1] += req
        out.append(l)
        for e in window:
            e[1] += ins.slots
        window = [e for e in window if e[1] < WINDOW]
        if ins.cls in ('valu', 'mfma') or (ins.cls == 'salu' and 'm0' in ins.defs) or ins.wide_store:
            window.append([ins, 0])
        if ins.mn in ('s_branch', 's_endpgm'):
            window = []
    return out, added


def lint(lines, entries, verbose=True, max_states=400000):
    prog = []
    labels = {}
    for n, l in enumerate(lines):
        if l.rstrip().endswith(':') and not l.startswith(';'):
            labels[l.rstrip()[:-1]] = len(prog)
        elif is_instr(l):
            prog.append(Ins(l, n))
    errors = {}
    seen = set()
    stack = []
    for e in entries:
        stack.append((labels[e], (), (), ()))
    nstates = 0
    while stack:
        pc, win, vmq, lgq = stack.pop()
        win = list(win)
        vmq = list(vmq)
        lgq = list(lgq)
        while True:
            if pc >= len(prog):
                errors[('runoff', pc)] = 'path runs off the end'
                break
            key = (pc, tuple(win), tuple(vmq), tuple(lgq))
            if key in seen:
                break
            seen.add(key)
            nstates += 1
            if nstates > max_states:
                print('lint: state limit reached')
                return errors
            ins = prog[pc]
            for (pi, age) in win:
                n, w = need_states(prog[pi], ins)
                if n > age:
                    errors[('ws', pi, pc)] = f'wait states: {w} need {n} have {age}: [{prog[pi].text}] -> [{ins.text}] (lines {prog[pi].line},{ins.line})'
            touched = (ins.uses | ins.defs)
            for q, nm in ((vmq, 'vmcnt'), (lgq, 'lgkmcnt')):
                for (pi) in q:
                    p = prog[pi]
                    if p.is_load and (p.defs & touched):
                        if ins.is_load and ins.cls == p.cls and not (p.defs & ins.uses) and p.cls != 'smem':
                            continue
                        errors[(nm, pi, pc)] = f'{nm} missing: [{p.text}] -> [{ins.text}] (lines {p.line},{ins.line})'
            if ins.wait is not None:
                if 'vmcnt' in ins.wait:
                    n = ins.wait['vmcnt']
                    if len(vmq) > n:
                        vmq = vmq[len(vmq) - n:] if n else []
                if 'lgkmcnt' in ins.wait:
                    n = ins.wait['lgkmcnt']
                    has_smem = any(prog[i].cls == 'smem' for i in lgq)
                    if n == 0:
                        lgq = []
                    elif not has_smem and len(lgq) > n:
                        lgq = lgq[len(lgq) - n:]
            if ins.vm:
                vmq.append(pc)
                if len(vmq) > 63:
                    vmq = vmq[-63:]
            if ins.lgkm:
                lgq.append(pc)
                if len(lgq) > 15 and not any(prog[i].cls == 'smem' for i in lgq):
                    lgq = lgq[-15:]
            win = [(pi, age + ins.slots) for (pi, age) in win if age + ins.slots < WINDOW]
            if ins.cls in ('valu', 'mfma') or (ins.cls == 'salu' and 'm0' in ins.defs) or ins.wide_store:
                win.append((pc, 0))
            if ins.mn == 's_endpgm':
                break
            if ins.mn == 's_branch':
                pc = labels[ins.target]
                continue
            if ins.target is not None:
                stack.append((labels[ins.target], tuple(win), tuple(vmq), tuple(lgq)))
            pc += 1
    if verbose:
        for k in sorted(errors, key=lambda k: str(k)):
            print('LINT:', errors[k])
        print(f'lint: {len(prog)} instructions, {nstates} states, {len(errors)} findings')
    return errors
```

```python
KNAME = 'sequential_preLN__sliding_block__moe_arch_mod__prompt_kernel'

WS_KV = 0x0000000
WS_O = 0x0800000
WS_ROWST = 0x0C00000
WS_COLS = 0x0C10000
WS_KVFLAG = 0x0C60000
WS_OFLAG = 0x0C70000
WS_ST2 = 0x0C80000
WS_CAND = 0x0D00000
WS_CROW = 0x0D10000
WS_YPART = 0x0D80000
WS_PACT = 0x0E00000
WS_YFLAG = 0x0F80000
WS_OUTFLAG = 0x0F90000
WS_NONCE = 0x0FA0000
WS_DBG = 0x1000000
WS_DUMP = 0x1100000
WS_SIZE = 0x10000000

S_X, S_WO, S_WS, S_OUT, S_WG, S_WU, S_WD, S_WR, S_WQ = 36, 40, 44, 48, 52, 56, 60, 64, 68
sW, sRB, sHP, sRB2, sCB, sNONCE, sB, sF = 72, 73, 74, 75, 76, 77, 78, 79

STAGE = 40960
L_M = 122880
L_R = L_M + 512
L_CS = L_R + 512
L_CSP = L_CS + 768
L_Q = 147456
KV_HD = 49152
LDS_BYTES = 163840


def vr(b, n=1):
    return f'v{b}' if n == 1 else f'v[{b}:{b + n - 1}]'


def sr(b, n=1):
    return f's{b}' if n == 1 else f's[{b}:{b + n - 1}]'


def srd(a, d, p, size):
    a(f's_mov_b32 s{d}, s{p}\ns_mov_b32 s{d + 1}, s{p + 1}\ns_mov_b32 s{d + 2}, {size}\ns_mov_b32 s{d + 3}, 0x00020000')


def S(d):
    return f's[{d}:{d + 3}]'


def f32hex(x):
    import struct
    return '0x%08x' % struct.unpack('<I', struct.pack('<f', x))[0]


def wave_sum(a, v, t):
    a(f'v_add_f32_dpp v{v}, v{v}, v{v} quad_perm:[1,0,3,2] row_mask:0xf bank_mask:0xf')
    a(f'v_add_f32_dpp v{v}, v{v}, v{v} quad_perm:[2,3,0,1] row_mask:0xf bank_mask:0xf')
    a(f'v_add_f32_dpp v{v}, v{v}, v{v} row_half_mirror row_mask:0xf bank_mask:0xf')
    a(f'v_add_f32_dpp v{v}, v{v}, v{v} row_mirror row_mask:0xf bank_mask:0xf')
    xor16_add(a, v, t)
    xor32_add(a, v, t)


def xor16_op(a, op, v, t):
    a(f'v_mov_b32 v{t}, v{v}')
    a(f'v_permlane16_swap_b32 v{v}, v{t}')
    a(f'{op} v{v}, v{v}, v{t}')


def xor32_op(a, op, v, t):
    a(f'v_mov_b32 v{t}, v{v}')
    a(f'v_permlane32_swap_b32 v{v}, v{t}')
    a(f'{op} v{v}, v{v}, v{t}')


def xor16_add(a, v, t):
    xor16_op(a, 'v_add_f32', v, t)


def xor32_add(a, v, t):
    xor32_op(a, 'v_add_f32', v, t)


def round_bf16(a, v, t):
    a(f'v_cvt_pk_bf16_f32 v{t}, v{v}, v{v}')
    a(f'v_lshlrev_b32 v{v}, 16, v{t}')
```

```python
import sys
sys.path.insert(0, 'gen')
from asmlib import Asm, autonop, lint
from common import *
import phase1
import phase2
import phase3
import phase4


class Kern:
    STAMP_T = 98
    STAMP_BASE = 100
    SPIN = 200000

    def __init__(self, **opt):
        self.opt = opt
        self.a = Asm()
        self.STAMP_RT = 26
        self.STAMP0 = 0
        self.hooks = {}

    def hook(self, name):
        if name in self.hooks:
            self.hooks[name](self)


def stamp(K, idx):
    if K.opt.get('stamps'):
        K.a(f's_memtime s[98:99]\ns_waitcnt lgkmcnt(0)\ns_sub_u32 s98, s98, s100\nv_writelane_b32 v255, s98, {idx}')


phase1.stamp = stamp


def finish(K):
    a = K.a
    a.label('L_fin')
    if K.opt.get('stamps'):
        a('s_waitcnt vmcnt(0) lgkmcnt(0)')
        stamp(K, 13)
        a('s_memrealtime s[98:99]\ns_waitcnt lgkmcnt(0)')
        a('v_writelane_b32 v255, s98, 15')
        a(f's_lshl_b32 s80, s{sB}, 3\ns_add_u32 s80, s80, s{sW}\ns_lshl_b32 s80, s80, 7\ns_add_u32 s80, s80, {WS_DBG}')
        a('v_lshl_add_u32 v2, v1, 2, s80')
        a('v_cmp_gt_u32 vcc, 32, v1\ns_and_saveexec_b64 s[96:97], vcc')
        a(f'buffer_store_dword v255, v2, {S(S_WS)}, 0 offen')
        a('s_mov_b64 exec, s[96:97]')
        a(f's_add_u32 s80, s80, 0x80000\nv_lshl_add_u32 v2, v1, 2, s80')
        a('v_cmp_gt_u32 vcc, 32, v1\ns_and_saveexec_b64 s[96:97], vcc')
        a(f'buffer_store_dword v254, v2, {S(S_WS)}, 0 offen')
    a.label('L_exit')
    a('s_endpgm')


def build(**opt):
    K = Kern(**opt)
    a = K.a
    a('.amdgcn_target "amdgcn-amd-amdhsa--gfx950"\n.text\n.globl %s\n.p2align 8\n.type %s,@function' % (KNAME, KNAME))
    a.label(KNAME)
    phase1.prologue(K)
    phase1.consumer(K)
    a('s_branch L_p1_join')
    phase1.helper(K)
    a.label('L_p1_join')
    a('s_barrier')
    stamp(K, 6)
    stop = opt.get('stop')
    if stop == 'p1':
        a(f's_lshl_b32 s80, s{sRB}, 4\ns_add_u32 s80, s80, s{sHP}\ns_lshl_b32 s80, s80, 14\ns_add_u32 s80, s80, {WS_DUMP}')
        a(f'v_lshlrev_b32 v2, 4, v0\nv_add_u32 v3, s80, v2\nv_add_u32 v2, {L_Q}, v2')
        a('ds_read_b128 v[4:7], v2\nds_read_b128 v[8:11], v2 offset:8192\ns_waitcnt lgkmcnt(0)')
        a(f'buffer_store_dwordx4 v[4:7], v3, {S(S_WS)}, 0 offen\nv_add_u32 v3, 8192, v3\nbuffer_store_dwordx4 v[8:11], v3, {S(S_WS)}, 0 offen')
        a('s_waitcnt vmcnt(0)')
    else:
        phase2.attention(K, stamp)
        if stop != 'p2':
            K.hooks['ffn_dma'] = phase4.ffn_dma if stop != 'p3' else (lambda K: None)
            phase3.outproj(K, stamp)
            if stop != 'p3':
                phase4.tail(K, stamp)
    finish(K)
    a(f'''.section .rodata,"a"
.p2align 6
.amdhsa_kernel {KNAME}
  .amdhsa_next_free_vgpr 256
  .amdhsa_next_free_sgpr 102
  .amdhsa_accum_offset 256
  .amdhsa_group_segment_fixed_size 0
  .amdhsa_kernarg_size 88
  .amdhsa_user_sgpr_count 2
  .amdhsa_user_sgpr_kernarg_segment_ptr 1
  .amdhsa_system_sgpr_workgroup_id_x 1
.end_amdhsa_kernel''')
    lines, added = autonop(a.lines)
    errs = lint(lines, [KNAME])
    head = ['; fused pre-LN sliding-window attention + routed SwiGLU block (generated by my own script)',
            f'; @launch grid=(256,1,1) block=(512,1,1) lds={LDS_BYTES}']
    return '\n'.join(head + lines) + '\n', errs


if __name__ == '__main__':
    s, errs = build(stamps=True, stop=sys.argv[1] if len(sys.argv) > 1 else None)
    open('k.s', 'w').write(s)
    print(len(s), 'bytes')
```

```python
from common import *

MF16 = 'v_mfma_f32_16x16x32_bf16'
V_LANE = 1


def stamp(K, idx):
    if K.opt.get('stamps'):
        K.a(f's_memtime s[{K.STAMP_T}:{K.STAMP_T + 1}]\ns_waitcnt lgkmcnt(0)\ns_mov_b32 s{K.STAMP0 + idx}, s{K.STAMP_T}')


def prologue(K):
    a = K.a
    a('s_cmp_ge_u32 s2, 256\ns_cbranch_scc1 L_exit')
    a('s_load_dwordx16 s[4:19], s[0:1], 0\ns_load_dwordx4 s[20:23], s[0:1], 64\ns_load_dwordx2 s[24:25], s[0:1], 80')
    if K.opt.get('stamps'):
        a(f's_memrealtime s[{K.STAMP_RT}:{K.STAMP_RT + 1}]\ns_memtime s[{K.STAMP_BASE}:{K.STAMP_BASE + 1}]')
    a(f'v_and_b32 v{V_LANE}, 63, v0\nv_lshrrev_b32 v2, 6, v0')
    if K.opt.get('stamps'):
        a('v_mov_b32 v255, 0\nv_mov_b32 v254, 0')
    a(f's_mov_b32 s{sB}, s2')
    a(f'v_readfirstlane_b32 s{sW}, v2')
    a('s_and_b32 s80, s2, 7\ns_lshr_b32 s81, s2, 3')
    a(f's_lshr_b32 s82, s80, 2\ns_lshl_b32 s82, s82, 3\ns_lshr_b32 s83, s81, 2\ns_add_u32 s{sRB}, s82, s83')
    a(f's_and_b32 s82, s80, 3\ns_lshl_b32 s82, s82, 2\ns_and_b32 s83, s81, 3\ns_add_u32 s{sHP}, s82, s83')
    a(f's_lshl_b32 s82, s80, 1\ns_lshr_b32 s83, s81, 4\ns_add_u32 s{sRB2}, s82, s83\ns_and_b32 s{sCB}, s81, 15')
    a('s_waitcnt lgkmcnt(0)')
    if K.opt.get('stamps'):
        a(f'v_writelane_b32 v255, s{K.STAMP_RT}, 14')
    srd(a, S_X, 4, 4 << 20)
    srd(a, S_WQ, 6, 6 << 20)
    srd(a, S_WS, 24, WS_SIZE)
    a(f'v_mov_b32 v2, {WS_NONCE}')
    a(f'buffer_load_dword v3, v2, {S(S_WS)}, 0 offen sc1')
    a(f's_cmp_ge_u32 s{sW}, 4\ns_cbranch_scc1 L_p1_helper')


def late_srds(K):
    a = K.a
    srd(a, S_WO, 8, 2 << 20)
    srd(a, S_OUT, 20, 4 << 20)
    srd(a, S_WG, 14, 1024 * 3584 * 2)
    srd(a, S_WU, 16, 1024 * 3584 * 2)
    srd(a, S_WD, 18, 1024 * 3584 * 2)
    srd(a, S_WR, 12, 2048)


def take_nonce(K):
    a = K.a
    a(f'v_readfirstlane_b32 s{sNONCE}, v3')
    a(f's_mul_i32 s{sNONCE}, s{sNONCE}, 1664525\ns_add_u32 s{sNONCE}, s{sNONCE}, 1013904223')


ACC = 16
FA, FB = 112, 152
VXB, VWB = 192, 194
VXC, VWC = 196, 198


def accQ(db, b):
    return ACC + 4 * (db * 4 + b)


def accK(db, b):
    return ACC + 4 * (8 + db * 4 + b)


def accV(b, db):
    return ACC + 4 * (16 + b * 2 + db)


def consumer(K):
    a = K.a
    sBuf, sCnt = 80, 81
    sWR, sHD = 82, 83
    if K.opt.get('prio', 1):
        a(f"s_setprio {K.opt.get('prio', 1)}")
    a(f's_lshr_b32 s{sWR}, s{sW}, 1\ns_and_b32 s{sHD}, s{sW}, 1')
    XS, WSL = 112, 128
    a(f's_lshl_b32 s84, s{sRB}, 7\ns_lshl_b32 s85, s{sHP}, 3\ns_add_u32 s84, s84, s85\ns_lshl_b32 s85, s{sW}, 1\ns_add_u32 s86, s84, s85')
    a(f's_lshl_b32 s84, s86, 11\nv_lshrrev_b32 v5, 5, v{V_LANE}\nv_lshlrev_b32 v5, 11, v5\nv_and_b32 v6, 31, v{V_LANE}\nv_lshl_add_u32 v5, v6, 4, v5\nv_add_u32 v5, s84, v5')
    for i in range(4):
        a(f'buffer_load_dwordx4 {vr(XS + 4 * i, 4)}, v5, {S(S_X)}, 0 offen offset:{i * 512}')
    a(f'v_lshrrev_b32 v10, 3, v{V_LANE}\nv_and_b32 v11, 7, v{V_LANE}')
    a(f's_lshl_b32 s84, s{sRB}, 6\ns_lshl_b32 s85, s{sW}, 4\ns_add_u32 s84, s84, s85\nv_add_u32 v5, s84, v10\ns_mov_b32 s85, 6144\nv_mul_lo_u32 v5, v5, s85')
    a(f's_lshl_b32 s84, s{sHP}, 7\nv_lshl_add_u32 v5, v11, 4, v5\nv_add_u32 v5, s84, v5')
    for sg in range(3):
        for rg in range(2):
            a(f's_mov_b32 s84, {sg * 2048 + rg * 8 * 6144}\nbuffer_load_dwordx4 {vr(WSL + 8 * sg + 4 * rg, 4)}, v5, {S(S_WQ)}, s84 offen')
    late_srds(K)
    a(f'v_lshrrev_b32 v2, 4, v{V_LANE}')
    a(f'v_and_b32 v4, 15, v{V_LANE}')
    a('v_bfe_u32 v5, v4, 1, 3\nv_xor_b32 v5, v5, v2')
    a(f's_lshl_b32 s84, s{sWR}, 6\nv_add_u32 v6, s84, v4\nv_lshlrev_b32 v6, 7, v6')
    for ks in range(2):
        a(f'v_xor_b32 v7, {4 * ks}, v5\nv_lshl_add_u32 v{VXB + ks}, v7, 4, v6')
    a('v_lshrrev_b32 v7, 2, v4\nv_lshl_add_u32 v7, v2, 3, v7')
    a(f'v_and_b32 v8, 3, v4\nv_lshlrev_b32 v8, 3, v8\ns_lshl_b32 s84, s{sHD}, 6\nv_add_u32 v8, s84, v8')
    a('v_bfe_u32 v9, v4, 3, 1\nv_lshlrev_b32 v9, 6, v9\nv_xor_b32 v8, v8, v9')
    a('v_and_b32 v9, 1, v2\nv_lshlrev_b32 v9, 5, v9\nv_xor_b32 v8, v8, v9')
    a(f'v_lshl_add_u32 v{VWB}, v7, 7, v8\nv_add_u32 v{VWB}, 16384, v{VWB}\nv_xor_b32 v{VWB + 1}, 32, v{VWB}')
    for i in range(2):
        a(f'v_mov_b32 v{VXC + i}, v{VXB + i}\nv_mov_b32 v{VWC + i}, v{VWB + i}')
    a(f's_mov_b32 s{sBuf}, 0')
    a('s_waitcnt vmcnt(6)')
    take_nonce(K)
    U = 16
    SUM, TT = 152, 156
    for d in range(16):
        a(f'v_lshlrev_b32 v{U + 2 * d}, 16, v{XS + d}\nv_and_b32 v{U + 2 * d + 1}, 0xffff0000, v{XS + d}')
    a(f'v_pk_add_f32 v[{SUM}:{SUM + 1}], v[{U}:{U + 1}], v[{U + 2}:{U + 3}]')
    a(f'v_pk_mul_f32 v[{SUM + 2}:{SUM + 3}], v[{U}:{U + 1}], v[{U}:{U + 1}]')
    a(f'v_pk_fma_f32 v[{SUM + 2}:{SUM + 3}], v[{U + 2}:{U + 3}], v[{U + 2}:{U + 3}], v[{SUM + 2}:{SUM + 3}]')
    for d in range(2, 16):
        a(f'v_pk_add_f32 v[{SUM}:{SUM + 1}], v[{SUM}:{SUM + 1}], v[{U + 2 * d}:{U + 2 * d + 1}]')
        a(f'v_pk_fma_f32 v[{SUM + 2}:{SUM + 3}], v[{U + 2 * d}:{U + 2 * d + 1}], v[{U + 2 * d}:{U + 2 * d + 1}], v[{SUM + 2}:{SUM + 3}]')
    a(f'v_add_f32 v{SUM}, v{SUM}, v{SUM + 1}\nv_add_f32 v{SUM + 1}, v{SUM + 2}, v{SUM + 3}')
    for ctl in ('quad_perm:[1,0,3,2]', 'quad_perm:[2,3,0,1]', 'row_half_mirror', 'row_mirror'):
        for r in range(2):
            a(f'v_add_f32_dpp v{SUM + r}, v{SUM + r}, v{SUM + r} {ctl} row_mask:0xf bank_mask:0xf')
    for r in range(2):
        xor16_add(a, SUM + r, TT + r)
    a(f's_mov_b32 s88, {f32hex(1.0 / 1024)}\ns_mov_b32 s89, {f32hex(1e-5)}')
    a(f'v_mul_f32 v{SUM}, s88, v{SUM}\nv_mul_f32 v{SUM + 1}, s88, v{SUM + 1}')
    v = SUM + 1
    a(f'v_fma_f32 v{v}, -v{SUM}, v{SUM}, v{v}\nv_max_f32 v{v}, 0, v{v}')
    round_bf16(a, v, TT)
    a(f'v_add_f32 v{v}, s89, v{v}')
    round_bf16(a, v, TT)
    a(f'v_sqrt_f32 v{v}, v{v}')
    round_bf16(a, v, TT)
    a(f'v_rcp_f32 v{v}, v{v}')
    round_bf16(a, SUM, TT)
    a(f'v_mov_b32 v{SUM + 2}, s{sNONCE}\nv_mov_b32 v{SUM + 3}, 0')
    a(f's_lshl_b32 s87, s86, 4\ns_add_u32 s87, s87, {WS_ROWST}\nv_lshrrev_b32 v5, 5, v{V_LANE}\nv_lshl_add_u32 v5, v5, 4, s87')
    a(f'v_and_b32 v6, 31, v{V_LANE}\nv_cmp_eq_u32 vcc, 0, v6\ns_and_saveexec_b64 s[96:97], vcc')
    a(f'buffer_store_dwordx4 {vr(SUM, 4)}, v5, {S(S_WS)}, 0 offen sc1\ns_mov_b64 exec, s[96:97]')
    a('s_waitcnt vmcnt(1)')
    CA = 16
    for sg in range(3):
        for rg in range(2):
            for d in range(4):
                src = WSL + 8 * sg + 4 * rg + d
                dst = CA + 16 * sg + 8 * rg + 2 * d
                a(f'v_lshlrev_b32 v{dst}, 16, v{src}\nv_and_b32 v{dst + 1}, 0xffff0000, v{src}')
    for sg in range(3):
        for d in range(4):
            c = CA + 16 * sg + 2 * d
            a(f'v_pk_add_f32 v[{c}:{c + 1}], v[{c}:{c + 1}], v[{c + 8}:{c + 9}]')
    for sg in range(3):
        for e in range(4):
            a(f'v_permlane32_swap_b32 v{CA + 16 * sg + e}, v{CA + 16 * sg + e + 4}')
    for sg in range(3):
        for e in range(0, 4, 2):
            c = CA + 16 * sg + e
            a(f'v_pk_add_f32 v[{c}:{c + 1}], v[{c}:{c + 1}], v[{c + 4}:{c + 5}]')
    for sg in range(3):
        for e in range(2):
            a(f'v_permlane16_swap_b32 v{CA + 16 * sg + e}, v{CA + 16 * sg + e + 2}')
    for sg in range(3):
        c = CA + 16 * sg
        a(f'v_pk_add_f32 v[{c}:{c + 1}], v[{c}:{c + 1}], v[{c + 2}:{c + 3}]')
    for sg in range(3):
        c = CA + 16 * sg
        a(f'v_add_f32_dpp v{c + 2}, v{c}, v{c} row_ror:8 row_mask:0xf bank_mask:0xf')
        a(f'v_add_f32_dpp v{c + 3}, v{c + 1}, v{c + 1} row_ror:8 row_mask:0xf bank_mask:0xf')
    a(f'v_and_b32 v5, 8, v{V_LANE}\nv_cmp_eq_u32 vcc, 0, v5')
    a(f'v_lshrrev_b32 v5, 5, v{V_LANE}\nv_lshlrev_b32 v5, 2, v5')
    a(f'v_bfe_u32 v6, v{V_LANE}, 4, 1\nv_lshl_add_u32 v5, v6, 1, v5')
    a(f'v_bfe_u32 v6, v{V_LANE}, 3, 1\nv_add_u32 v5, v5, v6\nv_lshl_add_u32 v5, v11, 3, v5')
    a(f's_mul_i32 s87, s{sW}, 768\ns_add_u32 s87, s87, {L_CSP}\nv_lshl_add_u32 v5, v5, 2, s87')
    for sg in range(3):
        c = CA + 16 * sg
        a(f'v_cndmask_b32 v{c}, v{c + 3}, v{c + 2}, vcc')
    for sg in range(3):
        a(f'ds_write_b32 v5, v{CA + 16 * sg} offset:{256 * sg}')
    for i in range(0, 96, 2):
        a(f'v_mov_b64 v[{ACC + i}:{ACC + i + 1}], 0')
    a('s_waitcnt lgkmcnt(0)')

    def reads(S_, ks):
        r = []
        X = lambda b: f'ds_read_b128 {vr(S_ + 4 * b, 4)}, v{VXC + ks} offset:{b * 2048}'

        def W(j):
            seg, db = j >> 1, j & 1
            base = S_ + 16 + 4 * j
            off = seg * 8192 + ks * 4096
            return [f'ds_read_b64_tr_b16 {vr(base, 2)}, v{VWC + db} offset:{off}',
                    f'ds_read_b64_tr_b16 {vr(base + 2, 2)}, v{VWC + db} offset:{off + 512}']
        r.append(X(0))
        r += W(0)
        r += [X(1), X(2), X(3)]
        for j in range(1, 6):
            r += W(j)
        return r

    def mfmas(S_):
        out = []
        for j in range(6):
            seg, db = j >> 1, j & 1
            w = vr(S_ + 16 + 4 * j, 4)
            for b in range(4):
                x = vr(S_ + 4 * b, 4)
                if seg == 0:
                    c = vr(accQ(db, b), 4)
                    out.append(f'{MF16} {c}, {w}, {x}, {c}')
                elif seg == 1:
                    c = vr(accK(db, b), 4)
                    out.append(f'{MF16} {c}, {w}, {x}, {c}')
                else:
                    c = vr(accV(b, db), 4)
                    out.append(f'{MF16} {c}, {x}, {w}, {c}')
        return out

    def kstep(S_, N, nks, boundary, last=False):
        m = mfmas(S_)
        r = [] if last else reads(N, nks)
        a('s_waitcnt lgkmcnt(0)')
        k = 0
        if boundary:
            a(m[0])
            a(m[1])
            k = 2
            if not last:
                a(f's_add_u32 s{sBuf}, s{sBuf}, {STAGE}\ns_cmp_eq_u32 s{sBuf}, {STAGE * 3}\ns_cselect_b32 s{sBuf}, 0, s{sBuf}')
                for i in range(2):
                    a(f'v_add_u32 v{VXC + i}, s{sBuf}, v{VXB + i}\nv_add_u32 v{VWC + i}, s{sBuf}, v{VWB + i}')
            a('s_barrier')
            if K.opt.get('loopstamps') and not last:
                a(f's_memtime s[98:99]\ns_waitcnt lgkmcnt(0)\ns_sub_u32 s98, s98, s100\ns_sub_u32 m0, 16, s{sCnt}\ns_nop 3\nv_writelane_b32 v254, s98, m0')
        ri = 0
        while k < 24:
            a(m[k])
            k += 1
            if ri < len(r):
                a(r[ri])
                ri += 1

    a('s_barrier')
    stamp(K, 1)
    for x in reads(FA, 0):
        a(x)
    a(f's_mov_b32 s{sCnt}, 15')
    a.label('L_p1_cloop')
    kstep(FA, FB, 1, False)
    kstep(FB, FA, 0, True)
    a(f's_sub_u32 s{sCnt}, s{sCnt}, 1\ns_cmp_lg_u32 s{sCnt}, 0\ns_cbranch_scc1 L_p1_cloop')
    kstep(FA, FB, 1, False)
    kstep(FB, FA, 0, True, last=True)
    stamp(K, 2)
    epilogue(K, sWR, sHD)


def epilogue(K, sWR, sHD):
    a = K.a
    T = 112
    vG, vC = T, T + 1
    vMT, vRT = T + 2, T + 6
    vCSQ, vCSK = T + 12, T + 20
    vCSV = T + 28
    vM4, vR4 = T + 32, T + 48
    vA, vB_, vD = T + 64, T + 65, T + 66
    vLK, vLV, vLQ = T + 68, T + 69, T + 70
    vGK, vGV = T + 71, T + 72
    P = T + 76
    W_ = T + 92
    a(f'v_lshrrev_b32 v{vG}, 4, v{V_LANE}\nv_and_b32 v{vC}, 15, v{V_LANE}')
    a(f's_lshl_b32 s84, s{sWR}, 8')
    a(f'v_lshl_add_u32 v{vA}, v{vC}, 2, s84')
    a(f'v_add_u32 v{vB_}, {L_M}, v{vA}')
    a(f'ds_read2_b32 {vr(vMT, 2)}, v{vB_} offset0:0 offset1:16')
    a(f'ds_read2_b32 {vr(vMT + 2, 2)}, v{vB_} offset0:32 offset1:48')
    a(f'ds_read2_b32 {vr(vRT, 2)}, v{vB_} offset0:128 offset1:144')
    a(f'ds_read2_b32 {vr(vRT + 2, 2)}, v{vB_} offset0:160 offset1:176')
    a(f's_lshl_b32 s85, s{sHD}, 7\ns_add_u32 s85, s85, {L_CS}')
    a(f'v_lshl_add_u32 v{vA}, v{vG}, 4, s85')
    for db in range(2):
        a(f'ds_read_b128 {vr(vCSK + 4 * db, 4)}, v{vA} offset:{256 + 64 * db}')
    a(f'v_lshl_add_u32 v{vD}, v{vC}, 2, s85')
    for db in range(2):
        a(f'ds_read_b32 v{vCSV + db}, v{vD} offset:{512 + 64 * db}')
    for db in range(2):
        a(f'ds_read_b128 {vr(vCSQ + 4 * db, 4)}, v{vA} offset:{64 * db}')
    a(f's_add_u32 s84, s84, {L_M}\nv_lshl_add_u32 v{vD}, v{vG}, 4, s84')
    for b in range(4):
        a(f'ds_read_b128 {vr(vM4 + 4 * b, 4)}, v{vD} offset:{64 * b}')
        a(f'ds_read_b128 {vr(vR4 + 4 * b, 4)}, v{vD} offset:{512 + 64 * b}')
    a(f'v_lshrrev_b32 v{vA}, 1, v{vG}\nv_lshlrev_b32 v{vA}, 10, v{vA}')
    a(f'v_and_b32 v{vB_}, 1, v{vG}\nv_lshlrev_b32 v{vB_}, 9, v{vB_}\nv_add_u32 v{vA}, v{vA}, v{vB_}')
    a(f'v_lshrrev_b32 v{vB_}, 3, v{vC}\nv_lshlrev_b32 v{vB_}, 8, v{vB_}')
    a(f'v_and_b32 v{vD}, 7, v{vC}\nv_lshl_add_u32 v{vB_}, v{vD}, 4, v{vB_}\nv_add_u32 v{vLK}, v{vA}, v{vB_}')
    a(f'v_lshl_add_u32 v{vLV}, v{vC}, 4, v{vA}')
    a(f's_mul_i32 s86, s{sHD}, {KV_HD}\ns_lshl_b32 s87, s{sWR}, 13\ns_add_u32 s86, s86, s87\ns_add_u32 s86, s86, {8 * 4096}')
    a(f's_lshl_b32 s87, s{sRB}, 4\ns_add_u32 s87, s87, s{sHP}\ns_lshl_b32 s87, s87, 15\ns_lshl_b32 s88, s{sHD}, 14\ns_add_u32 s87, s87, s88')
    a(f's_lshl_b32 s88, s{sWR}, 13\ns_add_u32 s87, s87, s88\ns_add_u32 s87, s87, {WS_KV}')
    a(f'v_add_u32 v{vGK}, s87, v{vLK}\nv_add_u32 v{vGV}, s87, v{vLV}')
    a(f's_lshl_b32 s88, s{sHD}, 13\ns_lshl_b32 s89, s{sWR}, 12\ns_add_u32 s88, s88, s89\ns_add_u32 s88, s88, {L_Q}')
    a(f'v_add_u32 v{vLQ}, s88, v{vLV}\nv_add_u32 v{vLK}, s86, v{vLK}\nv_add_u32 v{vLV}, s86, v{vLV}')
    a('s_waitcnt lgkmcnt(0)')

    def bsel(reg, pos):
        base = reg & ~1
        bit = reg & 1
        return f'v[{base}:{base + 1}]', bit

    def fix_qk(acc, cs, b, dst):
        mp, mb = bsel(vMT + b, 0)
        rp, rb_ = bsel(vRT + b, 0)
        for h in range(2):
            t = W_ + 2 * h
            a(f'v_pk_fma_f32 v[{t}:{t + 1}], v[{cs + 2 * h}:{cs + 2 * h + 1}], {mp}, v[{acc + 2 * h}:{acc + 2 * h + 1}] '
              f'op_sel:[0,{mb},0] op_sel_hi:[1,{mb},1] neg_lo:[0,1,0] neg_hi:[0,1,0]')
        for h in range(2):
            t = W_ + 2 * h
            a(f'v_pk_mul_f32 v[{t}:{t + 1}], v[{t}:{t + 1}], {rp} op_sel:[0,{rb_}] op_sel_hi:[1,{rb_}]')
        for h in range(2):
            t = W_ + 2 * h
            a(f'v_cvt_pk_bf16_f32 v{dst + h}, v{t}, v{t + 1}')

    def fix_v(acc, b, db, dst):
        cp, cb_ = bsel(vCSV + db, 0)
        for h in range(2):
            t = W_ + 4 + 2 * h
            a(f'v_pk_fma_f32 v[{t}:{t + 1}], v[{vM4 + 4 * b + 2 * h}:{vM4 + 4 * b + 2 * h + 1}], {cp}, v[{acc + 2 * h}:{acc + 2 * h + 1}] '
              f'op_sel:[0,{cb_},0] op_sel_hi:[1,{cb_},1] neg_lo:[0,1,0] neg_hi:[0,1,0]')
        for h in range(2):
            t = W_ + 4 + 2 * h
            a(f'v_pk_mul_f32 v[{t}:{t + 1}], v[{t}:{t + 1}], v[{vR4 + 4 * b + 2 * h}:{vR4 + 4 * b + 2 * h + 1}]')
        for h in range(2):
            t = W_ + 4 + 2 * h
            a(f'v_cvt_pk_bf16_f32 v{dst + h}, v{t}, v{t + 1}')

    for b in range(4):
        d = P + 4 * (b & 3)
        fix_qk(accK(0, b), vCSK, b, d)
        fix_qk(accK(1, b), vCSK + 4, b, d + 2)
        off = (b >> 1) * 4096 + (b & 1) * 128
        if off < 4096:
            a(f'buffer_store_dwordx4 {vr(d, 4)}, v{vGK}, {S(S_WS)}, 0 offen offset:{off} sc1')
        else:
            a(f's_mov_b32 s89, 4096\nbuffer_store_dwordx4 {vr(d, 4)}, v{vGK}, {S(S_WS)}, s89 offen offset:{off - 4096} sc1')
        a(f'ds_write_b128 v{vLK}, {vr(d, 4)} offset:{off}')
    for tb in range(2):
        for db in range(2):
            d = P + 4 * ((2 * tb + db) & 3)
            fix_v(accV(2 * tb, db), 2 * tb, db, d)
            fix_v(accV(2 * tb + 1, db), 2 * tb + 1, db, d + 2)
            off = tb * 4096 + 2048 + db * 256
            a(f's_mov_b32 s89, {off & ~4095}\nbuffer_store_dwordx4 {vr(d, 4)}, v{vGV}, {S(S_WS)}, s89 offen offset:{off & 4095} sc1')
            a(f'ds_write_b128 v{vLV}, {vr(d, 4)} offset:{off}')
    import math
    a(f's_mov_b32 s89, {f32hex(math.log2(math.e) / math.sqrt(32.0))}')
    for b in range(4):
        a(f'v_mul_f32 v{vRT + b}, s89, v{vRT + b}')
    for b in range(4):
        d = P + 4 * (b & 3)
        fix_qk(accQ(0, b), vCSQ, b, d)
        fix_qk(accQ(1, b), vCSQ + 4, b, d + 2)
        a(f'ds_write_b128 v{vLQ}, {vr(d, 4)} offset:{(b >> 1) * 2048 + (b & 1) * 256}')
    a('s_waitcnt lgkmcnt(0)')
    stamp(K, 3)


def helper(K):
    a = K.a
    a.label('L_p1_helper')
    sJ = 80
    XO, WO = 8, 12
    F = 40
    a(f's_sub_u32 s{sJ}, s{sW}, 4\ns_mov_b32 s90, 0')
    a(f'v_lshrrev_b32 v2, 3, v{V_LANE}\nv_and_b32 v4, 7, v{V_LANE}')
    a(f's_lshl_b32 s81, s{sJ}, 5\ns_lshl_b32 s82, s{sRB}, 7\ns_add_u32 s81, s81, s82')
    a('v_add_u32 v5, s81, v2\nv_lshlrev_b32 v5, 11, v5')
    a('v_lshrrev_b32 v6, 1, v2\nv_xor_b32 v7, v6, v4\nv_xor_b32 v6, 4, v7')
    for i in range(4):
        a(f'v_lshl_add_u32 v{XO + i}, v{7 if (i & 1) == 0 else 6}, 4, v5')
        if i:
            a(f'v_add_u32 v{XO + i}, {i * 16384}, v{XO + i}')
    sLX, sLW = 84, 85
    a(f's_lshl_b32 s{sLX}, s{sJ}, 12\ns_mul_i32 s{sLW}, s{sJ}, 6144\ns_add_u32 s{sLW}, s{sLW}, 16384')
    q = []
    q.append('nonce')

    def vm(tag, text):
        a(text)
        q.append(tag)

    def wait_for(tag):
        last = max(i for i, t in enumerate(q) if t == tag)
        n = len(q) - 1 - last
        assert n <= 63
        a(f's_waitcnt vmcnt({n})')

    def issue(slot, fill=(), part='xw'):
        buf = (slot % 3) * STAGE
        fill = list(fill)
        per = -(-len(fill) // 10) if fill else 0

        def gap():
            for _ in range(per):
                if fill:
                    g = fill.pop(0)
                    if isinstance(g, tuple):
                        vm(g[1], g[0])
                    else:
                        a(g)
        a(f's_add_u32 s81, s{sRB}, {slot}\ns_and_b32 s81, s81, 15\ns_lshl_b32 s82, s81, 7\ns_mul_i32 s83, s81, 393216')
        if 'x' in part:
            a(f's_add_u32 m0, s{sLX}, {buf}')
            for i in range(4):
                if i:
                    a('s_add_u32 m0, m0, 0x400')
                vm(f'st{slot}', f'buffer_load_dwordx4 v{XO + i}, {S(S_X)}, s82 offen lds')
                gap()
        if 'w' in part:
            a(f's_add_u32 m0, s{sLW}, {buf}')
            for i in range(6):
                if i:
                    a('s_add_u32 m0, m0, 0x400')
                vm(f'st{slot}', f'buffer_load_dwordx4 v{WO + i}, {S(S_WQ)}, s83 offen lds')
                gap()
        while fill:
            g = fill.pop(0)
            if isinstance(g, tuple):
                vm(g[1], g[0])
            else:
                a(g)

    stamp(K, 4)
    issue(0, part='x')
    a('v_bfe_u32 v5, v2, 1, 1\nv_lshlrev_b32 v5, 2, v5\nv_xor_b32 v5, v5, v4')
    a('s_mov_b32 s89, 6144')
    a(f'v_mul_lo_u32 v6, v2, s89\ns_lshl_b32 s82, s{sHP}, 7\nv_add_u32 v6, s82, v6')
    for i in range(6):
        a(f's_mul_i32 s81, s{sJ}, 6\ns_add_u32 s81, s81, {i}\ns_lshr_b32 s82, s81, 3\ns_and_b32 s81, s81, 7')
        a(f's_lshl_b32 s82, s82, 11\ns_mul_i32 s83, s81, {8 * 6144}\ns_add_u32 s82, s82, s83')
        a('s_and_b32 s81, s81, 1\ns_lshl_b32 s81, s81, 1')
        a(f'v_xor_b32 v7, s81, v5\nv_lshl_add_u32 v7, v7, 4, v6\nv_add_u32 v{WO + i}, s82, v7')
    issue(0, part='w')
    issue(1)
    late_srds(K)

    def lines(txt):
        return [l for l in txt.split('\n') if l]

    class Coll:
        def __init__(self):
            self.g = []

        def __call__(self, t):
            self.g += lines(t)

        def group(self, t):
            self.g.append(t)

        def vm(self, tag, t):
            self.g.append((t, tag))

    f3 = Coll()
    f3(f'v_lshlrev_b32 v5, 2, v{V_LANE}\nv_add_u32 v5, {L_CSP}, v5')
    for w in range(4):
        for sg in range(3):
            f3(f'ds_read_b32 v{F + 4 * w + sg}, v5 offset:{768 * w + 256 * sg}')
    f3(f's_lshl_b32 s87, s{sHP}, 4\ns_add_u32 s87, s87, s{sRB}\ns_lshl_b32 s87, s87, 10\ns_add_u32 s87, s87, {WS_COLS}')
    f3(f'v_lshl_add_u32 v6, v{V_LANE}, 4, s87')
    f3('s_waitcnt lgkmcnt(0)')
    for sg in range(3):
        f3(f'v_add_f32 v{F + sg}, v{F + sg}, v{F + 4 + sg}\nv_add_f32 v{F + 8 + sg}, v{F + 8 + sg}, v{F + 12 + sg}')
    for sg in range(3):
        f3(f'v_add_f32 v{F + sg}, v{F + sg}, v{F + 8 + sg}')
    f3(f'v_mov_b32 v{F + 3}, s{sNONCE}')
    f3.vm('pub', f'v_lshrrev_b32 v5, 4, v{V_LANE}\nv_cmp_eq_u32 vcc, s{sJ}, v5\ns_and_saveexec_b64 s[96:97], vcc\n'
          f'buffer_store_dwordx4 {vr(F, 4)}, v6, {S(S_WS)}, 0 offen sc1\ns_mov_b64 exec, s[96:97]')
    GS = K.opt.get('gather_slot', 10)
    GR = F
    f9 = Coll()
    f9(f's_lshl_b32 s87, s{sHP}, 14\ns_lshl_b32 s88, s{sJ}, 8\ns_add_u32 s87, s87, s88\ns_add_u32 s87, s87, {WS_COLS}')
    f9(f'v_lshrrev_b32 v5, 4, v{V_LANE}\nv_lshlrev_b32 v5, 10, v5\nv_and_b32 v6, 15, v{V_LANE}\nv_lshl_add_u32 v5, v6, 4, v5\nv_add_u32 v30, s87, v5')
    f9(f's_lshl_b32 s87, s{sRB}, 11\ns_lshl_b32 s88, s{sJ}, 9\ns_add_u32 s87, s87, s88\ns_add_u32 s87, s87, {WS_ROWST}')
    f9(f'v_and_b32 v6, 31, v{V_LANE}\nv_lshl_add_u32 v31, v6, 4, s87')

    def gather(emit):
        for i in range(4):
            emit('gath', f's_mov_b32 s87, {i * 4096}\nbuffer_load_dwordx4 {vr(GR + 4 * i, 4)}, v30, {S(S_WS)}, s87 offen sc1')
        emit('gath', f'buffer_load_dwordx4 {vr(GR + 16, 4)}, v31, {S(S_WS)}, 0 offen sc1')
    gather(f9.vm)

    fa = Coll()
    for sg in range(3):
        for i in range(1, 4):
            fa(f'v_add_f32 v{GR + sg}, v{GR + sg}, v{GR + 4 * i + sg}')
    for sg in range(3):
        xor16_add(fa, GR + sg, GR + 4 + sg)
    for sg in range(3):
        xor32_add(fa, GR + sg, GR + 4 + sg)
    fa(f's_lshl_b32 s87, s{sJ}, 6\ns_add_u32 s87, s87, {L_CS}\nv_and_b32 v5, 15, v{V_LANE}\nv_lshl_add_u32 v5, v5, 2, s87')
    for sg in range(3):
        fa(f'ds_write_b32 v5, v{GR + sg} offset:{256 * sg}')
    fa(f's_lshl_b32 s87, s{sJ}, 7\ns_add_u32 s87, s87, {L_M}\nv_and_b32 v5, 31, v{V_LANE}\nv_lshl_add_u32 v5, v5, 2, s87')
    fa(f'ds_write_b32 v5, v{GR + 16}\nds_write_b32 v5, v{GR + 17} offset:512')

    def cut(g, parts):
        n = -(-len(g) // parts)
        return [g[k * n:(k + 1) * n] for k in range(parts)]
    da = cut(fa.g, 2)
    fills = {0: f3.g, GS: f9.g, GS + 2: da[0], GS + 3: da[1]}
    for s in range(16):
        wait_for(f'st{s}')
        if s == 0:
            take_nonce(K)
        if s == GS + 4:
            a('s_waitcnt lgkmcnt(0)')
        a('s_barrier')
        if s == GS + 2:
            wait_for('gath')
            lr, lo = a.newlabel('gretry'), a.newlabel('gok')
            a.label(lr)
            a(f'v_cmp_ne_u32 vcc, s{sNONCE}, v{GR + 3}')
            for i in range(1, 4):
                a(f'v_cmp_ne_u32 s[88:89], s{sNONCE}, v{GR + 4 * i + 3}\ns_or_b64 vcc, vcc, s[88:89]')
            a(f'v_cmp_ne_u32 s[88:89], s{sNONCE}, v{GR + 18}\ns_or_b64 vcc, vcc, s[88:89]')
            a(f's_cbranch_vccz {lo}')
            a(f's_add_u32 s90, s90, 1\ns_cmp_gt_u32 s90, {K.SPIN}\ns_cbranch_scc1 {lo}\ns_sleep 2')
            gather(lambda tag, t: a(t))
            a(f's_waitcnt vmcnt(0)\ns_branch {lr}')
            a.label(lo)
        if s + 2 < 16:
            issue(s + 2, fills.get(s, ()))
        else:
            for g in fills.get(s, ()):
                a(g)
    a('s_waitcnt lgkmcnt(0)')
    a('s_barrier')
    stamp(K, 5)
```

```python
from common import *

MF32 = 'v_mfma_f32_32x32x16_bf16'
V_LANE = 1
MASK0 = 4

QF, KF, VF = 8, 16, 24
SS, PP, OO, LL, CI, ONE = 32, 48, 56, 72, 88, 104
vKA = 108
vM, vT0, vT1 = 109, 110, 111
vNINF = 112
sQS, sHD2, sRED, sT, sTE, sHEAD = 80, 81, 82, 83, 84, 85


def key_of(i, h):
    return 16 * ((i >> 2) & 1) + 8 * ((i >> 3) & 1) + 4 * h + (i & 3)


def mask_const(i):
    m = 0
    for l in range(64):
        if key_of(i, l >> 5) <= (l & 31):
            m |= 1 << l
    return m


def read_k(a, off):
    a(f'ds_read_b128 {vr(KF, 4)}, v{vKA} offset:{off}\nds_read_b128 {vr(KF + 4, 4)}, v{vKA} offset:{off + 1024}')


def read_v(a, off):
    a(f'ds_read_b128 {vr(VF, 4)}, v{vKA} offset:{off + 2048}\nds_read_b128 {vr(VF + 4, 4)}, v{vKA} offset:{off + 3072}')


def qk(a, c):
    a(f'{MF32} {vr(SS, 16)}, {vr(KF, 4)}, {vr(QF, 4)}, {c}')
    a(f'{MF32} {vr(SS, 16)}, {vr(KF + 4, 4)}, {vr(QF + 4, 4)}, {vr(SS, 16)}')


def exp_cvt(a):
    for j in range(8):
        a(f'v_exp_f32 v{SS + 2 * j}, v{SS + 2 * j}\nv_exp_f32 v{SS + 2 * j + 1}, v{SS + 2 * j + 1}')
        if j:
            a(f'v_cvt_pk_bf16_f32 v{PP + j - 1}, v{SS + 2 * j - 2}, v{SS + 2 * j - 1}')
    a(f'v_cvt_pk_bf16_f32 v{PP + 7}, v{SS + 14}, v{SS + 15}')


def pv(a, first=False):
    co = '0' if first else vr(OO, 16)
    cl = '0' if first else vr(LL, 16)
    a(f'{MF32} {vr(OO, 16)}, {vr(VF, 4)}, {vr(PP, 4)}, {co}')
    a(f'{MF32} {vr(LL, 16)}, {vr(ONE, 4)}, {vr(PP, 4)}, {cl}')
    a(f'{MF32} {vr(OO, 16)}, {vr(VF + 4, 4)}, {vr(PP + 4, 4)}, {vr(OO, 16)}')
    a(f'{MF32} {vr(LL, 16)}, {vr(ONE, 4)}, {vr(PP + 4, 4)}, {vr(LL, 16)}')


def block_loop(K, name):
    a = K.a
    read_k(a, 0)
    a('s_waitcnt lgkmcnt(0)')
    qk(a, vr(CI, 16))
    a.label(name)
    read_k(a, 4096)
    read_v(a, 0)
    exp_cvt(a)
    a('s_waitcnt lgkmcnt(0)')
    qk(a, vr(CI, 16))
    pv(a)
    a(f'v_add_u32 v{vKA}, 4096, v{vKA}')
    a(f's_add_u32 s{sT}, s{sT}, 1\ns_cmp_lt_u32 s{sT}, s{sTE}\ns_cbranch_scc1 {name}')


def set_block(K, sreg_or_const):
    a = K.a
    a(f's_lshl_b32 s86, {sreg_or_const}, 12\nv_add_u32 v{vKA}, s86, v{vT1}')


def attention(K, stamp):
    a = K.a
    a(f's_and_b32 s{sHD2}, s{sW}, 1\ns_lshr_b32 s86, s{sW}, 1\ns_sub_u32 s87, 5, s86')
    a(f's_cmp_lt_u32 s{sW}, 4\ns_cselect_b32 s{sQS}, s86, s87')
    a(f's_lshl_b32 s{sHEAD}, s{sHP}, 1\ns_add_u32 s{sHEAD}, s{sHEAD}, s{sHD2}')
    a(f's_mov_b32 s{sRED}, 0')
    a(f's_lshl_b32 s86, s{sHD2}, 13\ns_lshl_b32 s87, s{sQS}, 11\ns_add_u32 s86, s86, s87\ns_add_u32 s86, s86, {L_Q}')
    a(f'v_lshl_add_u32 v{vT0}, v{V_LANE}, 4, s86')
    a(f'ds_read_b128 {vr(QF, 4)}, v{vT0}\nds_read_b128 {vr(QF + 4, 4)}, v{vT0} offset:1024')
    a(f's_mul_i32 s86, s{sHD2}, {KV_HD}\nv_lshl_add_u32 v{vT1}, v{V_LANE}, 4, s86')
    for i in range(16):
        m = mask_const(i)
        a(f's_mov_b32 s{MASK0 + 2 * i}, 0x{m & 0xffffffff:08x}\ns_mov_b32 s{MASK0 + 2 * i + 1}, 0x{m >> 32:08x}')
    for i in range(4):
        a(f'v_mov_b32 v{ONE + i}, 0x3f803f80')
    a(f'v_mov_b32 v{vNINF}, 0xff800000')
    a.label('L_att_start')
    a(f's_add_u32 s{sT}, s{sQS}, 8')
    set_block(K, f's{sT}')
    read_k(a, 0)
    read_v(a, 0)
    a('s_waitcnt lgkmcnt(2)')
    qk(a, '0')
    for i in range(16):
        a(f'v_cndmask_b32 v{SS + i}, v{vNINF}, v{SS + i}, s[{MASK0 + 2 * i}:{MASK0 + 2 * i + 1}]')
    lab = a.newlabel('havemax')
    a(f's_cmp_lg_u32 s{sRED}, 0\ns_cbranch_scc1 {lab}')
    a(f'v_max3_f32 v{vM}, v{SS}, v{SS + 1}, v{SS + 2}')
    a(f'v_max3_f32 v{vT0}, v{SS + 3}, v{SS + 4}, v{SS + 5}')
    for i in range(6, 16, 4):
        a(f'v_max3_f32 v{vM}, v{vM}, v{SS + i}, v{SS + i + 1}')
        if i + 3 < 16:
            a(f'v_max3_f32 v{vT0}, v{vT0}, v{SS + i + 2}, v{SS + i + 3}')
    a(f'v_max_f32 v{vM}, v{vM}, v{vT0}')
    xor32_op(a, 'v_max_f32', vM, vT0)
    a.label(lab)
    a(f'v_sub_f32 v{CI}, 0, v{vM}\nv_sub_f32 v{CI + 1}, 0, v{vM}')
    for j in range(8):
        a(f'v_pk_add_f32 v[{SS + 2 * j}:{SS + 2 * j + 1}], v[{SS + 2 * j}:{SS + 2 * j + 1}], v[{CI}:{CI + 1}]')
    for j in range(1, 8):
        a(f'v_mov_b64 v[{CI + 2 * j}:{CI + 2 * j + 1}], v[{CI}:{CI + 1}]')
    exp_cvt(a)
    a('s_waitcnt lgkmcnt(0)')
    pv(a, first=True)
    stamp(K, 7)
    lab = a.newlabel('noflag')
    a(f's_cmp_ge_u32 s{sW}, 4\ns_cbranch_scc1 {lab}\ns_cmp_lg_u32 s{sRED}, 0\ns_cbranch_scc1 {lab}')
    a('s_waitcnt vmcnt(0)')
    a(f's_lshl_b32 s86, s{sRB}, 4\ns_add_u32 s86, s86, s{sHP}\ns_lshl_b32 s86, s86, 6\ns_lshl_b32 s87, s{sW}, 2\ns_add_u32 s86, s86, s87\ns_add_u32 s86, s86, {WS_KVFLAG}')
    a(f'v_mov_b32 v{vT0}, s86\nv_mov_b32 v2, s{sNONCE}')
    a(f'v_cmp_eq_u32 vcc, 0, v{V_LANE}\ns_and_saveexec_b64 s[96:97], vcc')
    a(f'buffer_store_dword v2, v{vT0}, {S(S_WS)}, 0 offen sc1\ns_mov_b64 exec, s[96:97]')
    a.label(lab)
    lab = a.newlabel('nolocal')
    a(f's_cmp_eq_u32 s{sQS}, 0\ns_cbranch_scc1 {lab}')
    a(f's_mov_b32 s{sT}, 8\ns_add_u32 s{sTE}, s{sQS}, 8')
    set_block(K, f's{sT}')
    block_loop(K, 'L_att_local')
    a.label(lab)
    stamp(K, 8)
    lskip = a.newlabel('remdone')
    a(f's_cmp_lg_u32 s{sRED}, 0\ns_cbranch_scc1 {lskip}')
    lnod = a.newlabel('nodma')
    a(f's_lshr_b32 s86, s{sW}, 2\ns_add_u32 s87, s{sRB}, s86\ns_cmp_lt_u32 s87, 2\ns_cbranch_scc1 {lnod}')
    a(f's_sub_u32 s87, s87, 2\ns_lshl_b32 s87, s87, 4\ns_add_u32 s87, s87, s{sHP}')
    a(f's_and_b32 s88, s{sW}, 3\ns_lshl_b32 s89, s87, 6\ns_lshl_b32 s91, s88, 2\ns_add_u32 s89, s89, s91\ns_add_u32 s89, s89, {WS_KVFLAG}')
    a(f'v_mov_b32 v{vT0}, s89\ns_mov_b32 s90, 0')
    lp, lok = a.newlabel('kvpoll'), a.newlabel('kvok')
    a.label(lp)
    a(f'buffer_load_dword v2, v{vT0}, {S(S_WS)}, 0 offen sc1\ns_waitcnt vmcnt(0)')
    a(f'v_cmp_ne_u32 vcc, s{sNONCE}, v2\ns_cbranch_vccz {lok}')
    a(f's_add_u32 s90, s90, 1\ns_cmp_gt_u32 s90, {K.SPIN}\ns_cbranch_scc1 {lok}\ns_sleep 1\ns_branch {lp}')
    a.label(lok)
    a('s_and_b32 s91, s88, 1\ns_lshr_b32 s92, s88, 1')
    a(f's_lshl_b32 s87, s87, 15\ns_lshl_b32 s93, s91, 14\ns_add_u32 s87, s87, s93\ns_lshl_b32 s93, s92, 13\ns_add_u32 s87, s87, s93\ns_add_u32 s87, s87, {WS_KV}')
    a(f's_mul_i32 s91, s91, {KV_HD}\ns_lshl_b32 s86, s86, 14\ns_add_u32 s91, s91, s86\ns_add_u32 s91, s91, s93')
    a(f'v_lshlrev_b32 v2, 4, v{V_LANE}\ns_mov_b32 m0, s91')
    for i in range(8):
        if i:
            a('s_add_u32 m0, m0, 0x400\ns_add_u32 s87, s87, 0x400')
        a(f'buffer_load_dwordx4 v2, {S(S_WS)}, s87 offen sc1 lds')
    a('s_waitcnt vmcnt(0)')
    a.label(lnod)
    a('s_barrier')
    a.label(lskip)
    stamp(K, 9)
    lnf, lrem, lend = a.newlabel('nofirst'), a.newlabel('remloop'), a.newlabel('remend')
    a(f's_cmp_eq_u32 s{sRB}, 0\ns_cbranch_scc1 {lend}')
    a(f's_cmp_eq_u32 s{sRB}, 1\ns_cbranch_scc1 {lnf}')
    set_block(K, f's{sQS}')
    read_k(a, 0)
    read_v(a, 0)
    a('s_waitcnt lgkmcnt(2)')
    qk(a, vr(CI, 16))
    for i in range(16):
        a(f'v_cndmask_b32 v{SS + i}, v{SS + i}, v{vNINF}, s[{MASK0 + 2 * i}:{MASK0 + 2 * i + 1}]')
    exp_cvt(a)
    a('s_waitcnt lgkmcnt(0)')
    pv(a)
    a(f's_add_u32 s{sT}, s{sQS}, 1\ns_max_u32 s{sT}, s{sT}, 1')
    a(f's_cmp_ge_u32 s{sT}, 8\ns_cbranch_scc1 {lend}\ns_branch {lrem}')
    a.label(lnf)
    a(f's_mov_b32 s{sT}, 4')
    a.label(lrem)
    a(f's_mov_b32 s{sTE}, 8')
    set_block(K, f's{sT}')
    block_loop(K, 'L_att_remote')
    a.label(lend)
    stamp(K, 10)
    lokk = a.newlabel('att_ok')
    a(f's_cmp_lg_u32 s{sRED}, 0\ns_cbranch_scc1 {lokk}')
    a(f'v_mov_b32 v{vT0}, 0x5f800000')
    a(f'v_cmp_nlt_f32 vcc, v{LL}, v{vT0}\ns_cbranch_vccz {lokk}')
    true_max(K)
    a(f's_mov_b32 s{sRED}, 1\ns_branch L_att_start')
    a.label(lokk)
    a('s_nop 5')
    a(f'v_rcp_f32 v{vM}, v{LL}')
    a(f's_lshl_b32 s86, s{sRB}, 3\ns_lshl_b32 s87, s{sQS}, 1\ns_add_u32 s86, s86, s87\ns_lshl_b32 s86, s86, 5\ns_add_u32 s86, s86, s{sHEAD}\ns_lshl_b32 s86, s86, 10\ns_add_u32 s86, s86, {WS_O}')
    a(f'v_bfe_u32 v2, v{V_LANE}, 4, 1\nv_lshlrev_b32 v2, 15, v2')
    a(f'v_lshrrev_b32 v4, 5, v{V_LANE}\nv_lshlrev_b32 v4, 8, v4\nv_add_u32 v2, v2, v4')
    a(f'v_and_b32 v4, 15, v{V_LANE}\nv_lshl_add_u32 v2, v4, 4, v2\nv_add_u32 v2, s86, v2')
    for j in range(8):
        a(f'v_pk_mul_f32 v[{OO + 2 * j}:{OO + 2 * j + 1}], v[{OO + 2 * j}:{OO + 2 * j + 1}], v[{vM - 1}:{vM}] op_sel:[0,1] op_sel_hi:[1,1]')
    for j in range(8):
        a(f'v_cvt_pk_bf16_f32 v{PP + j}, v{OO + 2 * j}, v{OO + 2 * j + 1}')
    a(f'buffer_store_dwordx4 {vr(PP, 4)}, v2, {S(S_WS)}, 0 offen sc1')
    a(f'buffer_store_dwordx4 {vr(PP + 4, 4)}, v2, {S(S_WS)}, 0 offen offset:512 sc1')
    a(f's_lshl_b32 s86, s{sRB}, 2\ns_add_u32 s86, s86, s{sQS}\ns_lshl_b32 s86, s86, 7\ns_lshl_b32 s87, s{sHEAD}, 2\ns_add_u32 s86, s86, s87\ns_add_u32 s86, s86, {WS_OFLAG}')
    a(f'v_mov_b32 v4, s86\nv_mov_b32 v5, s{sNONCE}')
    a('s_waitcnt vmcnt(0)')
    a(f'v_cmp_eq_u32 vcc, 0, v{V_LANE}\ns_and_saveexec_b64 s[96:97], vcc')
    a(f'buffer_store_dword v5, v4, {S(S_WS)}, 0 offen sc1\ns_mov_b64 exec, s[96:97]')
    stamp(K, 11)


def true_max(K):
    a = K.a
    lloop, lnm, ldone = a.newlabel('tm_loop'), a.newlabel('tm_nomask'), a.newlabel('tm_done')
    a(f's_cmp_eq_u32 s{sRB}, 0\ns_cselect_b32 s{sT}, 8, s{sQS}\ns_cmp_eq_u32 s{sRB}, 1\ns_cselect_b32 s{sT}, 4, s{sT}')
    a(f's_add_u32 s{sTE}, s{sQS}, 8')
    a(f's_cmp_ge_u32 s{sT}, s{sTE}\ns_cbranch_scc1 {ldone}')
    a.label(lloop)
    set_block(K, f's{sT}')
    read_k(a, 0)
    a('s_waitcnt lgkmcnt(0)')
    qk(a, '0')
    a(f's_cmp_lt_u32 s{sRB}, 2\ns_cbranch_scc1 {lnm}\ns_cmp_lg_u32 s{sT}, s{sQS}\ns_cbranch_scc1 {lnm}')
    for i in range(16):
        a(f'v_cndmask_b32 v{SS + i}, v{SS + i}, v{vNINF}, s[{MASK0 + 2 * i}:{MASK0 + 2 * i + 1}]')
    a.label(lnm)
    a('s_nop 7\ns_nop 3')
    for i in range(0, 16, 2):
        a(f'v_max3_f32 v{vM}, v{vM}, v{SS + i}, v{SS + i + 1}')
    a(f's_add_u32 s{sT}, s{sT}, 1\ns_cmp_lt_u32 s{sT}, s{sTE}\ns_cbranch_scc1 {lloop}')
    a.label(ldone)
    xor32_op(a, 'v_max_f32', vM, vT0)
```

```python
from common import *

MF16 = 'v_mfma_f32_16x16x32_bf16'
V_LANE = 1
AC, WFA, WFB, VWO, XR, WRP, WRF, SW = 8, 40, 56, 72, 76, 84, 88, 96
T0 = 97
OF = 120
HP, HF = 40, 48
ST = 64
XNP = 120
OUTP = 128
sTB, sKH = 80, 81
L_WO0, L_WO1, L_EX = 98304, 0, 65536
L_STA = 0
L_ST2 = 4096
L_RR = 8192


def wo_dma(K, first, count):
    a = K.a
    a(f'v_lshrrev_b32 v2, 3, v{V_LANE}\nv_and_b32 v4, 7, v{V_LANE}')
    a('v_bfe_u32 v5, v2, 1, 2\nv_lshlrev_b32 v5, 1, v5\nv_xor_b32 v5, v5, v4')
    a(f's_lshl_b32 s86, s{sW}, 7\nv_add_u32 v6, s86, v2\nv_lshlrev_b32 v6, 11, v6')
    a(f's_lshl_b32 s86, s{sCB}, 7\nv_lshl_add_u32 v6, v5, 4, v6\nv_add_u32 v6, s86, v6')
    a(f's_and_b32 s86, s{sW}, 3\ns_lshl_b32 s86, s86, 14\ns_cmp_lt_u32 s{sW}, 4\ns_cselect_b32 s87, {L_WO0}, {L_WO1}\ns_add_u32 s86, s86, s87')
    a(f's_add_u32 m0, s86, {first * 1024}')
    for i in range(first, first + count):
        if i > first:
            a('s_add_u32 m0, m0, 0x400')
        a(f's_mov_b32 s87, {i * 16384}\nbuffer_load_dwordx4 v6, {S(S_WO)}, s87 offen lds')


def outproj(K, stamp):
    a = K.a
    a(f's_and_b32 s{sTB}, s{sW}, 3\ns_lshr_b32 s{sKH}, s{sW}, 2')
    a('s_barrier')
    wo_dma(K, 0, 16)
    a(f'v_lshrrev_b32 v2, 4, v{V_LANE}\nv_and_b32 v4, 15, v{V_LANE}')
    a(f's_lshl_b32 s86, s{sCB}, 7\ns_lshl_b32 s87, s{sKH}, 6\ns_add_u32 s86, s86, s87')
    a(f'v_lshl_add_u32 v5, v2, 3, s86')
    for nb in range(2):
        a(f'buffer_load_dwordx2 {vr(WRP + 2 * nb, 2)}, v5, {S(S_WR)}, 0 offen offset:{32 * nb}')
    a(f's_lshl_b32 s87, s{sRB2}, 7\ns_lshl_b32 s88, s{sTB}, 5\ns_add_u32 s87, s87, s88\nv_add_u32 v6, s87, v4\nv_lshl_add_u32 v{T0}, v6, 11, v5')
    a('s_mov_b32 s87, 32768')
    for b in range(2):
        for nb in range(2):
            a(f'buffer_load_dwordx2 {vr(XR + 4 * b + 2 * nb, 2)}, v{T0}, {S(S_X)}, {"0" if b == 0 else "s87"} offen offset:{32 * nb}')
    a(f'v_lshlrev_b32 v6, 4, v{V_LANE}')
    a(f'buffer_load_dwordx4 {vr(T0 + 3, 4)}, v6, {S(S_WR)}, 0 offen\nbuffer_load_dwordx4 {vr(T0 + 7, 4)}, v6, {S(S_WR)}, 0 offen offset:1024')
    a('v_lshrrev_b32 v6, 1, v2\nv_lshlrev_b32 v6, 4, v6\nv_and_b32 v7, 1, v2\nv_lshl_add_u32 v6, v7, 2, v6')
    a('v_lshrrev_b32 v8, 2, v4\nv_add_u32 v6, v6, v8\nv_lshlrev_b32 v6, 7, v6')
    a('v_and_b32 v8, 3, v4\nv_lshl_add_u32 v6, v8, 3, v6')
    a(f's_cmp_eq_u32 s{sKH}, 0\ns_cselect_b32 s87, {L_WO0}, {L_WO1}\nv_add_u32 v6, s87, v6')
    a('v_bfe_u32 v8, v4, 3, 1\nv_lshl_add_u32 v8, v7, 1, v8')
    a(f's_lshl_b32 s87, s{sKH}, 1\nv_xor_b32 v8, s87, v8')
    for n in range(4):
        a(f'v_xor_b32 v9, {n}, v8\nv_lshl_add_u32 v{VWO + n}, v9, 5, v6')
    for i in range(0, 32, 2):
        a(f'v_mov_b64 v[{AC + i}:{AC + i + 1}], 0')
    a('s_waitcnt vmcnt(0)')
    ta, tb_ = T0 + 11, T0 + 12
    for d in range(8):
        a(f'v_lshlrev_b32 v{ta}, 16, v{T0 + 3 + d}\nv_and_b32 v{tb_}, 0xffff0000, v{T0 + 3 + d}')
        if d == 0:
            a(f'v_add_f32 v{SW}, v{ta}, v{tb_}')
        else:
            a(f'v_add_f32 v{ta}, v{ta}, v{tb_}\nv_add_f32 v{SW}, v{SW}, v{ta}')
    wave_sum(a, SW, ta)
    for nb in range(2):
        for d in range(2):
            a(f'v_lshlrev_b32 v{WRF + 4 * nb + 2 * d}, 16, v{WRP + 2 * nb + d}\nv_and_b32 v{WRF + 4 * nb + 2 * d + 1}, 0xffff0000, v{WRP + 2 * nb + d}')
    a(f's_lshl_b32 s86, s{sRB2}, 2\ns_add_u32 s86, s86, s{sTB}\ns_lshl_b32 s86, s86, 7\ns_lshl_b32 s87, s{sKH}, 6\ns_add_u32 s86, s86, s87\ns_add_u32 s86, s86, {WS_OFLAG}')
    a(f'v_and_b32 v6, 15, v{V_LANE}\nv_lshl_add_u32 v6, v6, 2, s86\ns_mov_b32 s90, 0')
    lp, lok = a.newlabel('opoll'), a.newlabel('ook')
    a.label(lp)
    a(f'buffer_load_dword v7, v6, {S(S_WS)}, 0 offen sc1\ns_waitcnt vmcnt(0)')
    a(f'v_cmp_ne_u32 vcc, s{sNONCE}, v7\ns_cbranch_vccz {lok}')
    a(f's_add_u32 s90, s90, 1\ns_cmp_gt_u32 s90, {K.SPIN}\ns_cbranch_scc1 {lok}\ns_sleep 1\ns_branch {lp}')
    a.label(lok)
    stamp(K, 16)
    a(f's_lshl_b32 s86, s{sRB2}, 3\ns_lshl_b32 s87, s{sTB}, 1\ns_add_u32 s86, s86, s87\ns_lshl_b32 s86, s86, 5\ns_lshl_b32 s87, s{sKH}, 4\ns_add_u32 s86, s86, s87\ns_lshl_b32 s86, s86, 10\ns_add_u32 s86, s86, {WS_O}')
    a(f'v_lshl_add_u32 v6, v{V_LANE}, 4, s86\nv_add_u32 v7, 32768, v6')
    for hh in range(16):
        if hh % 4 == 0:
            a(f's_mov_b32 s87, {hh * 1024}')
        for b in range(2):
            a(f'buffer_load_dwordx4 {vr(OF + 8 * hh + 4 * b, 4)}, v{6 + b}, {S(S_WS)}, s87 offen offset:{(hh % 4) * 1024} sc1')
    a('s_waitcnt vmcnt(32)')
    a('s_barrier')

    def wreads(Sset, hh):
        r = []
        for n in range(4):
            for rd in range(2):
                r.append(f'ds_read_b64_tr_b16 {vr(Sset + 4 * n + 2 * rd, 2)}, v{VWO + n} offset:{hh * 4096 + rd * 1024}')
        return r
    for x in wreads(WFA, 0):
        a(x)
    for hh in range(16):
        cur, nxt = (WFA, WFB) if hh % 2 == 0 else (WFB, WFA)
        r = wreads(nxt, hh + 1) if hh < 15 else []
        a(f's_waitcnt vmcnt({30 - 2 * hh}) lgkmcnt(0)')
        k = 0
        for n in range(4):
            for b in range(2):
                c = vr(AC + 8 * n + 4 * b, 4)
                a(f'{MF16} {c}, {vr(cur + 4 * n, 4)}, {vr(OF + 8 * hh + 4 * b, 4)}, {c}')
                if k < len(r):
                    a(r[k])
                k += 1
    stamp(K, 17)
    a(f's_lshl_b32 s86, s{sTB}, 13\ns_lshl_b32 s87, s{sKH}, 12\ns_add_u32 s88, s86, s87\ns_add_u32 s88, s88, {L_EX}')
    a(f's_xor_b32 s87, s87, 4096\ns_add_u32 s86, s86, s87\ns_add_u32 s86, s86, {L_EX}')
    a(f'v_lshl_add_u32 v6, v{V_LANE}, 4, s86\nv_lshl_add_u32 v7, v{V_LANE}, 4, s88')
    for n in range(2):
        for b in range(2):
            a(f'ds_write_b128 v6, {vr(AC + 8 * (2 + n) + 4 * b, 4)} offset:{(2 * n + b) * 1024}')
    a('s_waitcnt lgkmcnt(0)\ns_barrier')
    for n in range(2):
        for b in range(2):
            a(f'ds_read_b128 {vr(OF + 4 * (2 * n + b), 4)}, v7 offset:{(2 * n + b) * 1024}')
    a('s_waitcnt lgkmcnt(0)')
    for n in range(2):
        for b in range(2):
            c, e = AC + 8 * n + 4 * b, OF + 4 * (2 * n + b)
            for h in range(2):
                a(f'v_pk_add_f32 v[{c + 2 * h}:{c + 2 * h + 1}], v[{c + 2 * h}:{c + 2 * h + 1}], v[{e + 2 * h}:{e + 2 * h + 1}]')
    U = OF + 16
    for b in range(2):
        for n in range(2):
            c = AC + 8 * n + 4 * b
            for h in range(2):
                idx = (b * 2 + n) * 2 + h
                a(f'v_cvt_pk_bf16_f32 v{HP + idx}, v{c + 2 * h}, v{c + 2 * h + 1}')
    for b in range(2):
        for n in range(2):
            for h in range(2):
                idx = (b * 2 + n) * 2 + h
                x = XR + 4 * b + 2 * n + h
                a(f'v_lshlrev_b32 v{U + 2 * idx}, 16, v{HP + idx}\nv_and_b32 v{U + 2 * idx + 1}, 0xffff0000, v{HP + idx}')
                a(f'v_lshlrev_b32 v{U + 16 + 2 * idx}, 16, v{x}\nv_and_b32 v{U + 16 + 2 * idx + 1}, 0xffff0000, v{x}')
    for idx in range(8):
        a(f'v_pk_add_f32 v[{U + 2 * idx}:{U + 2 * idx + 1}], v[{U + 2 * idx}:{U + 2 * idx + 1}], v[{U + 16 + 2 * idx}:{U + 16 + 2 * idx + 1}]')
    for idx in range(8):
        a(f'v_cvt_pk_bf16_f32 v{HP + idx}, v{U + 2 * idx}, v{U + 2 * idx + 1}')
    for idx in range(8):
        a(f'v_lshlrev_b32 v{HF + 2 * idx}, 16, v{HP + idx}\nv_and_b32 v{HF + 2 * idx + 1}, 0xffff0000, v{HP + idx}')
    for b in range(2):
        p = lambda j: f'v[{HF + 8 * b + 2 * j}:{HF + 8 * b + 2 * j + 1}]'
        w = lambda j: f'v[{WRF + 2 * j}:{WRF + 2 * j + 1}]'
        t = U + 6 * b
        a(f'v_pk_add_f32 v[{t}:{t + 1}], {p(0)}, {p(1)}')
        a(f'v_pk_mul_f32 v[{t + 2}:{t + 3}], {p(0)}, {p(0)}')
        a(f'v_pk_mul_f32 v[{t + 4}:{t + 5}], {p(0)}, {w(0)}')
        a(f'v_pk_fma_f32 v[{t + 2}:{t + 3}], {p(1)}, {p(1)}, v[{t + 2}:{t + 3}]')
        a(f'v_pk_fma_f32 v[{t + 4}:{t + 5}], {p(1)}, {w(1)}, v[{t + 4}:{t + 5}]')
        for j in (2, 3):
            a(f'v_pk_add_f32 v[{t}:{t + 1}], v[{t}:{t + 1}], {p(j)}')
            a(f'v_pk_fma_f32 v[{t + 2}:{t + 3}], {p(j)}, {p(j)}, v[{t + 2}:{t + 3}]')
            a(f'v_pk_fma_f32 v[{t + 4}:{t + 5}], {p(j)}, {w(j)}, v[{t + 4}:{t + 5}]')
    for b in range(2):
        t = U + 6 * b
        for k in range(3):
            a(f'v_add_f32 v{ST + 4 * b + k}, v{t + 2 * k}, v{t + 2 * k + 1}')
    for fn in (xor16_add, xor32_add):
        for b in range(2):
            for k in range(3):
                fn(a, ST + 4 * b + k, U + 16 + 3 * b + k)
    a(f'v_bfe_u32 v6, v{V_LANE}, 4, 1\nv_cmp_eq_u32 vcc, 0, v6')
    for k in range(3):
        a(f'v_cndmask_b32 v{U + k}, v{ST + 4 + k}, v{ST + k}, vcc')
    a(f'v_mov_b32 v{U + 3}, s{sNONCE}')
    a(f's_lshl_b32 s86, s{sTB}, 10\ns_lshl_b32 s87, s{sKH}, 9\ns_add_u32 s88, s86, s87\ns_add_u32 s88, s88, {L_STA}')
    a(f'v_and_b32 v6, 31, v{V_LANE}\nv_lshl_add_u32 v7, v6, 4, s88')
    a(f'ds_write_b128 v7, {vr(U, 4)}')
    a('s_waitcnt lgkmcnt(0)\ns_barrier')
    lab = a.newlabel('nopub')
    a(f's_cmp_lg_u32 s{sKH}, 0\ns_cbranch_scc1 {lab}')
    a(f'ds_read_b128 {vr(U + 4, 4)}, v7 offset:512')
    a(f's_lshl_b32 s86, s{sRB2}, 4\ns_add_u32 s86, s86, s{sCB}\ns_lshl_b32 s86, s86, 7\ns_lshl_b32 s87, s{sTB}, 5\ns_add_u32 s86, s86, s87\ns_lshl_b32 s86, s86, 4\ns_add_u32 s86, s86, {WS_ST2}')
    a('v_lshl_add_u32 v6, v6, 4, s86')
    a('s_waitcnt lgkmcnt(0)')
    for k in range(3):
        a(f'v_add_f32 v{U + k}, v{U + k}, v{U + 4 + k}')
    a(f'v_cmp_gt_u32 vcc, 32, v{V_LANE}\ns_and_saveexec_b64 s[96:97], vcc')
    a(f'buffer_store_dwordx4 {vr(U, 4)}, v6, {S(S_WS)}, 0 offen sc1\ns_mov_b64 exec, s[96:97]')
    a.label(lab)
    stamp(K, 18)
    lg, lgj = a.newlabel('gather'), a.newlabel('gatherj')
    a(f's_cmp_eq_u32 s{sKH}, 0\ns_cbranch_scc1 {lg}')
    K.hook('ffn_dma')
    a(f's_branch {lgj}')
    a.label(lg)
    a(f's_lshl_b32 s86, s{sRB2}, 4\ns_lshl_b32 s86, s86, 7\ns_lshl_b32 s87, s{sTB}, 5\ns_add_u32 s86, s86, s87\ns_lshl_b32 s86, s86, 4\ns_add_u32 s86, s86, {WS_ST2}')
    a(f'v_lshrrev_b32 v6, 5, v{V_LANE}\nv_lshlrev_b32 v6, 11, v6\nv_and_b32 v7, 31, v{V_LANE}\nv_lshl_add_u32 v6, v7, 4, v6\nv_add_u32 v6, s86, v6')
    a('s_mov_b32 s90, 0')
    lp, lok = a.newlabel('s2poll'), a.newlabel('s2ok')
    a.label(lp)
    for i in range(8):
        a(f's_mov_b32 s87, {i * 4096}\nbuffer_load_dwordx4 {vr(U + 4 * i, 4)}, v6, {S(S_WS)}, s87 offen sc1')
    a('s_waitcnt vmcnt(0)')
    a(f'v_cmp_ne_u32 vcc, s{sNONCE}, v{U + 3}')
    for i in range(1, 8):
        a(f'v_cmp_ne_u32 s[88:89], s{sNONCE}, v{U + 4 * i + 3}\ns_or_b64 vcc, vcc, s[88:89]')
    a(f's_cbranch_vccz {lok}')
    a(f's_add_u32 s90, s90, 1\ns_cmp_gt_u32 s90, {K.SPIN}\ns_cbranch_scc1 {lok}\ns_sleep 1\ns_branch {lp}')
    a.label(lok)
    for st in (4, 2, 1):
        for i in range(st):
            for k in range(3):
                a(f'v_add_f32 v{U + 4 * i + k}, v{U + 4 * i + k}, v{U + 4 * (i + st) + k}')
    for k in range(3):
        xor32_add(a, U + k, U + 4 + k)
    a(f's_lshl_b32 s86, s{sTB}, 9\ns_add_u32 s88, s86, {L_ST2}')
    a(f'v_lshl_add_u32 v7, v7, 4, s88')
    a(f'ds_write_b128 v7, {vr(U, 4)}')
    a('s_waitcnt lgkmcnt(0)')
    a.label(lgj)
    a('s_barrier')
    a(f's_lshl_b32 s86, s{sTB}, 9\ns_add_u32 s86, s86, {L_ST2}\nv_and_b32 v6, 15, v{V_LANE}\nv_lshl_add_u32 v6, v6, 4, s86')
    for b in range(2):
        a(f'ds_read_b128 {vr(ST + 4 * b, 4)}, v6 offset:{256 * b}')
    a('s_waitcnt lgkmcnt(0)')
    stamp(K, 19)
    a(f's_mov_b32 s88, {f32hex(1.0 / 1024)}\ns_mov_b32 s89, {f32hex(1e-5)}')
    for b in range(2):
        m, v, r = ST + 4 * b, ST + 4 * b + 1, ST + 4 * b + 2
        a(f'v_mul_f32 v{m}, s88, v{m}\nv_mul_f32 v{v}, s88, v{v}')
    for b in range(2):
        m, v = ST + 4 * b, ST + 4 * b + 1
        a(f'v_fma_f32 v{v}, -v{m}, v{m}, v{v}\nv_max_f32 v{v}, 0, v{v}')
    for b in range(2):
        round_bf16(a, ST + 4 * b + 1, U + b)
        round_bf16(a, ST + 4 * b, U + 2 + b)
    for b in range(2):
        a(f'v_add_f32 v{ST + 4 * b + 1}, s89, v{ST + 4 * b + 1}')
    for b in range(2):
        round_bf16(a, ST + 4 * b + 1, U + b)
    for b in range(2):
        a(f'v_sqrt_f32 v{ST + 4 * b + 1}, v{ST + 4 * b + 1}')
    for b in range(2):
        round_bf16(a, ST + 4 * b + 1, U + b)
    for b in range(2):
        a(f'v_rcp_f32 v{ST + 4 * b + 1}, v{ST + 4 * b + 1}')
    for b in range(2):
        m, v, r = ST + 4 * b, ST + 4 * b + 1, ST + 4 * b + 2
        a(f'v_fma_f32 v{r}, -v{m}, v{SW}, v{r}')
    for b in range(2):
        a(f'v_mul_f32 v{ST + 4 * b + 2}, v{ST + 4 * b + 2}, v{ST + 4 * b + 1}')
    a(f'v_bfe_u32 v6, v{V_LANE}, 4, 1\nv_cmp_eq_u32 vcc, 0, v6')
    a(f'v_cndmask_b32 v{U}, v{ST + 6}, v{ST + 2}, vcc')
    a(f's_lshl_b32 s86, s{sTB}, 7\ns_add_u32 s86, s86, {L_RR}\nv_and_b32 v6, 31, v{V_LANE}\nv_lshl_add_u32 v6, v6, 2, s86')
    a(f'ds_write_b32 v6, v{U}')
    for b in range(2):
        mp = f'v[{ST + 4 * b}:{ST + 4 * b + 1}]'
        for j in range(4):
            i = 4 * b + j
            a(f'v_pk_add_f32 v[{U + 2 * i}:{U + 2 * i + 1}], v[{HF + 2 * i}:{HF + 2 * i + 1}], {mp} op_sel_hi:[1,0] neg_lo:[0,1] neg_hi:[0,1]')
    for i in range(8):
        a(f'v_cvt_pk_bf16_f32 v{XNP + i}, v{U + 2 * i}, v{U + 2 * i + 1}')
    for i in range(8):
        a(f'v_lshlrev_b32 v{U + 2 * i}, 16, v{XNP + i}\nv_and_b32 v{U + 2 * i + 1}, 0xffff0000, v{XNP + i}')
    for b in range(2):
        mp = f'v[{ST + 4 * b}:{ST + 4 * b + 1}]'
        for j in range(4):
            i = 4 * b + j
            a(f'v_pk_mul_f32 v[{U + 2 * i}:{U + 2 * i + 1}], v[{U + 2 * i}:{U + 2 * i + 1}], {mp} op_sel:[0,1] op_sel_hi:[1,1]')
    for i in range(8):
        a(f'v_cvt_pk_bf16_f32 v{XNP + i}, v{U + 2 * i}, v{U + 2 * i + 1}')
    for i in range(8):
        a(f'v_lshlrev_b32 v{U + 2 * i}, 16, v{XNP + i}\nv_and_b32 v{U + 2 * i + 1}, 0xffff0000, v{XNP + i}')
    for i in range(8):
        a(f'v_pk_add_f32 v[{U + 2 * i}:{U + 2 * i + 1}], v[{U + 2 * i}:{U + 2 * i + 1}], v[{HF + 2 * i}:{HF + 2 * i + 1}]')
    for i in range(8):
        a(f'v_cvt_pk_bf16_f32 v{OUTP + i}, v{U + 2 * i}, v{U + 2 * i + 1}')
    a('s_waitcnt lgkmcnt(0)\ns_barrier')
    a(f'v_lshlrev_b32 v6, 2, v{V_LANE}\nv_add_u32 v6, {L_RR}, v6')
    a(f'ds_read_b32 v{U}, v6\nds_read_b32 v{U + 1}, v6 offset:256')
    for b in range(2):
        for h in range(2):
            a(f'v_permlane16_swap_b32 v{OUTP + 4 * b + h}, v{OUTP + 4 * b + 2 + h}')
    a(f'v_lshrrev_b32 v2, 4, v{V_LANE}\nv_and_b32 v4, 15, v{V_LANE}')
    a('v_and_b32 v7, 1, v2\nv_lshlrev_b32 v7, 5, v7\nv_lshrrev_b32 v8, 1, v2\nv_lshl_add_u32 v7, v8, 4, v7')
    a(f's_lshl_b32 s86, s{sCB}, 7\ns_lshl_b32 s87, s{sKH}, 6\ns_add_u32 s86, s86, s87\nv_add_u32 v7, s86, v7')
    a(f's_lshl_b32 s87, s{sRB2}, 7\ns_lshl_b32 s88, s{sTB}, 5\ns_add_u32 s87, s87, s88\nv_add_u32 v8, s87, v4\nv_lshl_add_u32 v7, v8, 11, v7')
    a(f'buffer_store_dwordx4 {vr(OUTP, 4)}, v7, {S(S_OUT)}, 0 offen sc1')
    a(f's_mov_b32 s87, 32768\nbuffer_store_dwordx4 {vr(OUTP + 4, 4)}, v7, {S(S_OUT)}, s87 offen sc1')
    stamp(K, 20)
    candidates(K, stamp, U)


def wave_max_u32(a, v, t):
    for ctl in ('quad_perm:[1,0,3,2]', 'quad_perm:[2,3,0,1]', 'row_half_mirror', 'row_mirror'):
        a(f'v_max_u32_dpp v{v}, v{v}, v{v} {ctl} row_mask:0xf bank_mask:0xf')
    xor16_op(a, 'v_max_u32', v, t)
    xor32_op(a, 'v_max_u32', v, t)


def sortable(a, dst, src, t):
    a(f'v_ashrrev_i32 v{t}, 31, v{src}\nv_or_b32 v{t}, 0x80000000, v{t}\nv_xor_b32 v{dst}, v{src}, v{t}')


sI1, sI2 = 82, 83


def candidates(K, stamp, U):
    a = K.a
    R0, R1, K0, K1, HI, LO, M1, TT = U, U + 1, U + 2, U + 3, U + 4, U + 5, U + 6, U + 7
    a('s_waitcnt lgkmcnt(0)')
    sortable(a, K0, R0, TT)
    sortable(a, K1, R1, TT)
    a(f'v_sub_u32 v{TT}, 127, v{V_LANE}\ns_movk_i32 s88, 0xff80')
    a(f'v_and_or_b32 v{K0}, v{K0}, s88, v{TT}\nv_subrev_u32 v{TT}, 64, v{TT}\nv_and_or_b32 v{K1}, v{K1}, s88, v{TT}')
    a(f'v_max_u32 v{HI}, v{K0}, v{K1}\nv_min_u32 v{LO}, v{K0}, v{K1}\nv_mov_b32 v{M1}, v{HI}')
    wave_max_u32(a, M1, TT)
    a(f'v_cmp_eq_u32 vcc, v{M1}, v{HI}')
    a(f'v_cndmask_b32 v{HI}, v{HI}, v{LO}, vcc')
    wave_max_u32(a, HI, TT)
    a(f'v_readfirstlane_b32 s{sI1}, v{M1}\nv_readfirstlane_b32 s{sI2}, v{HI}')
    a(f's_and_b32 s{sI1}, s{sI1}, 127\ns_sub_u32 s{sI1}, 127, s{sI1}\ns_and_b32 s{sI2}, s{sI2}, 127\ns_sub_u32 s{sI2}, 127, s{sI2}')
    lab = a.newlabel('nocand')
    a(f's_cmp_lg_u32 s{sCB}, 0\ns_cbranch_scc1 {lab}\ns_cmp_lg_u32 s{sW}, 0\ns_cbranch_scc1 {lab}')
    a(f's_lshl_b32 s86, s{sI1}, 2\ns_add_u32 s86, s86, {L_RR}\nv_mov_b32 v6, s86\nds_read_b32 v{U + 8}, v6')
    a(f's_lshl_b32 s86, s{sI2}, 2\ns_add_u32 s86, s86, {L_RR}\nv_mov_b32 v7, s86\nds_read_b32 v{U + 9}, v7')
    a(f's_lshl_b32 s86, s{sRB2}, 7\ns_add_u32 s87, s86, s{sI1}\ns_add_u32 s88, s86, s{sI2}\ns_lshl_b32 s88, s88, 16\ns_or_b32 s87, s87, s88')
    a(f'v_mov_b32 v{U + 10}, s87\nv_mov_b32 v{U + 11}, s{sNONCE}')
    a(f's_lshl_b32 s86, s{sRB2}, 6\ns_add_u32 s86, s86, {WS_CAND}\nv_mov_b32 v6, s86')
    a(f's_waitcnt lgkmcnt(0)\nv_cmp_eq_u32 vcc, 0, v{V_LANE}\ns_and_saveexec_b64 s[96:97], vcc')
    a(f'buffer_store_dwordx4 {vr(U + 8, 4)}, v6, {S(S_WS)}, 0 offen sc1\ns_mov_b64 exec, s[96:97]')
    a.label(lab)
    a(f'v_lshrrev_b32 v2, 4, v{V_LANE}\nv_and_b32 v4, 15, v{V_LANE}')
    G = U + 12
    a('s_mov_b32 s88, 0x05040100\ns_mov_b32 s89, 0x07060302')
    for slot, sI in ((0, sI1), (1, sI2)):
        lskip, lb1, lst = a.newlabel('crskip'), a.newlabel('crb1'), a.newlabel('crst')
        a(f's_lshr_b32 s86, s{sI}, 5\ns_cmp_lg_u32 s86, s{sTB}\ns_cbranch_scc1 {lskip}')
        a(f's_bitcmp1_b32 s{sI}, 4\ns_cbranch_scc1 {lb1}')
        for b in range(2):
            if b == 1:
                a.label(lb1)
            for j in range(4):
                hp, xp = HP + 4 * b + j, XNP + 4 * b + j
                a(f'v_perm_b32 v{G + 4 * j}, v{xp}, v{hp}, s88\nv_perm_b32 v{G + 4 * j + 2}, v{xp}, v{hp}, s89')
                a(f'v_mov_b32 v{G + 4 * j + 1}, s{sNONCE}\nv_mov_b32 v{G + 4 * j + 3}, s{sNONCE}')
            if b == 0:
                a(f's_branch {lst}')
        a.label(lst)
        a(f's_lshl_b32 s86, s{sRB2}, 1\ns_add_u32 s86, s86, {slot}\ns_lshl_b32 s86, s86, 10\ns_lshl_b32 s87, s{sCB}, 6\ns_add_u32 s86, s86, s87\ns_lshl_b32 s87, s{sKH}, 5\ns_add_u32 s86, s86, s87\ns_lshl_b32 s86, s86, 3\ns_add_u32 s86, s86, {WS_CROW}')
        a(f'v_lshl_add_u32 v6, v2, 5, s86')
        a(f's_and_b32 s87, s{sI}, 15\nv_cmp_eq_u32 vcc, s87, v4\ns_and_saveexec_b64 s[96:97], vcc')
        for j in range(4):
            a(f'buffer_store_dwordx4 {vr(G + 4 * j, 4)}, v6, {S(S_WS)}, 0 offen offset:{(j >> 1) * 128 + (j & 1) * 16} sc1')
        a('s_mov_b64 exec, s[96:97]')
        a.label(lskip)
    stamp(K, 21)
```

```python
from common import *
import phase3

MF16 = 'v_mfma_f32_16x16x32_bf16'
MF32 = 'v_mfma_f32_32x32x16_bf16'
V_LANE = 1
L_G, L_U, L_D = 65536, 98304, 131072
L_XR = 16384
L_SEL = 12288
L_PA = 20480
L_GU = 22528
L_RED = 24576
NF = 224
LOG2E = 1.4426950408889634


def ffn_dma(K):
    a = K.a
    lab = a.newlabel('noffn')
    a(f's_cmp_ge_u32 s{sB}, {NF}\ns_cbranch_scc1 {lab}')
    a(f's_sub_u32 s86, s{sW}, 4')
    a(f'v_lshrrev_b32 v6, 1, v{V_LANE}\ns_lshl_b32 s87, s86, 8\nv_add_u32 v6, s87, v6\ns_mov_b32 s87, 7168\nv_mul_lo_u32 v6, v6, s87')
    a(f'v_and_b32 v7, 1, v{V_LANE}\nv_lshl_add_u32 v6, v7, 4, v6\ns_lshl_b32 s87, s{sB}, 5\nv_add_u32 v6, s87, v6')
    for base, sd in ((L_G, S_WG), (L_U, S_WU)):
        a(f's_lshl_b32 s87, s86, 13\ns_add_u32 m0, s87, {base}')
        for i in range(8):
            if i:
                a('s_add_u32 m0, m0, 0x400')
            a(f's_mov_b32 s88, {i * 32 * 7168}\nbuffer_load_dwordx4 v6, {S(sd)}, s88 offen lds')
    a(f's_lshl_b32 s87, s{sB}, 4\ns_lshl_b32 s88, s86, 2\ns_add_u32 s87, s87, s88\ns_lshl_b32 s87, s87, 11')
    a(f'v_lshl_add_u32 v6, v{V_LANE}, 4, s87')
    a(f's_lshl_b32 s87, s86, 13\ns_add_u32 m0, s87, {L_D}')
    for i in range(8):
        if i:
            a('s_add_u32 m0, m0, 0x400')
        a(f's_mov_b32 s88, {i * 1024}\nbuffer_load_dwordx4 v6, {S(S_WD)}, s88 offen lds')
    a.label(lab)


def sigmoid(a, v, t):
    a(f'v_mul_f32 v{t}, {f32hex(-LOG2E)}, v{v}\nv_exp_f32 v{t}, v{t}\nv_add_f32 v{t}, 1.0, v{t}\nv_rcp_f32 v{v}, v{t}')


def out_flag(K):
    a = K.a
    a(f's_lshl_b32 s86, s{sRB2}, 4\ns_add_u32 s86, s86, s{sCB}\ns_lshl_b32 s86, s86, 3\ns_add_u32 s86, s86, s{sW}\ns_lshl_b32 s86, s86, 2\ns_add_u32 s86, s86, {WS_OUTFLAG}')
    a(f'v_mov_b32 v6, s86\nv_mov_b32 v7, s{sNONCE}')
    a(f'v_cmp_eq_u32 vcc, 0, v{V_LANE}\ns_and_saveexec_b64 s[96:97], vcc')
    a(f'buffer_store_dword v7, v6, {S(S_WS)}, 0 offen sc1\ns_mov_b64 exec, s[96:97]')


def tail(K, stamp):
    a = K.a
    U = 136
    lffn = a.newlabel('ffnwg')
    a(f's_cmp_lt_u32 s{sB}, {NF}\ns_cbranch_scc1 {lffn}')
    a('s_waitcnt vmcnt(0)')
    out_flag(K)
    a('s_branch L_fin')
    a.label(lffn)
    lw = a.newlabel('selj')
    a(f's_cmp_lg_u32 s{sW}, 0\ns_cbranch_scc1 {lw}')
    a(f'v_and_b32 v6, 15, v{V_LANE}\nv_lshlrev_b32 v6, 6, v6\nv_add_u32 v6, {WS_CAND}, v6\ns_mov_b32 s90, 0')
    lp, lok = a.newlabel('cpoll'), a.newlabel('cok')
    a.label(lp)
    a(f'buffer_load_dwordx4 {vr(U, 4)}, v6, {S(S_WS)}, 0 offen sc1\ns_waitcnt vmcnt(0)')
    a(f'v_cmp_ne_u32 vcc, s{sNONCE}, v{U + 3}\ns_cbranch_vccz {lok}')
    a(f's_add_u32 s90, s90, 1\ns_cmp_gt_u32 s90, {K.SPIN}\ns_cbranch_scc1 {lok}\ns_sleep 1\ns_branch {lp}')
    a.label(lok)
    stamp(K, 22)
    K0, K1, HI, LO, M1, TT = U + 4, U + 5, U + 6, U + 7, U + 8, U + 9
    phase3.sortable(a, K0, U, TT)
    phase3.sortable(a, K1, U + 1, TT)
    a(f's_movk_i32 s88, 0xf800\ns_movk_i32 s89, 0x7ff')
    a(f'v_and_b32 v{TT}, 0xffff, v{U + 2}\nv_sub_u32 v{TT}, s89, v{TT}\nv_and_or_b32 v{K0}, v{K0}, s88, v{TT}')
    a(f'v_lshrrev_b32 v{TT}, 16, v{U + 2}\nv_sub_u32 v{TT}, s89, v{TT}\nv_and_or_b32 v{K1}, v{K1}, s88, v{TT}')
    a(f'v_max_u32 v{HI}, v{K0}, v{K1}\nv_min_u32 v{LO}, v{K0}, v{K1}\nv_mov_b32 v{M1}, v{HI}')
    for ctl in ('quad_perm:[1,0,3,2]', 'quad_perm:[2,3,0,1]', 'row_half_mirror', 'row_mirror'):
        a(f'v_max_u32_dpp v{M1}, v{M1}, v{M1} {ctl} row_mask:0xf bank_mask:0xf')
    a(f'v_cmp_eq_u32 vcc, v{M1}, v{HI}')
    a(f'v_cndmask_b32 v{HI}, v{HI}, v{LO}, vcc')
    for ctl in ('quad_perm:[1,0,3,2]', 'quad_perm:[2,3,0,1]', 'row_half_mirror', 'row_mirror'):
        a(f'v_max_u32_dpp v{HI}, v{HI}, v{HI} {ctl} row_mask:0xf bank_mask:0xf')
    sT = (86, 87)
    a(f'v_readfirstlane_b32 s86, v{M1}\nv_readfirstlane_b32 s87, v{HI}')
    a('s_and_b32 s86, s86, 0x7ff\ns_sub_u32 s86, 0x7ff, s86\ns_and_b32 s87, s87, 0x7ff\ns_sub_u32 s87, 0x7ff, s87')
    for t in range(2):
        st, sl, sr_ = 86 + t, 91 + t, 93 + t
        a(f's_lshr_b32 s88, s{st}, 7')
        a(f'v_readlane_b32 s89, v{U + 2}, s88\nv_readlane_b32 s{sr_}, v{U}, s88\nv_readlane_b32 s95, v{U + 1}, s88')
        a(f's_and_b32 s89, s89, 0xffff\ns_cmp_eq_u32 s89, s{st}\ns_cselect_b32 s{sl}, 0, 1\ns_cselect_b32 s{sr_}, s{sr_}, s95')
        a(f's_lshl_b32 s88, s88, 1\ns_add_u32 s{sl}, s{sl}, s88')
    a(f'v_mov_b32 v{U + 10}, s86\nv_mov_b32 v{U + 11}, s87\nv_mov_b32 v{U + 12}, s93\nv_mov_b32 v{U + 13}, s94')
    a(f'v_mov_b32 v{U + 14}, s91\nv_mov_b32 v{U + 15}, s92\nv_mov_b32 v6, {L_SEL}')
    a(f'ds_write_b128 v6, {vr(U + 10, 4)}\nds_write_b64 v6, {vr(U + 14, 2)} offset:16')
    lab = a.newlabel('nononce')
    a(f's_cmp_lg_u32 s{sB}, 0\ns_cbranch_scc1 {lab}')
    a(f'v_mov_b32 v6, {WS_NONCE}\nv_mov_b32 v7, s{sNONCE}\nv_cmp_eq_u32 vcc, 0, v{V_LANE}\ns_and_saveexec_b64 s[96:97], vcc')
    a(f'buffer_store_dword v7, v6, {S(S_WS)}, 0 offen sc1\ns_mov_b64 exec, s[96:97]')
    a.label(lab)
    R = U + 16
    a(f's_lshl_b32 s91, s91, 13\ns_lshl_b32 s92, s92, 13\ns_add_u32 s91, s91, {WS_CROW}\ns_add_u32 s92, s92, {WS_CROW}')
    a(f'v_lshl_add_u32 v6, v{V_LANE}, 4, s91\nv_lshl_add_u32 v7, v{V_LANE}, 4, s92\ns_mov_b32 s90, 0')
    lp, lok = a.newlabel('rpoll'), a.newlabel('rok')
    a.label(lp)
    for t in range(2):
        for i in range(8):
            if i % 4 == 0:
                a(f's_mov_b32 s88, {i * 1024}')
            a(f'buffer_load_dwordx4 {vr(R + 4 * (8 * t + i), 4)}, v{6 + t}, {S(S_WS)}, s88 offen offset:{(i % 4) * 1024} sc1')
    a('s_waitcnt vmcnt(0)')
    a(f'v_cmp_ne_u32 vcc, s{sNONCE}, v{R + 1}')
    for n in range(16):
        for o in (1, 3):
            if n or o != 1:
                a(f'v_cmp_ne_u32 s[88:89], s{sNONCE}, v{R + 4 * n + o}\ns_or_b64 vcc, vcc, s[88:89]')
    a(f's_cbranch_vccz {lok}')
    a(f's_add_u32 s90, s90, 1\ns_cmp_gt_u32 s90, {K.SPIN}\ns_cbranch_scc1 {lok}\ns_sleep 1\ns_branch {lp}')
    a.label(lok)
    a(f's_mov_b32 s88, 0x07060302\nv_lshlrev_b32 v6, 2, v{V_LANE}\nv_add_u32 v6, {L_XR}, v6')
    for n in range(16):
        a(f'v_perm_b32 v{R + 4 * n}, v{R + 4 * n + 2}, v{R + 4 * n}, s88')
    for n in range(16):
        a(f'ds_write_b32 v6, v{R + 4 * n} offset:{n * 256}')
    a.label(lw)
    stamp(K, 23)
    a('s_waitcnt vmcnt(0) lgkmcnt(0)')
    out_flag(K)
    a('s_barrier')
    stamp(K, 24)
    XF, GF, UF, DG, DU = 8, 24, 40, 56, 60
    a(f'v_lshrrev_b32 v2, 4, v{V_LANE}\nv_and_b32 v4, 15, v{V_LANE}')
    a(f's_lshl_b32 s86, s{sW}, 8\ns_add_u32 s86, s86, {L_XR}')
    a('v_and_b32 v6, 1, v4\nv_lshlrev_b32 v6, 11, v6\nv_lshl_add_u32 v6, v2, 4, v6\nv_add_u32 v6, s86, v6')
    for st in range(4):
        a(f'ds_read_b128 {vr(XF + 4 * st, 4)}, v6 offset:{st * 64}')
    a(f's_lshl_b32 s86, s{sW}, 12\ns_add_u32 s86, s86, {L_G}')
    a('v_lshrrev_b32 v7, 2, v4\nv_lshl_add_u32 v7, v2, 3, v7\nv_lshlrev_b32 v7, 5, v7\nv_and_b32 v5, 3, v4\nv_lshl_add_u32 v7, v5, 3, v7\nv_add_u32 v7, s86, v7')
    for st in range(4):
        for rd in range(2):
            a(f'ds_read_b64_tr_b16 {vr(GF + 4 * st + 2 * rd, 2)}, v7 offset:{st * 1024 + rd * 128}')
            a(f'ds_read_b64_tr_b16 {vr(UF + 4 * st + 2 * rd, 2)}, v7 offset:{32768 + st * 1024 + rd * 128}')
    a('s_waitcnt lgkmcnt(0)')
    for st in range(4):
        a(f'{MF16} {vr(DG, 4)}, {vr(GF + 4 * st, 4)}, {vr(XF + 4 * st, 4)}, {"0" if st == 0 else vr(DG, 4)}')
        a(f'{MF16} {vr(DU, 4)}, {vr(UF + 4 * st, 4)}, {vr(XF + 4 * st, 4)}, {"0" if st == 0 else vr(DU, 4)}')
    a(f's_lshl_b32 s86, s{sW}, 8\ns_add_u32 s86, s86, {L_PA}')
    a('v_lshl_add_u32 v6, v2, 1, v4\nv_lshl_add_u32 v6, v6, 4, s86')
    a('v_cmp_gt_u32 vcc, 2, v4\ns_and_saveexec_b64 s[96:97], vcc')
    a(f'ds_write_b128 v6, {vr(DG, 4)}\nds_write_b128 v6, {vr(DU, 4)} offset:128')
    a('s_mov_b64 exec, s[96:97]')
    a('s_waitcnt lgkmcnt(0)\ns_barrier')
    a(f'v_lshrrev_b32 v6, 5, v{V_LANE}\nv_lshlrev_b32 v6, 7, v6')
    a(f'v_bfe_u32 v7, v{V_LANE}, 4, 1\nv_lshl_add_u32 v6, v7, 4, v6')
    a('v_lshrrev_b32 v8, 2, v4\nv_lshl_add_u32 v6, v8, 5, v6\nv_and_b32 v8, 3, v4\nv_lshl_add_u32 v6, v8, 2, v6')
    a(f'v_add_u32 v6, {L_PA}, v6')
    PA = 8
    for w in range(8):
        a(f'ds_read_b32 v{PA + w}, v6 offset:{w * 256}')
    a('s_waitcnt lgkmcnt(0)')
    for st in (4, 2, 1):
        for i in range(st):
            a(f'v_add_f32 v{PA + i}, v{PA + i}, v{PA + i + st}')
    round_bf16(a, PA, PA + 1)
    a(f'v_mov_b32 v{PA + 1}, v{PA}')
    a(f'v_permlane32_swap_b32 v{PA}, v{PA + 1}')
    a(f'v_mov_b32 v{PA + 2}, v{PA}')
    sigmoid(a, PA + 2, PA + 3)
    a(f'v_mul_f32 v{PA}, v{PA}, v{PA + 2}')
    round_bf16(a, PA, PA + 3)
    a(f'v_mul_f32 v{PA}, v{PA}, v{PA + 1}')
    a(f'v_cvt_pk_bf16_f32 v{PA}, v{PA}, v{PA}')
    a(f's_lshl_b32 s86, s{sW}, 6\ns_add_u32 s86, s86, {L_GU}')
    a(f'v_and_b32 v6, 31, v{V_LANE}\nv_lshl_add_u32 v6, v6, 1, s86')
    a(f'ds_write_b16 v6, v{PA}')
    AF, BF, DD = 16, 24, 40
    a(f'v_and_b32 v6, 1, v{V_LANE}\nv_lshlrev_b32 v6, 5, v6\nv_lshrrev_b32 v7, 5, v{V_LANE}\nv_lshl_add_u32 v6, v7, 4, v6\nv_add_u32 v6, s86, v6')
    a(f's_waitcnt lgkmcnt(0)\nds_read_b128 {vr(AF, 4)}, v6')
    a(f'v_lshrrev_b32 v7, 5, v{V_LANE}\nv_lshlrev_b32 v7, 3, v7\nv_lshrrev_b32 v8, 2, v4\nv_add_u32 v7, v7, v8\nv_lshlrev_b32 v7, 11, v7')
    a(f'v_bfe_u32 v8, v{V_LANE}, 4, 1\nv_lshl_add_u32 v7, v8, 5, v7\nv_and_b32 v8, 3, v4\nv_lshl_add_u32 v7, v8, 3, v7')
    a(f's_lshl_b32 s86, s{sW}, 8\ns_add_u32 s86, s86, {L_D}\nv_add_u32 v7, s86, v7')
    for blk in range(4):
        for rd in range(2):
            a(f'ds_read_b64_tr_b16 {vr(BF + 4 * blk + 2 * rd, 2)}, v7 offset:{blk * 64 + rd * 8192}')
    a(f'v_and_b32 v8, 31, v{V_LANE}\nv_cmp_gt_u32 vcc, 2, v8\ns_waitcnt lgkmcnt(0)')
    for i in range(4):
        a(f'v_cndmask_b32 v{AF + i}, 0, v{AF + i}, vcc')
    for blk in range(4):
        a(f'{MF32} {vr(DD + 16 * blk, 16)}, {vr(AF, 4)}, {vr(BF + 4 * blk, 4)}, 0')
    a(f's_lshl_b32 s86, s{sB}, 13\ns_lshl_b32 s87, s{sW}, 9\ns_add_u32 s86, s86, s87\ns_add_u32 s86, s86, {WS_YPART}')
    a(f'v_lshl_add_u32 v6, v{V_LANE}, 2, s86\ns_mov_b32 s87, 4096')
    for t in range(2):
        for p in range(2):
            a(f'v_permlane32_swap_b32 v{DD + 32 * p + t}, v{DD + 32 * p + 16 + t}')
    for t in range(2):
        for p in range(2):
            a(f'buffer_store_dword v{DD + 32 * p + t}, v6, {S(S_WS)}, {"0" if t == 0 else "s87"} offen offset:{p * 256} sc1')
    a('s_waitcnt vmcnt(0)\ns_barrier')
    lab = a.newlabel('noyflag')
    a(f's_cmp_lg_u32 s{sW}, 0\ns_cbranch_scc1 {lab}')
    a(f's_lshl_b32 s86, s{sB}, 2\ns_add_u32 s86, s86, {WS_YFLAG}\nv_mov_b32 v6, s86\nv_mov_b32 v7, s{sNONCE}')
    a(f'v_cmp_eq_u32 vcc, 0, v{V_LANE}\ns_and_saveexec_b64 s[96:97], vcc')
    a(f'buffer_store_dword v7, v6, {S(S_WS)}, 0 offen sc1\ns_mov_b64 exec, s[96:97]')
    a.label(lab)
    stamp(K, 25)
    a(f's_cmp_ge_u32 s{sB}, 64\ns_cbranch_scc1 L_fin')
    sTK, sCH = 80, 81
    a(f's_lshr_b32 s{sTK}, s{sB}, 5\ns_and_b32 s{sCH}, s{sB}, 31')
    a(f'v_bfe_u32 v6, v{V_LANE}, 3, 2\nv_lshlrev_b32 v6, 6, v6\nv_and_b32 v7, 7, v{V_LANE}\nv_add_u32 v6, v6, v7\ns_lshl_b32 s86, s{sW}, 3\nv_add_u32 v6, s86, v6')
    a(f's_movk_i32 s87, {NF}\nv_cmp_gt_u32 s[92:93], s87, v6')
    a(f'v_lshlrev_b32 v6, 2, v6\nv_add_u32 v6, {WS_YFLAG}, v6\ns_mov_b32 s90, 0')
    lp, lok = a.newlabel('ypoll'), a.newlabel('yok')
    a.label(lp)
    a(f'buffer_load_dword v7, v6, {S(S_WS)}, 0 offen sc1\ns_waitcnt vmcnt(0)')
    a(f'v_cmp_ne_u32 vcc, s{sNONCE}, v7\ns_and_b64 vcc, vcc, s[92:93]\ns_cbranch_vccz {lok}')
    a(f's_add_u32 s90, s90, 1\ns_cmp_gt_u32 s90, {K.SPIN}\ns_cbranch_scc1 {lok}\ns_sleep 1\ns_branch {lp}')
    a.label(lok)
    stamp(K, 26)
    Y = 8
    a(f'v_lshrrev_b32 v6, 3, v{V_LANE}\ns_lshl_b32 s86, s{sW}, 3\nv_add_u32 v6, s86, v6\nv_lshlrev_b32 v6, 13, v6')
    a(f's_lshl_b32 s86, s{sTK}, 12\ns_lshl_b32 s87, s{sCH}, 7\ns_add_u32 s86, s86, s87\ns_add_u32 s86, s86, {WS_YPART}')
    a(f'v_and_b32 v7, 7, v{V_LANE}\nv_lshl_add_u32 v6, v7, 4, v6\nv_add_u32 v6, s86, v6')
    for p in range(3):
        a(f's_mov_b32 s87, {p * 64 * 8192}\nbuffer_load_dwordx4 {vr(Y + 4 * p, 4)}, v6, {S(S_WS)}, s87 offen sc1')
    a(f'v_mov_b64 v[{Y + 12}:{Y + 13}], 0\nv_mov_b64 v[{Y + 14}:{Y + 15}], 0')
    lab = a.newlabel('no4')
    a(f's_cmp_ge_u32 s{sW}, 4\ns_cbranch_scc1 {lab}')
    a(f's_mov_b32 s87, {3 * 64 * 8192}\nbuffer_load_dwordx4 {vr(Y + 12, 4)}, v6, {S(S_WS)}, s87 offen sc1')
    a.label(lab)
    a(f'v_mov_b32 v7, {L_SEL}\nds_read_b128 v[24:27], v7\nds_read_b64 v[28:29], v7 offset:16')
    a('s_waitcnt vmcnt(0) lgkmcnt(0)')
    for p in range(1, 4):
        for h in range(2):
            a(f'v_pk_add_f32 v[{Y + 2 * h}:{Y + 2 * h + 1}], v[{Y + 2 * h}:{Y + 2 * h + 1}], v[{Y + 4 * p + 2 * h}:{Y + 4 * p + 2 * h + 1}]')
    for i in range(4):
        a(f'v_add_f32_dpp v{Y + i}, v{Y + i}, v{Y + i} row_ror:8 row_mask:0xf bank_mask:0xf')
    for fn in (xor16_add, xor32_add):
        for i in range(4):
            fn(a, Y + i, Y + 8 + i)
    a(f's_lshl_b32 s86, s{sW}, 7\ns_add_u32 s86, s86, {L_RED}\nv_and_b32 v6, 7, v{V_LANE}\nv_lshl_add_u32 v6, v6, 4, s86')
    a(f'ds_write_b128 v6, {vr(Y, 4)}')
    a('s_waitcnt lgkmcnt(0)\ns_barrier')
    a(f's_cmp_lg_u32 s{sW}, 0\ns_cbranch_scc1 L_fin')
    a(f'v_and_b32 v6, 31, v{V_LANE}\nv_lshlrev_b32 v6, 2, v6\nv_add_u32 v6, {L_RED}, v6')
    for w in range(8):
        a(f'ds_read_b32 v{Y + w}, v6 offset:{w * 128}')
    a(f'v_readfirstlane_b32 s86, v24\nv_readfirstlane_b32 s87, v25\nv_readfirstlane_b32 s88, v26\nv_readfirstlane_b32 s89, v27')
    a(f'v_readfirstlane_b32 s91, v28\nv_readfirstlane_b32 s92, v29')
    a(f's_cmp_eq_u32 s{sTK}, 0\ns_cselect_b32 s86, s86, s87\ns_cselect_b32 s88, s88, s89\ns_cselect_b32 s91, s91, s92')
    a(f's_lshl_b32 s91, s91, 13\ns_lshl_b32 s87, s{sCH}, 8\ns_add_u32 s91, s91, s87\ns_add_u32 s91, s91, {WS_CROW}')
    a(f'v_and_b32 v7, 31, v{V_LANE}\nv_lshl_add_u32 v7, v7, 3, s91')
    a(f'buffer_load_dwordx2 v[30:31], v7, {S(S_WS)}, 0 offen sc1')
    a(f's_lshr_b32 s87, s86, 7\ns_lshl_b32 s87, s87, 4\ns_lshr_b32 s89, s{sCH}, 1\ns_add_u32 s87, s87, s89\ns_lshl_b32 s87, s87, 3')
    a(f's_bfe_u32 s89, s86, 0x20005\ns_add_u32 s87, s87, s89\ns_and_b32 s89, s{sCH}, 1\ns_lshl_b32 s89, s89, 2\ns_add_u32 s87, s87, s89\ns_lshl_b32 s87, s87, 2\ns_add_u32 s87, s87, {WS_OUTFLAG}')
    a('v_mov_b32 v32, s87\ns_mov_b32 s90, 0')
    lp, lok = a.newlabel('fpoll'), a.newlabel('fok')
    a.label(lp)
    a(f'buffer_load_dword v33, v32, {S(S_WS)}, 0 offen sc1\ns_waitcnt vmcnt(0)')
    a(f'v_cmp_ne_u32 vcc, s{sNONCE}, v33\ns_cbranch_vccz {lok}')
    a(f's_add_u32 s90, s90, 1\ns_cmp_gt_u32 s90, {K.SPIN}\ns_cbranch_scc1 {lok}\ns_sleep 1\ns_branch {lp}')
    a.label(lok)
    a('s_waitcnt lgkmcnt(0)')
    for st in (4, 2, 1):
        for i in range(st):
            a(f'v_add_f32 v{Y + i}, v{Y + i}, v{Y + i + st}')
    round_bf16(a, Y, Y + 1)
    a(f'v_mov_b32 v{Y + 2}, s88')
    round_bf16(a, Y + 2, Y + 1)
    sigmoid(a, Y + 2, Y + 3)
    round_bf16(a, Y + 2, Y + 1)
    a(f'v_mul_f32 v{Y}, v{Y}, v{Y + 2}')
    round_bf16(a, Y, Y + 1)
    a(f'v_and_b32 v{Y + 4}, 0xffff0000, v30\nv_lshlrev_b32 v{Y + 5}, 16, v30')
    a(f'v_add_f32 v{Y}, v{Y}, v{Y + 4}')
    round_bf16(a, Y, Y + 1)
    a(f'v_add_f32 v{Y}, v{Y}, v{Y + 5}\nv_cvt_pk_bf16_f32 v{Y}, v{Y}, v{Y}')
    a(f's_lshl_b32 s86, s86, 11\ns_lshl_b32 s87, s{sCH}, 6\ns_add_u32 s86, s86, s87')
    a(f'v_and_b32 v7, 31, v{V_LANE}\nv_lshl_add_u32 v7, v7, 1, s86')
    a(f'v_cmp_gt_u32 vcc, 32, v{V_LANE}\ns_and_saveexec_b64 s[96:97], vcc')
    a(f'buffer_store_short v{Y}, v7, {S(S_OUT)}, 0 offen sc1\ns_mov_b64 exec, s[96:97]')
    stamp(K, 27)
```

```python
import sys
sys.path.insert(0,'gen')
import kernel
opts = eval("dict(%s)" % (sys.argv[2] if len(sys.argv) > 2 else ""))
s, errs = kernel.build(**opts)
assert not errs, errs
ref = open('sequential_preLN__sliding_block__moe_arch_mod__prompt.s.ref').read().split('\n')
head = [l for l in ref[:ref.index('.amdgcn_target "amdgcn-amd-amdhsa--gfx950"')] if '@launch' not in l]
out = '\n'.join(head) + '\n' + s
open(sys.argv[1], 'w').write(out)
print('wrote', sys.argv[1], len(out))
```

```python
import re
import sys

sys.setrecursionlimit(1000000)

REG_RE = re.compile(r'(?<![\w.])([vsa])\[(\d+):(\d+)\]|(?<![\w.\[])([vsa])(\d+)(?![\w\[])|(?<![\w.])(vcc_lo|vcc_hi|vcc|exec_lo|exec_hi|exec|m0|scc)(?![\w])')
TRANS = ('v_exp_', 'v_log_', 'v_rcp_', 'v_rsq_', 'v_sqrt_', 'v_sin_', 'v_cos_')


def regs_of(tok):
    out = []
    for m in REG_RE.finditer(tok):
        if m.group(1):
            out += [f'{m.group(1)}{i}' for i in range(int(m.group(2)), int(m.group(3)) + 1)]
        elif m.group(4):
            out.append(f'{m.group(4)}{m.group(5)}')
        else:
            r = m.group(6)
            if r.startswith('vcc'):
                r = 'vcc'
            if r.startswith('exec'):
                r = 'exec'
            out.append(r)
    return out


def split_ops(s):
    ops, depth, cur = [], 0, ''
    for ch in s:
        if ch in '[(':
            depth += 1
        if ch in '])':
            depth -= 1
        if ch == ',' and depth == 0:
            ops.append(cur.strip())
            cur = ''
        else:
            cur += ch
    if cur.strip():
        ops.append(cur.strip())
    return ops


class Ins:
    __slots__ = ('text', 'mn', 'ops', 'cls', 'defs', 'uses', 'passes', 'mA', 'mB', 'mC', 'trans', 'target',
                 'lds_dma', 'is_store', 'is_load', 'wide_store', 'store_data', 'nop', 'dpp', 'permlane', 'rdlane',
                 'vm', 'lgkm', 'wait', 'line', 'sgpr_const_uses', 'opsel_dst', 'lanesel')

    def __init__(self, text, line=0):
        self.text = text
        self.line = line
        t = text.split(';')[0].strip()
        parts = t.split(None, 1)
        self.mn = mn = parts[0]
        rest = parts[1] if len(parts) > 1 else ''
        self.ops = ops = split_ops(rest)
        self.defs, self.uses = set(), set()
        self.passes = 0
        self.mA = self.mB = self.mC = ()
        self.trans = False
        self.target = None
        self.lds_dma = self.is_store = self.is_load = self.wide_store = False
        self.store_data = ()
        self.nop = 0
        self.dpp = self.permlane = self.rdlane = False
        self.vm = self.lgkm = False
        self.wait = None
        self.sgpr_const_uses = set()
        self.opsel_dst = False
        self.lanesel = set()
        R = [regs_of(o) for o in ops]
        allr = [r for x in R for r in x]
        if mn.startswith('v_mfma'):
            self.cls = 'mfma'
            self.passes = 8 if '32x32' in mn else 4
            self.defs = set(R[0])
            self.mA, self.mB, self.mC = tuple(R[1]), tuple(R[2]), tuple(R[3])
            self.uses = set(R[1] + R[2] + R[3])
        elif mn.startswith('v_'):
            self.cls = 'valu'
            self.trans = mn.startswith(TRANS)
            self.dpp = ('quad_perm' in rest or 'row_' in rest or mn.endswith('_dpp') or 'wave_' in rest)
            if mn.startswith('v_permlane') and 'swap' in mn:
                self.permlane = True
                self.defs = set(R[0] + R[1])
                self.uses = set(R[0] + R[1])
            elif mn.startswith(('v_add_co', 'v_sub_co', 'v_subrev_co', 'v_addc_co', 'v_subb_co', 'v_mad_u64', 'v_div_scale')):
                self.defs = set(R[0] + R[1])
                self.uses = set(r for x in R[2:] for r in x)
            elif mn.startswith('v_swap'):
                self.defs = set(R[0] + R[1])
                self.uses = set(R[0] + R[1])
            else:
                self.defs = set(R[0])
                self.uses = set(r for x in R[1:] for r in x)
                if mn.startswith(('v_fmac', 'v_pk_fmac', 'v_dot2c', 'v_writelane', 'v_mac')) or self.dpp or 'UNUSED_PRESERVE' in rest:
                    self.uses |= set(R[0])
                if mn.startswith('v_cndmask') and len(ops) == 3:
                    self.uses.add('vcc')
                if mn.startswith(('v_readlane', 'v_readfirstlane')):
                    self.rdlane = True
                if mn.startswith(('v_readlane', 'v_writelane')) and len(R) > 2:
                    self.lanesel = set(r for r in R[2] if r[0] == 's' or r == 'vcc')
                if mn.startswith('v_cmpx'):
                    self.defs.add('exec')
            if 'dst_sel:' in rest and 'dst_sel:DWORD' not in rest:
                self.opsel_dst = True
            m = re.search(r'op_sel:\[([01,]+)\]', rest)
            if m and not mn.startswith('v_pk_') and m.group(1).split(',')[-1] == '1' and len(m.group(1).split(',')) == len(ops):
                self.opsel_dst = True
            self.sgpr_const_uses = set(r for r in self.uses if r[0] == 's' or r == 'vcc')
            self.uses.add('exec')
        elif mn.startswith('ds_'):
            self.cls = 'ds'
            self.lgkm = True
            if mn.startswith(('ds_read', 'ds_bpermute', 'ds_permute', 'ds_swizzle')) or '_rtn' in mn:
                self.defs = set(R[0])
                self.uses = set(r for x in R[1:] for r in x)
                self.is_load = True
            else:
                self.uses = set(allr)
            self.uses.add('exec')
        elif mn.startswith(('buffer_', 'global_')):
            self.cls = 'vmem'
            self.vm = True
            toks = rest.split()
            if mn in ('buffer_wbl2', 'buffer_inv'):
                pass
            elif 'lds' in toks or '_lds_' in mn:
                self.lds_dma = True
                self.uses = set(allr) | {'m0'}
            elif '_load_' in mn:
                self.defs = set(R[0])
                self.uses = set(r for x in R[1:] for r in x)
                self.is_load = True
            elif '_store_' in mn:
                self.uses = set(allr)
                self.is_store = True
                data = R[0] if mn.startswith('buffer_') else R[1]
                self.store_data = tuple(data)
                self.wide_store = mn.endswith(('x3', 'x4'))
            elif '_atomic_' in mn:
                self.uses = set(allr)
                if 'sc0' in toks:
                    self.defs = set(R[0])
                    self.is_load = True
            else:
                raise ValueError('unknown vmem ' + text)
            self.uses.add('exec')
        elif mn.startswith(('s_load', 's_memtime', 's_memrealtime', 's_buffer_load', 's_atomic')):
            self.cls = 'smem'
            self.lgkm = True
            self.defs = set(R[0])
            self.uses = set(r for x in R[1:] for r in x)
            self.is_load = True
        elif mn.startswith('s_'):
            self.cls = 'salu'
            if mn == 's_nop':
                self.nop = int(ops[0], 0) + 1
            elif mn == 's_waitcnt':
                w = {}
                for k, v in re.findall(r'(vmcnt|lgkmcnt|expcnt)\((\d+)\)', rest):
                    w[k] = int(v)
                self.wait = w
            elif mn.startswith(('s_cbranch', 's_branch')):
                self.target = ops[0]
                if 'vcc' in mn:
                    self.uses = {'vcc'}
                if 'exec' in mn:
                    self.uses = {'exec'}
                if 'scc' in mn:
                    self.uses = {'scc'}
            elif mn in ('s_barrier', 's_endpgm', 's_setprio', 's_sleep', 's_sethalt', 's_setreg_imm32_b32'):
                pass
            elif mn.startswith('s_cmp') or mn.startswith('s_bitcmp'):
                self.uses = set(allr)
                self.defs = {'scc'}
            elif 'saveexec' in mn:
                self.defs = set(R[0]) | {'exec', 'scc'}
                self.uses = set(R[1]) | {'exec'}
            elif mn.startswith(('s_addk', 's_mulk')):
                self.defs = set(R[0]) | {'scc'}
                self.uses = set(R[0])
            elif mn.startswith('s_getreg'):
                self.defs = set(R[0])
            else:
                self.defs = set(R[0])
                self.uses = set(r for x in R[1:] for r in x)
                if mn.startswith(('s_cselect', 's_addc', 's_subb', 's_cmov')):
                    self.uses.add('scc')
                if not mn.startswith(('s_mov', 's_cselect', 's_mul_', 's_movk', 's_cmov', 's_getpc', 's_bfm')):
                    self.defs.add('scc')
        else:
            raise ValueError('cannot parse: ' + text)

    @property
    def slots(self):
        return self.nop if self.nop else 1


WINDOW = 22


def need_states(prev, ins):
    need = 0
    why = ''

    def up(n, w):
        nonlocal need, why
        if n > need:
            need, why = n, w
    pv = set(r for r in prev.defs if r[0] in 'va' and r != 'vcc')
    if prev.cls == 'valu':
        if ins.cls == 'mfma' and pv & ins.uses:
            up(2, 'VALU->MFMA')
        if prev.trans and ins.cls == 'valu' and not ins.trans and pv & ins.uses:
            up(1, 'trans->VALU')
        if prev.trans and ins.cls in ('vmem', 'ds') and pv & ins.uses:
            up(1, 'trans->mem (safe pad)')
        if ins.cls == 'valu' and ins.rdlane and pv & ins.uses:
            up(1, 'VALU->readlane')
        if ins.cls == 'valu' and ins.dpp and pv & ins.uses:
            up(2, 'VALU->DPP')
        if ins.cls == 'valu' and ins.permlane and pv & ins.uses:
            up(2, 'VALU->permlane')
        if prev.opsel_dst and ins.cls == 'valu' and pv & (ins.uses | ins.defs):
            up(1, 'opsel dst')
        ps = set(r for r in prev.defs if r[0] == 's' or r == 'vcc')
        if ps:
            if ins.cls == 'valu' and ps & ins.sgpr_const_uses:
                up(2, 'VALU sgpr->VALU const')
            if ins.cls == 'valu' and ps & ins.lanesel:
                up(4, 'VALU sgpr->lanesel')
            if ins.cls == 'vmem' and ps & ins.uses:
                up(5, 'VALU sgpr->VMEM')
            if ins.cls in ('salu', 'smem') and ps & ins.uses:
                up(2, 'VALU sgpr->SALU (safe pad)')
        if 'exec' in prev.defs:
            up(5, 'VALU exec write')
    if prev.cls == 'mfma':
        p8 = prev.passes == 8
        D = prev.defs
        if ins.cls == 'mfma':
            if D & set(ins.mA) or D & set(ins.mB):
                up(12 if p8 else 8, 'MFMA D->A/B')
            if D & set(ins.mC):
                if not (set(ins.mC) == D and ins.passes == prev.passes):
                    up(10 if p8 else 6, 'MFMA D->C overlap')
            if D & ins.defs and not (D & set(ins.mC)):
                up(10 if p8 else 6, 'MFMA D->D WAW (safe pad)')
        elif ins.cls in ('valu', 'vmem', 'ds'):
            if D & (ins.uses | ins.defs):
                up(12 if p8 else 8, 'MFMA D->VALU/mem')
            if ins.cls == 'valu' and set(prev.mC) & ins.defs:
                up(7 if p8 else 3, 'MFMA C WAR')
            if ins.cls in ('vmem', 'ds') and set(prev.mC) & ins.defs:
                up(7 if p8 else 3, 'MFMA C WAR by load (safe pad)')
    if prev.cls == 'salu' and 'm0' in prev.defs and ins.lds_dma:
        up(1, 'm0->LDS DMA')
    if prev.cls == 'vmem' and prev.wide_store:
        sd = set(prev.store_data)
        if sd & ins.defs:
            up(2 if ins.cls == 'valu' else 1, 'wide store WAR')
    return need, why


class Asm:
    def __init__(self):
        self.lines = []
        self.uid = 0

    def __call__(self, text):
        for l in text.split('\n'):
            l = l.strip()
            if l:
                self.lines.append(l)

    def label(self, name):
        self.lines.append(name + ':')

    def newlabel(self, base):
        self.uid += 1
        return f'L_{base}_{self.uid}'

    def comment(self, c):
        self.lines.append('; ' + c)


def is_instr(l):
    if not l or l.startswith((';', '.')) or l.rstrip().endswith(':'):
        return False
    return True


def autonop(lines):
    out = []
    window = []
    added = 0
    for l in lines:
        if not is_instr(l):
            out.append(l)
            continue
        ins = Ins(l)
        req = 0
        why = ''
        for p, age in window:
            n, w = need_states(p, ins)
            if n - age > req:
                req, why = n - age, w
        if req > 0:
            added += 1
            r = req
            while r > 0:
                k = min(r, 16)
                out.append(f's_nop {k - 1}')
                r -= k
            for e in window:
                e[1] += req
        out.append(l)
        for e in window:
            e[1] += ins.slots
        window = [e for e in window if e[1] < WINDOW]
        if ins.cls in ('valu', 'mfma') or (ins.cls == 'salu' and 'm0' in ins.defs) or ins.wide_store:
            window.append([ins, 0])
        if ins.mn in ('s_branch', 's_endpgm'):
            window = []
    return out, added


def lint(lines, entries, verbose=True, max_states=3000000):
    prog = []
    labels = {}
    for n, l in enumerate(lines):
        if l.rstrip().endswith(':') and not l.startswith(';'):
            labels[l.rstrip()[:-1]] = len(prog)
        elif is_instr(l):
            prog.append(Ins(l, n))
    errors = {}
    seen = set()
    stack = []
    for e in entries:
        stack.append((labels[e], (), (), ()))
    nstates = 0
    while stack:
        pc, win, vmq, lgq = stack.pop()
        win = list(win)
        vmq = list(vmq)
        lgq = list(lgq)
        while True:
            if pc >= len(prog):
                errors[('runoff', pc)] = 'path runs off the end'
                break
            key = (pc, tuple(win), tuple(vmq), tuple(lgq))
            if key in seen:
                break
            seen.add(key)
            nstates += 1
            if nstates > max_states:
                print('lint: state limit reached')
                errors[('limit',)] = 'state limit reached'
                return errors
            ins = prog[pc]
            for (pi, age) in win:
                n, w = need_states(prog[pi], ins)
                if n > age:
                    errors[('ws', pi, pc)] = f'wait states: {w} need {n} have {age}: [{prog[pi].text}] -> [{ins.text}] (lines {prog[pi].line},{ins.line})'
            touched = (ins.uses | ins.defs)
            for q, nm in ((vmq, 'vmcnt'), (lgq, 'lgkmcnt')):
                for (pi) in q:
                    if pi < 0:
                        continue
                    p = prog[pi]
                    if p.is_load and (p.defs & touched):
                        if ins.is_load and ins.cls == p.cls and not (p.defs & ins.uses) and p.cls != 'smem':
                            continue
                        errors[(nm, pi, pc)] = f'{nm} missing: [{p.text}] -> [{ins.text}] (lines {p.line},{ins.line})'
            if ins.wait is not None:
                if 'vmcnt' in ins.wait:
                    n = ins.wait['vmcnt']
                    if len(vmq) > n:
                        vmq = vmq[len(vmq) - n:] if n else []
                if 'lgkmcnt' in ins.wait:
                    n = ins.wait['lgkmcnt']
                    has_smem = any(i >= 0 and prog[i].cls == 'smem' for i in lgq)
                    if n == 0:
                        lgq = []
                    elif not has_smem and len(lgq) > n:
                        lgq = lgq[len(lgq) - n:]
            if ins.vm:
                vmq.append(pc if (ins.is_load and ins.defs) else -1)
                if len(vmq) > 63:
                    vmq = vmq[-63:]
            if ins.lgkm:
                lgq.append(pc if (ins.is_load or ins.cls == 'smem') else -1)
                if len(lgq) > 15 and not any(i >= 0 and prog[i].cls == 'smem' for i in lgq):
                    lgq = lgq[-15:]
            win = [(pi, age + ins.slots) for (pi, age) in win if age + ins.slots < WINDOW]
            if ins.cls in ('valu', 'mfma') or (ins.cls == 'salu' and 'm0' in ins.defs) or ins.wide_store:
                win.append((pc, 0))
            if ins.mn == 's_endpgm':
                break
            if ins.mn == 's_branch':
                pc = labels[ins.target]
                continue
            if ins.target is not None:
                stack.append((labels[ins.target], tuple(win), tuple(vmq), tuple(lgq)))
            pc += 1
    if verbose:
        for k in sorted(errors, key=lambda k: str(k)):
            print('LINT:', errors[k])
        print(f'lint: {len(prog)} instructions, {nstates} states, {len(errors)} findings')
    return errors
```

```python
import sys
sys.path.insert(0, 'gen')
from asmlib import Asm, autonop, lint
from common import *
import phase1
import phase2
import phase3
import phase4


class Kern:
    STAMP_T = 98
    STAMP_BASE = 100
    SPIN = 200000

    def __init__(self, **opt):
        self.opt = opt
        self.a = Asm()
        self.STAMP_RT = 26
        self.STAMP0 = 0
        self.hooks = {}

    def hook(self, name):
        if name in self.hooks:
            self.hooks[name](self)


def stamp(K, idx):
    if K.opt.get('stamps'):
        if K.opt.get('rt'):
            K.a(f's_memrealtime s[98:99]\ns_waitcnt lgkmcnt(0)\nv_writelane_b32 v255, s98, {idx}')
        else:
            K.a(f's_memtime s[98:99]\ns_waitcnt lgkmcnt(0)\ns_sub_u32 s98, s98, s100\nv_writelane_b32 v255, s98, {idx}')


phase1.stamp = stamp


def finish(K):
    a = K.a
    a.label('L_fin')
    if K.opt.get('stamps'):
        a('s_waitcnt vmcnt(0) lgkmcnt(0)')
        stamp(K, 13)
        a('s_memrealtime s[98:99]\ns_waitcnt lgkmcnt(0)')
        a('v_writelane_b32 v255, s98, 15')
        a(f's_lshl_b32 s80, s{sB}, 3\ns_add_u32 s80, s80, s{sW}\ns_lshl_b32 s80, s80, 7\ns_add_u32 s80, s80, {WS_DBG}')
        a('v_lshl_add_u32 v2, v1, 2, s80')
        a('v_cmp_gt_u32 vcc, 32, v1\ns_and_saveexec_b64 s[96:97], vcc')
        a(f'buffer_store_dword v255, v2, {S(S_WS)}, 0 offen')
        a('s_mov_b64 exec, s[96:97]')
        a(f's_add_u32 s80, s80, 0x80000\nv_lshl_add_u32 v2, v1, 2, s80')
        a('v_cmp_gt_u32 vcc, 32, v1\ns_and_saveexec_b64 s[96:97], vcc')
        a(f'buffer_store_dword v254, v2, {S(S_WS)}, 0 offen')
    a.label('L_exit')
    a('s_endpgm')


def build(**opt):
    K = Kern(**opt)
    a = K.a
    a('.amdgcn_target "amdgcn-amd-amdhsa--gfx950"\n.text\n.globl %s\n.p2align 8\n.type %s,@function' % (KNAME, KNAME))
    a.label(KNAME)
    phase1.prologue(K)
    phase1.consumer(K)
    a('s_branch L_p1_join')
    phase1.helper(K)
    a.label('L_p1_join')
    a('s_barrier')
    stamp(K, 6)
    stop = opt.get('stop')
    if stop == 'p1':
        a(f's_lshl_b32 s80, s{sRB}, 4\ns_add_u32 s80, s80, s{sHP}\ns_lshl_b32 s80, s80, 14\ns_add_u32 s80, s80, {WS_DUMP}')
        a(f'v_lshlrev_b32 v2, 4, v0\nv_add_u32 v3, s80, v2\nv_add_u32 v2, {L_Q}, v2')
        a('ds_read_b128 v[4:7], v2\nds_read_b128 v[8:11], v2 offset:8192\ns_waitcnt lgkmcnt(0)')
        a(f'buffer_store_dwordx4 v[4:7], v3, {S(S_WS)}, 0 offen\nv_add_u32 v3, 8192, v3\nbuffer_store_dwordx4 v[8:11], v3, {S(S_WS)}, 0 offen')
        a('s_waitcnt vmcnt(0)')
    else:
        if stop not in ('p2', 'p3'):
            for h in range(2):
                K.hooks[f'ffn_write{h}'] = (lambda h: (lambda K: phase4.ffn_write(K, h)))(h)
                K.hooks[f'ffn_load{h}'] = (lambda h: (lambda K: phase4.ffn_load(K, h)))(h)
        phase2.attention(K, stamp)
        if stop != 'p2':
            phase3.outproj(K, stamp)
            if stop != 'p3':
                phase4.tail(K, stamp)
    finish(K)
    a(f'''.section .rodata,"a"
.p2align 6
.amdhsa_kernel {KNAME}
  .amdhsa_next_free_vgpr 256
  .amdhsa_next_free_sgpr 102
  .amdhsa_accum_offset 256
  .amdhsa_group_segment_fixed_size 0
  .amdhsa_kernarg_size 88
  .amdhsa_user_sgpr_count 2
  .amdhsa_user_sgpr_kernarg_segment_ptr 1
  .amdhsa_system_sgpr_workgroup_id_x 1
.end_amdhsa_kernel''')
    lines, added = autonop(a.lines)
    errs = lint(lines, [KNAME])
    head = ['; fused pre-LN sliding-window attention + routed SwiGLU block (generated by my own script)',
            f'; @launch grid=(256,1,1) block=(512,1,1) lds={LDS_BYTES}']
    return '\n'.join(head + lines) + '\n', errs


if __name__ == '__main__':
    s, errs = build(stamps=True, stop=sys.argv[1] if len(sys.argv) > 1 else None)
    open('k.s', 'w').write(s)
    print(len(s), 'bytes')
```

```python
from common import *

MF16 = 'v_mfma_f32_16x16x32_bf16'
V_LANE = 1


def stamp(K, idx):
    if K.opt.get('stamps'):
        K.a(f's_memtime s[{K.STAMP_T}:{K.STAMP_T + 1}]\ns_waitcnt lgkmcnt(0)\ns_mov_b32 s{K.STAMP0 + idx}, s{K.STAMP_T}')


def prologue(K):
    a = K.a
    a('s_cmp_ge_u32 s2, 256\ns_cbranch_scc1 L_exit')
    a('s_load_dwordx16 s[4:19], s[0:1], 0\ns_load_dwordx4 s[20:23], s[0:1], 64\ns_load_dwordx2 s[24:25], s[0:1], 80')
    if K.opt.get('stamps'):
        a(f's_memrealtime s[{K.STAMP_RT}:{K.STAMP_RT + 1}]\ns_memtime s[{K.STAMP_BASE}:{K.STAMP_BASE + 1}]')
    a(f'v_and_b32 v{V_LANE}, 63, v0\nv_lshrrev_b32 v2, 6, v0')
    if K.opt.get('stamps'):
        a('v_mov_b32 v255, 0\nv_mov_b32 v254, 0')
    a(f's_mov_b32 s{sB}, s2')
    a(f'v_readfirstlane_b32 s{sW}, v2')
    a('s_and_b32 s80, s2, 7\ns_lshr_b32 s81, s2, 3')
    a(f's_lshr_b32 s82, s80, 2\ns_lshl_b32 s82, s82, 3\ns_lshr_b32 s83, s81, 2\ns_add_u32 s{sRB}, s82, s83')
    a(f's_and_b32 s82, s80, 3\ns_lshl_b32 s82, s82, 2\ns_and_b32 s83, s81, 3\ns_add_u32 s{sHP}, s82, s83')
    a(f's_lshl_b32 s82, s80, 1\ns_lshr_b32 s83, s81, 4\ns_add_u32 s{sRB2}, s82, s83\ns_and_b32 s{sCB}, s81, 15')
    a(f's_mul_i32 s82, s80, 28\ns_add_u32 s82, s82, s81\ns_cmp_lt_u32 s81, 28\ns_cselect_b32 s{sF}, s82, 0xffff')
    a('s_waitcnt lgkmcnt(0)')
    if K.opt.get('stamps'):
        a(f'v_writelane_b32 v255, s{K.STAMP_RT}, 14')
    srd(a, S_X, 4, 4 << 20)
    srd(a, S_WQ, 6, 6 << 20)
    srd(a, S_WS, 24, WS_SIZE)
    a(f'v_mov_b32 v2, {WS_NONCE}')
    a(f'buffer_load_dword v3, v2, {S(S_WS)}, 0 offen sc1')
    a(f's_cmp_ge_u32 s{sW}, 4\ns_cbranch_scc1 L_p1_helper')


def late_srds(K):
    a = K.a
    srd(a, S_WO, 8, 2 << 20)
    srd(a, S_OUT, 20, 4 << 20)
    srd(a, S_WG, 14, 1024 * 3584 * 2)
    srd(a, S_WU, 16, 1024 * 3584 * 2)
    srd(a, S_WD, 18, 1024 * 3584 * 2)
    srd(a, S_WR, 12, 2048)


def take_nonce(K):
    a = K.a
    a(f'v_readfirstlane_b32 s{sNONCE}, v3')
    a(f's_mul_i32 s{sNONCE}, s{sNONCE}, 1664525\ns_add_u32 s{sNONCE}, s{sNONCE}, 1013904223')


ACC = 16
FA, FB = 112, 152
VXB, VWB = 192, 194
VXC, VWC = 196, 198


def accQ(db, b):
    return ACC + 4 * (db * 4 + b)


def accK(db, b):
    return ACC + 4 * (8 + db * 4 + b)


def accV(b, db):
    return ACC + 4 * (16 + b * 2 + db)


def consumer(K):
    a = K.a
    sBuf, sCnt = 80, 81
    sWR, sHD = 82, 83
    if K.opt.get('prio', 1):
        a(f"s_setprio {K.opt.get('prio', 1)}")
    a(f's_lshr_b32 s{sWR}, s{sW}, 1\ns_and_b32 s{sHD}, s{sW}, 1')
    XS, WSL = 112, 128
    a(f's_lshl_b32 s84, s{sRB}, 7\ns_lshl_b32 s85, s{sHP}, 3\ns_add_u32 s84, s84, s85\ns_lshl_b32 s85, s{sW}, 1\ns_add_u32 s86, s84, s85')
    a(f's_lshl_b32 s84, s86, 11\nv_lshrrev_b32 v5, 5, v{V_LANE}\nv_lshlrev_b32 v5, 11, v5\nv_and_b32 v6, 31, v{V_LANE}\nv_lshl_add_u32 v5, v6, 4, v5\nv_add_u32 v5, s84, v5')
    for i in range(4):
        a(f'buffer_load_dwordx4 {vr(XS + 4 * i, 4)}, v5, {S(S_X)}, 0 offen offset:{i * 512}')
    a(f'v_lshrrev_b32 v10, 3, v{V_LANE}\nv_and_b32 v11, 7, v{V_LANE}')
    a(f's_lshl_b32 s84, s{sRB}, 6\ns_lshl_b32 s85, s{sW}, 4\ns_add_u32 s84, s84, s85\nv_add_u32 v5, s84, v10\ns_mov_b32 s85, 6144\nv_mul_lo_u32 v5, v5, s85')
    a(f's_lshl_b32 s84, s{sHP}, 7\nv_lshl_add_u32 v5, v11, 4, v5\nv_add_u32 v5, s84, v5')
    for sg in range(3):
        for rg in range(2):
            a(f's_mov_b32 s84, {sg * 2048 + rg * 8 * 6144}\nbuffer_load_dwordx4 {vr(WSL + 8 * sg + 4 * rg, 4)}, v5, {S(S_WQ)}, s84 offen')
    late_srds(K)
    a(f'v_lshrrev_b32 v2, 4, v{V_LANE}')
    a(f'v_and_b32 v4, 15, v{V_LANE}')
    a('v_bfe_u32 v5, v4, 1, 3\nv_xor_b32 v5, v5, v2')
    a(f's_lshl_b32 s84, s{sWR}, 6\nv_add_u32 v6, s84, v4\nv_lshlrev_b32 v6, 7, v6')
    for ks in range(2):
        a(f'v_xor_b32 v7, {4 * ks}, v5\nv_lshl_add_u32 v{VXB + ks}, v7, 4, v6')
    a('v_lshrrev_b32 v7, 2, v4\nv_lshl_add_u32 v7, v2, 3, v7')
    a(f'v_and_b32 v8, 3, v4\nv_lshlrev_b32 v8, 3, v8\ns_lshl_b32 s84, s{sHD}, 6\nv_add_u32 v8, s84, v8')
    a('v_bfe_u32 v9, v4, 3, 1\nv_lshlrev_b32 v9, 6, v9\nv_xor_b32 v8, v8, v9')
    a('v_and_b32 v9, 1, v2\nv_lshlrev_b32 v9, 5, v9\nv_xor_b32 v8, v8, v9')
    a(f'v_lshl_add_u32 v{VWB}, v7, 7, v8\nv_add_u32 v{VWB}, 16384, v{VWB}\nv_xor_b32 v{VWB + 1}, 32, v{VWB}')
    for i in range(2):
        a(f'v_mov_b32 v{VXC + i}, v{VXB + i}\nv_mov_b32 v{VWC + i}, v{VWB + i}')
    a(f's_mov_b32 s{sBuf}, 0')
    a('s_waitcnt vmcnt(6)')
    take_nonce(K)
    U = 16
    SUM, TT = 152, 156
    for d in range(16):
        a(f'v_lshlrev_b32 v{U + 2 * d}, 16, v{XS + d}\nv_and_b32 v{U + 2 * d + 1}, 0xffff0000, v{XS + d}')
    a(f'v_pk_add_f32 v[{SUM}:{SUM + 1}], v[{U}:{U + 1}], v[{U + 2}:{U + 3}]')
    a(f'v_pk_mul_f32 v[{SUM + 2}:{SUM + 3}], v[{U}:{U + 1}], v[{U}:{U + 1}]')
    a(f'v_pk_fma_f32 v[{SUM + 2}:{SUM + 3}], v[{U + 2}:{U + 3}], v[{U + 2}:{U + 3}], v[{SUM + 2}:{SUM + 3}]')
    for d in range(2, 16):
        a(f'v_pk_add_f32 v[{SUM}:{SUM + 1}], v[{SUM}:{SUM + 1}], v[{U + 2 * d}:{U + 2 * d + 1}]')
        a(f'v_pk_fma_f32 v[{SUM + 2}:{SUM + 3}], v[{U + 2 * d}:{U + 2 * d + 1}], v[{U + 2 * d}:{U + 2 * d + 1}], v[{SUM + 2}:{SUM + 3}]')
    a(f'v_add_f32 v{SUM}, v{SUM}, v{SUM + 1}\nv_add_f32 v{SUM + 1}, v{SUM + 2}, v{SUM + 3}')
    for ctl in ('quad_perm:[1,0,3,2]', 'quad_perm:[2,3,0,1]', 'row_half_mirror', 'row_mirror'):
        for r in range(2):
            a(f'v_add_f32_dpp v{SUM + r}, v{SUM + r}, v{SUM + r} {ctl} row_mask:0xf bank_mask:0xf')
    for r in range(2):
        xor16_add(a, SUM + r, TT + r)
    a(f's_mov_b32 s88, {f32hex(1.0 / 1024)}\ns_mov_b32 s89, {f32hex(1e-5)}')
    a(f'v_mul_f32 v{SUM}, s88, v{SUM}\nv_mul_f32 v{SUM + 1}, s88, v{SUM + 1}')
    v = SUM + 1
    a(f'v_fma_f32 v{v}, -v{SUM}, v{SUM}, v{v}\nv_max_f32 v{v}, 0, v{v}')
    round_bf16(a, v, TT)
    a(f'v_add_f32 v{v}, s89, v{v}')
    round_bf16(a, v, TT)
    a(f'v_sqrt_f32 v{v}, v{v}')
    round_bf16(a, v, TT)
    a(f'v_rcp_f32 v{v}, v{v}')
    round_bf16(a, SUM, TT)
    a(f'v_mov_b32 v{SUM + 2}, s{sNONCE}\nv_mov_b32 v{SUM + 3}, 0')
    a(f's_lshl_b32 s87, s86, 4\ns_add_u32 s87, s87, {WS_ROWST}\nv_lshrrev_b32 v5, 5, v{V_LANE}\nv_lshl_add_u32 v5, v5, 4, s87')
    a(f'v_and_b32 v6, 31, v{V_LANE}\nv_cmp_eq_u32 vcc, 0, v6\ns_and_saveexec_b64 s[96:97], vcc')
    a(f'buffer_store_dwordx4 {vr(SUM, 4)}, v5, {S(S_WS)}, 0 offen sc1\ns_mov_b64 exec, s[96:97]')
    a('s_waitcnt vmcnt(1)')
    CA = 16
    for sg in range(3):
        for rg in range(2):
            for d in range(4):
                src = WSL + 8 * sg + 4 * rg + d
                dst = CA + 16 * sg + 8 * rg + 2 * d
                a(f'v_lshlrev_b32 v{dst}, 16, v{src}\nv_and_b32 v{dst + 1}, 0xffff0000, v{src}')
    for sg in range(3):
        for d in range(4):
            c = CA + 16 * sg + 2 * d
            a(f'v_pk_add_f32 v[{c}:{c + 1}], v[{c}:{c + 1}], v[{c + 8}:{c + 9}]')
    for sg in range(3):
        for e in range(4):
            a(f'v_permlane32_swap_b32 v{CA + 16 * sg + e}, v{CA + 16 * sg + e + 4}')
    for sg in range(3):
        for e in range(0, 4, 2):
            c = CA + 16 * sg + e
            a(f'v_pk_add_f32 v[{c}:{c + 1}], v[{c}:{c + 1}], v[{c + 4}:{c + 5}]')
    for sg in range(3):
        for e in range(2):
            a(f'v_permlane16_swap_b32 v{CA + 16 * sg + e}, v{CA + 16 * sg + e + 2}')
    for sg in range(3):
        c = CA + 16 * sg
        a(f'v_pk_add_f32 v[{c}:{c + 1}], v[{c}:{c + 1}], v[{c + 2}:{c + 3}]')
    for sg in range(3):
        c = CA + 16 * sg
        a(f'v_add_f32_dpp v{c + 2}, v{c}, v{c} row_ror:8 row_mask:0xf bank_mask:0xf')
        a(f'v_add_f32_dpp v{c + 3}, v{c + 1}, v{c + 1} row_ror:8 row_mask:0xf bank_mask:0xf')
    a(f'v_and_b32 v5, 8, v{V_LANE}\nv_cmp_eq_u32 vcc, 0, v5')
    a(f'v_lshrrev_b32 v5, 5, v{V_LANE}\nv_lshlrev_b32 v5, 2, v5')
    a(f'v_bfe_u32 v6, v{V_LANE}, 4, 1\nv_lshl_add_u32 v5, v6, 1, v5')
    a(f'v_bfe_u32 v6, v{V_LANE}, 3, 1\nv_add_u32 v5, v5, v6\nv_lshl_add_u32 v5, v11, 3, v5')
    a(f's_mul_i32 s87, s{sW}, 768\ns_add_u32 s87, s87, {L_CSP}\nv_lshl_add_u32 v5, v5, 2, s87')
    for sg in range(3):
        c = CA + 16 * sg
        a(f'v_cndmask_b32 v{c}, v{c + 3}, v{c + 2}, vcc')
    for sg in range(3):
        a(f'ds_write_b32 v5, v{CA + 16 * sg} offset:{256 * sg}')
    for i in range(0, 96, 2):
        a(f'v_mov_b64 v[{ACC + i}:{ACC + i + 1}], 0')
    a('s_waitcnt lgkmcnt(0)')

    def reads(S_, ks):
        r = []
        X = lambda b: f'ds_read_b128 {vr(S_ + 4 * b, 4)}, v{VXC + ks} offset:{b * 2048}'

        def W(j):
            seg, db = j >> 1, j & 1
            base = S_ + 16 + 4 * j
            off = seg * 8192 + ks * 4096
            return [f'ds_read_b64_tr_b16 {vr(base, 2)}, v{VWC + db} offset:{off}',
                    f'ds_read_b64_tr_b16 {vr(base + 2, 2)}, v{VWC + db} offset:{off + 512}']
        r.append(X(0))
        r += W(0)
        r += [X(1), X(2), X(3)]
        for j in range(1, 6):
            r += W(j)
        return r

    def mfmas(S_):
        out = []
        for j in range(6):
            seg, db = j >> 1, j & 1
            w = vr(S_ + 16 + 4 * j, 4)
            for b in range(4):
                x = vr(S_ + 4 * b, 4)
                if seg == 0:
                    c = vr(accQ(db, b), 4)
                    out.append(f'{MF16} {c}, {w}, {x}, {c}')
                elif seg == 1:
                    c = vr(accK(db, b), 4)
                    out.append(f'{MF16} {c}, {w}, {x}, {c}')
                else:
                    c = vr(accV(b, db), 4)
                    out.append(f'{MF16} {c}, {x}, {w}, {c}')
        return out

    def kstep(S_, N, nks, boundary, last=False):
        m = mfmas(S_)
        r = [] if last else reads(N, nks)
        a('s_waitcnt lgkmcnt(0)')
        k = 0
        if boundary:
            a(m[0])
            a(m[1])
            k = 2
            if not last:
                a(f's_add_u32 s{sBuf}, s{sBuf}, {STAGE}\ns_cmp_eq_u32 s{sBuf}, {STAGE * 3}\ns_cselect_b32 s{sBuf}, 0, s{sBuf}')
                for i in range(2):
                    a(f'v_add_u32 v{VXC + i}, s{sBuf}, v{VXB + i}\nv_add_u32 v{VWC + i}, s{sBuf}, v{VWB + i}')
            a('s_barrier')
            if K.opt.get('loopstamps') and not last:
                a(f's_memtime s[98:99]\ns_waitcnt lgkmcnt(0)\ns_sub_u32 s98, s98, s100\ns_sub_u32 m0, 16, s{sCnt}\ns_nop 3\nv_writelane_b32 v254, s98, m0')
        ri = 0
        while k < 24:
            a(m[k])
            k += 1
            if ri < len(r):
                a(r[ri])
                ri += 1

    a('s_barrier')
    stamp(K, 1)
    for x in reads(FA, 0):
        a(x)
    a(f's_mov_b32 s{sCnt}, 15')
    a.label('L_p1_cloop')
    kstep(FA, FB, 1, False)
    kstep(FB, FA, 0, True)
    a(f's_sub_u32 s{sCnt}, s{sCnt}, 1\ns_cmp_lg_u32 s{sCnt}, 0\ns_cbranch_scc1 L_p1_cloop')
    kstep(FA, FB, 1, False)
    kstep(FB, FA, 0, True, last=True)
    stamp(K, 2)
    epilogue(K, sWR, sHD)


def epilogue(K, sWR, sHD):
    a = K.a
    T = 112
    vG, vC = T, T + 1
    vMT, vRT = T + 2, T + 6
    vCSQ, vCSK = T + 12, T + 20
    vCSV = T + 28
    vM4, vR4 = T + 32, T + 48
    vA, vB_, vD = T + 64, T + 65, T + 66
    vLK, vLV, vLQ = T + 68, T + 69, T + 70
    vGK, vGV = T + 71, T + 72
    P = T + 76
    W_ = T + 92
    a(f'v_lshrrev_b32 v{vG}, 4, v{V_LANE}\nv_and_b32 v{vC}, 15, v{V_LANE}')
    a(f's_lshl_b32 s84, s{sWR}, 8')
    a(f'v_lshl_add_u32 v{vA}, v{vC}, 2, s84')
    a(f'v_add_u32 v{vB_}, {L_M}, v{vA}')
    a(f'ds_read2_b32 {vr(vMT, 2)}, v{vB_} offset0:0 offset1:16')
    a(f'ds_read2_b32 {vr(vMT + 2, 2)}, v{vB_} offset0:32 offset1:48')
    a(f'ds_read2_b32 {vr(vRT, 2)}, v{vB_} offset0:128 offset1:144')
    a(f'ds_read2_b32 {vr(vRT + 2, 2)}, v{vB_} offset0:160 offset1:176')
    a(f's_lshl_b32 s85, s{sHD}, 7\ns_add_u32 s85, s85, {L_CS}')
    a(f'v_lshl_add_u32 v{vA}, v{vG}, 4, s85')
    for db in range(2):
        a(f'ds_read_b128 {vr(vCSK + 4 * db, 4)}, v{vA} offset:{256 + 64 * db}')
    a(f'v_lshl_add_u32 v{vD}, v{vC}, 2, s85')
    for db in range(2):
        a(f'ds_read_b32 v{vCSV + db}, v{vD} offset:{512 + 64 * db}')
    for db in range(2):
        a(f'ds_read_b128 {vr(vCSQ + 4 * db, 4)}, v{vA} offset:{64 * db}')
    a(f's_add_u32 s84, s84, {L_M}\nv_lshl_add_u32 v{vD}, v{vG}, 4, s84')
    for b in range(4):
        a(f'ds_read_b128 {vr(vM4 + 4 * b, 4)}, v{vD} offset:{64 * b}')
        a(f'ds_read_b128 {vr(vR4 + 4 * b, 4)}, v{vD} offset:{512 + 64 * b}')
    a(f'v_lshrrev_b32 v{vA}, 1, v{vG}\nv_lshlrev_b32 v{vA}, 10, v{vA}')
    a(f'v_and_b32 v{vB_}, 1, v{vG}\nv_lshlrev_b32 v{vB_}, 9, v{vB_}\nv_add_u32 v{vA}, v{vA}, v{vB_}')
    a(f'v_lshrrev_b32 v{vB_}, 3, v{vC}\nv_lshlrev_b32 v{vB_}, 8, v{vB_}')
    a(f'v_and_b32 v{vD}, 7, v{vC}\nv_lshl_add_u32 v{vB_}, v{vD}, 4, v{vB_}\nv_add_u32 v{vLK}, v{vA}, v{vB_}')
    a(f'v_lshl_add_u32 v{vLV}, v{vC}, 4, v{vA}')
    a(f's_mul_i32 s86, s{sHD}, {KV_HD}\ns_lshl_b32 s87, s{sWR}, 13\ns_add_u32 s86, s86, s87\ns_add_u32 s86, s86, {8 * 4096}')
    a(f's_lshl_b32 s87, s{sRB}, 4\ns_add_u32 s87, s87, s{sHP}\ns_lshl_b32 s87, s87, 15\ns_lshl_b32 s88, s{sHD}, 14\ns_add_u32 s87, s87, s88')
    a(f's_lshl_b32 s88, s{sWR}, 13\ns_add_u32 s87, s87, s88\ns_add_u32 s87, s87, {WS_KV}')
    a(f'v_add_u32 v{vGK}, s87, v{vLK}\nv_add_u32 v{vGV}, s87, v{vLV}')
    a(f's_lshl_b32 s88, s{sHD}, 13\ns_lshl_b32 s89, s{sWR}, 12\ns_add_u32 s88, s88, s89\ns_add_u32 s88, s88, {L_Q}')
    a(f'v_add_u32 v{vLQ}, s88, v{vLV}\nv_add_u32 v{vLK}, s86, v{vLK}\nv_add_u32 v{vLV}, s86, v{vLV}')
    a('s_waitcnt lgkmcnt(0)')

    def bsel(reg, pos):
        base = reg & ~1
        bit = reg & 1
        return f'v[{base}:{base + 1}]', bit

    def fix_qk(acc, cs, b, dst):
        mp, mb = bsel(vMT + b, 0)
        rp, rb_ = bsel(vRT + b, 0)
        for h in range(2):
            t = W_ + 2 * h
            a(f'v_pk_fma_f32 v[{t}:{t + 1}], v[{cs + 2 * h}:{cs + 2 * h + 1}], {mp}, v[{acc + 2 * h}:{acc + 2 * h + 1}] '
              f'op_sel:[0,{mb},0] op_sel_hi:[1,{mb},1] neg_lo:[0,1,0] neg_hi:[0,1,0]')
        for h in range(2):
            t = W_ + 2 * h
            a(f'v_pk_mul_f32 v[{t}:{t + 1}], v[{t}:{t + 1}], {rp} op_sel:[0,{rb_}] op_sel_hi:[1,{rb_}]')
        for h in range(2):
            t = W_ + 2 * h
            a(f'v_cvt_pk_bf16_f32 v{dst + h}, v{t}, v{t + 1}')

    def fix_v(acc, b, db, dst):
        cp, cb_ = bsel(vCSV + db, 0)
        for h in range(2):
            t = W_ + 4 + 2 * h
            a(f'v_pk_fma_f32 v[{t}:{t + 1}], v[{vM4 + 4 * b + 2 * h}:{vM4 + 4 * b + 2 * h + 1}], {cp}, v[{acc + 2 * h}:{acc + 2 * h + 1}] '
              f'op_sel:[0,{cb_},0] op_sel_hi:[1,{cb_},1] neg_lo:[0,1,0] neg_hi:[0,1,0]')
        for h in range(2):
            t = W_ + 4 + 2 * h
            a(f'v_pk_mul_f32 v[{t}:{t + 1}], v[{t}:{t + 1}], v[{vR4 + 4 * b + 2 * h}:{vR4 + 4 * b + 2 * h + 1}]')
        for h in range(2):
            t = W_ + 4 + 2 * h
            a(f'v_cvt_pk_bf16_f32 v{dst + h}, v{t}, v{t + 1}')

    for b in range(4):
        d = P + 4 * (b & 3)
        fix_qk(accK(0, b), vCSK, b, d)
        fix_qk(accK(1, b), vCSK + 4, b, d + 2)
        off = (b >> 1) * 4096 + (b & 1) * 128
        if off < 4096:
            a(f'buffer_store_dwordx4 {vr(d, 4)}, v{vGK}, {S(S_WS)}, 0 offen offset:{off} sc1')
        else:
            a(f's_mov_b32 s89, 4096\nbuffer_store_dwordx4 {vr(d, 4)}, v{vGK}, {S(S_WS)}, s89 offen offset:{off - 4096} sc1')
        a(f'ds_write_b128 v{vLK}, {vr(d, 4)} offset:{off}')
    for tb in range(2):
        for db in range(2):
            d = P + 4 * ((2 * tb + db) & 3)
            fix_v(accV(2 * tb, db), 2 * tb, db, d)
            fix_v(accV(2 * tb + 1, db), 2 * tb + 1, db, d + 2)
            off = tb * 4096 + 2048 + db * 256
            a(f's_mov_b32 s89, {off & ~4095}\nbuffer_store_dwordx4 {vr(d, 4)}, v{vGV}, {S(S_WS)}, s89 offen offset:{off & 4095} sc1')
            a(f'ds_write_b128 v{vLV}, {vr(d, 4)} offset:{off}')
    import math
    a(f's_mov_b32 s89, {f32hex(math.log2(math.e) / math.sqrt(32.0))}')
    for b in range(4):
        a(f'v_mul_f32 v{vRT + b}, s89, v{vRT + b}')
    for b in range(4):
        d = P + 4 * (b & 3)
        fix_qk(accQ(0, b), vCSQ, b, d)
        fix_qk(accQ(1, b), vCSQ + 4, b, d + 2)
        a(f'ds_write_b128 v{vLQ}, {vr(d, 4)} offset:{(b >> 1) * 2048 + (b & 1) * 256}')
    a('s_waitcnt lgkmcnt(0)')
    stamp(K, 3)


def helper(K):
    a = K.a
    a.label('L_p1_helper')
    sJ = 80
    XO, WO = 8, 12
    F = 40
    a(f's_sub_u32 s{sJ}, s{sW}, 4\ns_mov_b32 s90, 0')
    a(f'v_lshrrev_b32 v2, 3, v{V_LANE}\nv_and_b32 v4, 7, v{V_LANE}')
    a(f's_lshl_b32 s81, s{sJ}, 5\ns_lshl_b32 s82, s{sRB}, 7\ns_add_u32 s81, s81, s82')
    a('v_add_u32 v5, s81, v2\nv_lshlrev_b32 v5, 11, v5')
    a('v_lshrrev_b32 v6, 1, v2\nv_xor_b32 v7, v6, v4\nv_xor_b32 v6, 4, v7')
    for i in range(4):
        a(f'v_lshl_add_u32 v{XO + i}, v{7 if (i & 1) == 0 else 6}, 4, v5')
        if i:
            a(f'v_add_u32 v{XO + i}, {i * 16384}, v{XO + i}')
    sLX, sLW = 84, 85
    a(f's_lshl_b32 s{sLX}, s{sJ}, 12\ns_mul_i32 s{sLW}, s{sJ}, 6144\ns_add_u32 s{sLW}, s{sLW}, 16384')
    q = []
    q.append('nonce')

    def vm(tag, text):
        a(text)
        q.append(tag)

    def wait_for(tag):
        last = max(i for i, t in enumerate(q) if t == tag)
        n = len(q) - 1 - last
        assert n <= 63
        a(f's_waitcnt vmcnt({n})')

    def issue(slot, fill=(), part='xw'):
        buf = (slot % 3) * STAGE
        fill = list(fill)
        per = -(-len(fill) // 10) if fill else 0

        def gap():
            for _ in range(per):
                if fill:
                    g = fill.pop(0)
                    if isinstance(g, tuple):
                        vm(g[1], g[0])
                    else:
                        a(g)
        a(f's_add_u32 s81, s{sRB}, {slot}\ns_and_b32 s81, s81, 15\ns_lshl_b32 s82, s81, 7\ns_mul_i32 s83, s81, 393216')
        if 'x' in part:
            a(f's_add_u32 m0, s{sLX}, {buf}')
            for i in range(4):
                if i:
                    a('s_add_u32 m0, m0, 0x400')
                vm(f'st{slot}', f'buffer_load_dwordx4 v{XO + i}, {S(S_X)}, s82 offen lds')
                gap()
        if 'w' in part:
            a(f's_add_u32 m0, s{sLW}, {buf}')
            for i in range(6):
                if i:
                    a('s_add_u32 m0, m0, 0x400')
                vm(f'st{slot}', f'buffer_load_dwordx4 v{WO + i}, {S(S_WQ)}, s83 offen lds')
                gap()
        while fill:
            g = fill.pop(0)
            if isinstance(g, tuple):
                vm(g[1], g[0])
            else:
                a(g)

    stamp(K, 4)
    issue(0, part='x')
    a('v_bfe_u32 v5, v2, 1, 1\nv_lshlrev_b32 v5, 2, v5\nv_xor_b32 v5, v5, v4')
    a('s_mov_b32 s89, 6144')
    a(f'v_mul_lo_u32 v6, v2, s89\ns_lshl_b32 s82, s{sHP}, 7\nv_add_u32 v6, s82, v6')
    for i in range(6):
        a(f's_mul_i32 s81, s{sJ}, 6\ns_add_u32 s81, s81, {i}\ns_lshr_b32 s82, s81, 3\ns_and_b32 s81, s81, 7')
        a(f's_lshl_b32 s82, s82, 11\ns_mul_i32 s83, s81, {8 * 6144}\ns_add_u32 s82, s82, s83')
        a('s_and_b32 s81, s81, 1\ns_lshl_b32 s81, s81, 1')
        a(f'v_xor_b32 v7, s81, v5\nv_lshl_add_u32 v7, v7, 4, v6\nv_add_u32 v{WO + i}, s82, v7')
    issue(0, part='w')
    issue(1)
    late_srds(K)

    def lines(txt):
        return [l for l in txt.split('\n') if l]

    class Coll:
        def __init__(self):
            self.g = []

        def __call__(self, t):
            self.g += lines(t)

        def group(self, t):
            self.g.append(t)

        def vm(self, tag, t):
            self.g.append((t, tag))

    f3 = Coll()
    f3(f'v_lshlrev_b32 v5, 2, v{V_LANE}\nv_add_u32 v5, {L_CSP}, v5')
    for w in range(4):
        for sg in range(3):
            f3(f'ds_read_b32 v{F + 4 * w + sg}, v5 offset:{768 * w + 256 * sg}')
    f3(f's_lshl_b32 s87, s{sHP}, 4\ns_add_u32 s87, s87, s{sRB}\ns_lshl_b32 s87, s87, 10\ns_add_u32 s87, s87, {WS_COLS}')
    f3(f'v_lshl_add_u32 v6, v{V_LANE}, 4, s87')
    f3('s_waitcnt lgkmcnt(0)')
    for sg in range(3):
        f3(f'v_add_f32 v{F + sg}, v{F + sg}, v{F + 4 + sg}\nv_add_f32 v{F + 8 + sg}, v{F + 8 + sg}, v{F + 12 + sg}')
    for sg in range(3):
        f3(f'v_add_f32 v{F + sg}, v{F + sg}, v{F + 8 + sg}')
    f3(f'v_mov_b32 v{F + 3}, s{sNONCE}')
    f3.vm('pub', f'v_lshrrev_b32 v5, 4, v{V_LANE}\nv_cmp_eq_u32 vcc, s{sJ}, v5\ns_and_saveexec_b64 s[96:97], vcc\n'
          f'buffer_store_dwordx4 {vr(F, 4)}, v6, {S(S_WS)}, 0 offen sc1\ns_mov_b64 exec, s[96:97]')
    f2 = Coll()
    f2(f's_min_u32 s87, s{sF}, 223\ns_lshr_b32 s88, s87, 2\ns_lshl_b32 s88, s88, 13\ns_and_b32 s89, s87, 3\ns_lshl_b32 s89, s89, 10\ns_add_u32 s88, s88, s89')
    f2(f's_lshr_b32 s89, s{sJ}, 1\ns_lshl_b32 s89, s89, 12\ns_add_u32 s88, s88, s89\ns_and_b32 s89, s{sJ}, 1\ns_lshl_b32 s89, s89, 9\ns_add_u32 s88, s88, s89\ns_add_u32 s88, s88, {WS_YPART}')
    f2(f'v_and_b32 v5, 31, v{V_LANE}\nv_lshl_add_u32 v5, v5, 4, s88\nv_mov_b64 v[{F}:{F + 1}], -1\nv_mov_b64 v[{F + 2}:{F + 3}], -1')
    f2.vm('clr', f'buffer_store_dwordx4 {vr(F, 4)}, v5, {S(S_WS)}, 0 offen sc1')
    f2(f's_lshl_b32 s87, s87, 10\ns_lshl_b32 s88, s{sJ}, 8\ns_add_u32 s87, s87, s88\ns_add_u32 s87, s87, {WS_PACT}')
    f2(f'v_and_b32 v5, 15, v{V_LANE}\nv_lshl_add_u32 v5, v5, 4, s87')
    f2.vm('clr', f'buffer_store_dwordx4 {vr(F, 4)}, v5, {S(S_WS)}, 0 offen sc1')
    f2(f's_lshl_b32 s87, s{sB}, 13\ns_lshl_b32 s88, s{sJ}, 11\ns_add_u32 s87, s87, s88\nv_and_b32 v6, 15, v{V_LANE}\nv_lshl_add_u32 v6, v6, 7, s87')
    f2.vm('touch', f'buffer_load_dword v{F + 8}, v6, {S(S_WO)}, 0 offen')
    GS = K.opt.get('gather_slot', 10)
    GR = F
    f9 = Coll()
    f9(f's_lshl_b32 s87, s{sHP}, 14\ns_lshl_b32 s88, s{sJ}, 8\ns_add_u32 s87, s87, s88\ns_add_u32 s87, s87, {WS_COLS}')
    f9(f'v_lshrrev_b32 v5, 4, v{V_LANE}\nv_lshlrev_b32 v5, 10, v5\nv_and_b32 v6, 15, v{V_LANE}\nv_lshl_add_u32 v5, v6, 4, v5\nv_add_u32 v30, s87, v5')
    f9(f's_lshl_b32 s87, s{sRB}, 11\ns_lshl_b32 s88, s{sJ}, 9\ns_add_u32 s87, s87, s88\ns_add_u32 s87, s87, {WS_ROWST}')
    f9(f'v_and_b32 v6, 31, v{V_LANE}\nv_lshl_add_u32 v31, v6, 4, s87')

    def gather(emit):
        for i in range(4):
            emit('gath', f's_mov_b32 s87, {i * 4096}\nbuffer_load_dwordx4 {vr(GR + 4 * i, 4)}, v30, {S(S_WS)}, s87 offen sc1')
        emit('gath', f'buffer_load_dwordx4 {vr(GR + 16, 4)}, v31, {S(S_WS)}, 0 offen sc1')
    gather(f9.vm)

    fa = Coll()
    for sg in range(3):
        for i in range(1, 4):
            fa(f'v_add_f32 v{GR + sg}, v{GR + sg}, v{GR + 4 * i + sg}')
    for sg in range(3):
        xor16_add(fa, GR + sg, GR + 4 + sg)
    for sg in range(3):
        xor32_add(fa, GR + sg, GR + 4 + sg)
    fa(f's_lshl_b32 s87, s{sJ}, 6\ns_add_u32 s87, s87, {L_CS}\nv_and_b32 v5, 15, v{V_LANE}\nv_lshl_add_u32 v5, v5, 2, s87')
    for sg in range(3):
        fa(f'ds_write_b32 v5, v{GR + sg} offset:{256 * sg}')
    fa(f's_lshl_b32 s87, s{sJ}, 7\ns_add_u32 s87, s87, {L_M}\nv_and_b32 v5, 31, v{V_LANE}\nv_lshl_add_u32 v5, v5, 2, s87')
    fa(f'ds_write_b32 v5, v{GR + 16}\nds_write_b32 v5, v{GR + 17} offset:512')

    def cut(g, parts):
        n = -(-len(g) // parts)
        return [g[k * n:(k + 1) * n] for k in range(parts)]
    da = cut(fa.g, 2)
    fills = {0: f3.g, 2: f2.g, GS: f9.g, GS + 2: da[0], GS + 3: da[1]}
    for s in range(16):
        wait_for(f'st{s}')
        if s == 0:
            take_nonce(K)
        if s == GS + 4:
            a('s_waitcnt lgkmcnt(0)')
        a('s_barrier')
        if s == GS + 2:
            wait_for('gath')
            lr, lo = a.newlabel('gretry'), a.newlabel('gok')
            a.label(lr)
            a(f'v_cmp_ne_u32 vcc, s{sNONCE}, v{GR + 3}')
            for i in range(1, 4):
                a(f'v_cmp_ne_u32 s[88:89], s{sNONCE}, v{GR + 4 * i + 3}\ns_or_b64 vcc, vcc, s[88:89]')
            a(f'v_cmp_ne_u32 s[88:89], s{sNONCE}, v{GR + 18}\ns_or_b64 vcc, vcc, s[88:89]')
            a(f's_cbranch_vccz {lo}')
            a(f's_add_u32 s90, s90, 1\ns_cmp_gt_u32 s90, {K.SPIN}\ns_cbranch_scc1 {lo}\ns_sleep 2')
            gather(lambda tag, t: a(t))
            a(f's_waitcnt vmcnt(0)\ns_branch {lr}')
            a.label(lo)
        if s + 2 < 16:
            issue(s + 2, fills.get(s, ()))
        else:
            for g in fills.get(s, ()):
                a(g)
    a('s_waitcnt lgkmcnt(0)')
    a('s_barrier')
    stamp(K, 5)
```

```python
from common import *
import phase3

MF32 = 'v_mfma_f32_32x32x16_bf16'
V_LANE = 1
MASK0 = 4

QF, KF, VF = 8, 16, 24
SS, PP, OO, LL, CI, ONE = 32, 48, 56, 72, 88, 104
vKA = 108
vM, vT0, vT1 = 109, 110, 111
vNINF = 112
sQS, sHD2, sRED, sT, sTE, sHEAD = 80, 81, 82, 83, 84, 85


def key_of(i, h):
    return 16 * ((i >> 2) & 1) + 8 * ((i >> 3) & 1) + 4 * h + (i & 3)


def mask_const(i):
    m = 0
    for l in range(64):
        if key_of(i, l >> 5) <= (l & 31):
            m |= 1 << l
    return m


def read_k(a, off):
    a(f'ds_read_b128 {vr(KF, 4)}, v{vKA} offset:{off}\nds_read_b128 {vr(KF + 4, 4)}, v{vKA} offset:{off + 1024}')


def read_v(a, off):
    a(f'ds_read_b128 {vr(VF, 4)}, v{vKA} offset:{off + 2048}\nds_read_b128 {vr(VF + 4, 4)}, v{vKA} offset:{off + 3072}')


def qk(a, c):
    a(f'{MF32} {vr(SS, 16)}, {vr(KF, 4)}, {vr(QF, 4)}, {c}')
    a(f'{MF32} {vr(SS, 16)}, {vr(KF + 4, 4)}, {vr(QF + 4, 4)}, {vr(SS, 16)}')


def exp_cvt(a):
    for j in range(8):
        a(f'v_exp_f32 v{SS + 2 * j}, v{SS + 2 * j}\nv_exp_f32 v{SS + 2 * j + 1}, v{SS + 2 * j + 1}')
        if j:
            a(f'v_cvt_pk_bf16_f32 v{PP + j - 1}, v{SS + 2 * j - 2}, v{SS + 2 * j - 1}')
    a(f'v_cvt_pk_bf16_f32 v{PP + 7}, v{SS + 14}, v{SS + 15}')


def pv(a, first=False):
    co = '0' if first else vr(OO, 16)
    cl = '0' if first else vr(LL, 16)
    a(f'{MF32} {vr(OO, 16)}, {vr(VF, 4)}, {vr(PP, 4)}, {co}')
    a(f'{MF32} {vr(LL, 16)}, {vr(ONE, 4)}, {vr(PP, 4)}, {cl}')
    a(f'{MF32} {vr(OO, 16)}, {vr(VF + 4, 4)}, {vr(PP + 4, 4)}, {vr(OO, 16)}')
    a(f'{MF32} {vr(LL, 16)}, {vr(ONE, 4)}, {vr(PP + 4, 4)}, {vr(LL, 16)}')


def block_loop(K, name):
    a = K.a
    read_k(a, 0)
    a('s_waitcnt lgkmcnt(0)')
    qk(a, vr(CI, 16))
    a.label(name)
    read_k(a, 4096)
    read_v(a, 0)
    exp_cvt(a)
    a('s_waitcnt lgkmcnt(0)')
    qk(a, vr(CI, 16))
    pv(a)
    a(f'v_add_u32 v{vKA}, 4096, v{vKA}')
    a(f's_add_u32 s{sT}, s{sT}, 1\ns_cmp_lt_u32 s{sT}, s{sTE}\ns_cbranch_scc1 {name}')


def set_block(K, sreg_or_const):
    a = K.a
    a(f's_lshl_b32 s86, {sreg_or_const}, 12\nv_add_u32 v{vKA}, s86, v{vT1}')


def attention(K, stamp):
    a = K.a
    a(f's_and_b32 s{sHD2}, s{sW}, 1\ns_lshr_b32 s86, s{sW}, 1\ns_sub_u32 s87, 5, s86')
    a(f's_cmp_lt_u32 s{sW}, 4\ns_cselect_b32 s{sQS}, s86, s87')
    a(f's_lshl_b32 s{sHEAD}, s{sHP}, 1\ns_add_u32 s{sHEAD}, s{sHEAD}, s{sHD2}')
    a(f's_mov_b32 s{sRED}, 0')
    phase3.wo_dma(K, 0, 6)
    a(f's_lshl_b32 s86, s{sHD2}, 13\ns_lshl_b32 s87, s{sQS}, 11\ns_add_u32 s86, s86, s87\ns_add_u32 s86, s86, {L_Q}')
    a(f'v_lshl_add_u32 v{vT0}, v{V_LANE}, 4, s86')
    a(f'ds_read_b128 {vr(QF, 4)}, v{vT0}\nds_read_b128 {vr(QF + 4, 4)}, v{vT0} offset:1024')
    a(f's_mul_i32 s86, s{sHD2}, {KV_HD}\nv_lshl_add_u32 v{vT1}, v{V_LANE}, 4, s86')
    for i in range(16):
        m = mask_const(i)
        a(f's_mov_b32 s{MASK0 + 2 * i}, 0x{m & 0xffffffff:08x}\ns_mov_b32 s{MASK0 + 2 * i + 1}, 0x{m >> 32:08x}')
    for i in range(4):
        a(f'v_mov_b32 v{ONE + i}, 0x3f803f80')
    a(f'v_mov_b32 v{vNINF}, 0xff800000')
    a.label('L_att_start')
    a(f's_add_u32 s{sT}, s{sQS}, 8')
    set_block(K, f's{sT}')
    read_k(a, 0)
    read_v(a, 0)
    a('s_waitcnt lgkmcnt(2)')
    qk(a, '0')
    for i in range(16):
        a(f'v_cndmask_b32 v{SS + i}, v{vNINF}, v{SS + i}, s[{MASK0 + 2 * i}:{MASK0 + 2 * i + 1}]')
    lab = a.newlabel('havemax')
    a(f's_cmp_lg_u32 s{sRED}, 0\ns_cbranch_scc1 {lab}')
    a(f'v_max3_f32 v{vM}, v{SS}, v{SS + 1}, v{SS + 2}')
    a(f'v_max3_f32 v{vT0}, v{SS + 3}, v{SS + 4}, v{SS + 5}')
    for i in range(6, 16, 4):
        a(f'v_max3_f32 v{vM}, v{vM}, v{SS + i}, v{SS + i + 1}')
        if i + 3 < 16:
            a(f'v_max3_f32 v{vT0}, v{vT0}, v{SS + i + 2}, v{SS + i + 3}')
    a(f'v_max_f32 v{vM}, v{vM}, v{vT0}')
    xor32_op(a, 'v_max_f32', vM, vT0)
    a.label(lab)
    a(f'v_sub_f32 v{CI}, 0, v{vM}\nv_sub_f32 v{CI + 1}, 0, v{vM}')
    for j in range(8):
        a(f'v_pk_add_f32 v[{SS + 2 * j}:{SS + 2 * j + 1}], v[{SS + 2 * j}:{SS + 2 * j + 1}], v[{CI}:{CI + 1}]')
    for j in range(1, 8):
        a(f'v_mov_b64 v[{CI + 2 * j}:{CI + 2 * j + 1}], v[{CI}:{CI + 1}]')
    exp_cvt(a)
    a('s_waitcnt lgkmcnt(0)')
    pv(a, first=True)
    stamp(K, 7)
    lab = a.newlabel('noflag')
    a(f's_cmp_ge_u32 s{sW}, 4\ns_cbranch_scc1 {lab}\ns_cmp_lg_u32 s{sRED}, 0\ns_cbranch_scc1 {lab}')
    a('s_waitcnt vmcnt(6)')
    a(f's_lshl_b32 s86, s{sRB}, 4\ns_add_u32 s86, s86, s{sHP}\ns_lshl_b32 s86, s86, 6\ns_lshl_b32 s87, s{sW}, 2\ns_add_u32 s86, s86, s87\ns_add_u32 s86, s86, {WS_KVFLAG}')
    a(f'v_mov_b32 v{vT0}, s86\nv_mov_b32 v2, s{sNONCE}')
    a(f'v_cmp_eq_u32 vcc, 0, v{V_LANE}\ns_and_saveexec_b64 s[96:97], vcc')
    a(f'buffer_store_dword v2, v{vT0}, {S(S_WS)}, 0 offen sc1\ns_mov_b64 exec, s[96:97]')
    a.label(lab)
    lab = a.newlabel('nolocal')
    a(f's_cmp_eq_u32 s{sQS}, 0\ns_cbranch_scc1 {lab}')
    a(f's_mov_b32 s{sT}, 8\ns_add_u32 s{sTE}, s{sQS}, 8')
    set_block(K, f's{sT}')
    block_loop(K, 'L_att_local')
    a.label(lab)
    stamp(K, 8)
    lskip = a.newlabel('remdone')
    a(f's_cmp_lg_u32 s{sRED}, 0\ns_cbranch_scc1 {lskip}')
    lnod = a.newlabel('nodma')
    a(f's_lshr_b32 s86, s{sW}, 2\ns_add_u32 s87, s{sRB}, s86\ns_cmp_lt_u32 s87, 2\ns_cbranch_scc1 {lnod}')
    a(f's_sub_u32 s87, s87, 2\ns_lshl_b32 s87, s87, 4\ns_add_u32 s87, s87, s{sHP}')
    a(f's_and_b32 s88, s{sW}, 3\ns_lshl_b32 s89, s87, 6\ns_lshl_b32 s91, s88, 2\ns_add_u32 s89, s89, s91\ns_add_u32 s89, s89, {WS_KVFLAG}')
    a(f'v_mov_b32 v{vT0}, s89\ns_mov_b32 s90, 0')
    lp, lok = a.newlabel('kvpoll'), a.newlabel('kvok')
    a.label(lp)
    a(f'buffer_load_dword v2, v{vT0}, {S(S_WS)}, 0 offen sc1\ns_waitcnt vmcnt(0)')
    a(f'v_cmp_ne_u32 vcc, s{sNONCE}, v2\ns_cbranch_vccz {lok}')
    a(f's_add_u32 s90, s90, 1\ns_cmp_gt_u32 s90, {K.SPIN}\ns_cbranch_scc1 {lok}\ns_sleep 1\ns_branch {lp}')
    a.label(lok)
    a('s_and_b32 s91, s88, 1\ns_lshr_b32 s92, s88, 1')
    a(f's_lshl_b32 s87, s87, 15\ns_lshl_b32 s93, s91, 14\ns_add_u32 s87, s87, s93\ns_lshl_b32 s93, s92, 13\ns_add_u32 s87, s87, s93\ns_add_u32 s87, s87, {WS_KV}')
    a(f's_mul_i32 s91, s91, {KV_HD}\ns_lshl_b32 s86, s86, 14\ns_add_u32 s91, s91, s86\ns_add_u32 s91, s91, s93')
    a(f'v_lshlrev_b32 v2, 4, v{V_LANE}\ns_mov_b32 m0, s91')
    for i in range(8):
        if i:
            a('s_add_u32 m0, m0, 0x400\ns_add_u32 s87, s87, 0x400')
        a(f'buffer_load_dwordx4 v2, {S(S_WS)}, s87 offen sc1 lds')
    a('s_waitcnt vmcnt(0)')
    a.label(lnod)
    a('s_barrier')
    phase3.wo_dma(K, 48, 2)
    a.label(lskip)
    stamp(K, 9)
    lnf, lrem, lend = a.newlabel('nofirst'), a.newlabel('remloop'), a.newlabel('remend')
    a(f's_cmp_eq_u32 s{sRB}, 0\ns_cbranch_scc1 {lend}')
    a(f's_cmp_eq_u32 s{sRB}, 1\ns_cbranch_scc1 {lnf}')
    set_block(K, f's{sQS}')
    read_k(a, 0)
    read_v(a, 0)
    a('s_waitcnt lgkmcnt(2)')
    qk(a, vr(CI, 16))
    for i in range(16):
        a(f'v_cndmask_b32 v{SS + i}, v{SS + i}, v{vNINF}, s[{MASK0 + 2 * i}:{MASK0 + 2 * i + 1}]')
    exp_cvt(a)
    a('s_waitcnt lgkmcnt(0)')
    pv(a)
    a(f's_add_u32 s{sT}, s{sQS}, 1\ns_max_u32 s{sT}, s{sT}, 1')
    a(f's_cmp_ge_u32 s{sT}, 8\ns_cbranch_scc1 {lend}\ns_branch {lrem}')
    a.label(lnf)
    a(f's_mov_b32 s{sT}, 4')
    a.label(lrem)
    a(f's_mov_b32 s{sTE}, 8')
    set_block(K, f's{sT}')
    block_loop(K, 'L_att_remote')
    a.label(lend)
    stamp(K, 10)
    lokk = a.newlabel('att_ok')
    a(f's_cmp_lg_u32 s{sRED}, 0\ns_cbranch_scc1 {lokk}')
    a(f'v_mov_b32 v{vT0}, 0x5f800000')
    a(f'v_cmp_nlt_f32 vcc, v{LL}, v{vT0}\ns_cbranch_vccz {lokk}')
    true_max(K)
    a(f's_mov_b32 s{sRED}, 1\ns_branch L_att_start')
    a.label(lokk)
    a('s_nop 5')
    a(f'v_rcp_f32 v{vM}, v{LL}')
    a(f's_lshl_b32 s86, s{sRB}, 3\ns_lshl_b32 s87, s{sQS}, 1\ns_add_u32 s86, s86, s87\ns_lshl_b32 s86, s86, 5\ns_add_u32 s86, s86, s{sHEAD}\ns_lshl_b32 s86, s86, 10\ns_add_u32 s86, s86, {WS_O}')
    a(f'v_bfe_u32 v2, v{V_LANE}, 4, 1\nv_lshlrev_b32 v2, 15, v2')
    a(f'v_lshrrev_b32 v4, 5, v{V_LANE}\nv_lshlrev_b32 v4, 8, v4\nv_add_u32 v2, v2, v4')
    a(f'v_and_b32 v4, 15, v{V_LANE}\nv_lshl_add_u32 v2, v4, 4, v2\nv_add_u32 v2, s86, v2')
    for j in range(8):
        a(f'v_pk_mul_f32 v[{OO + 2 * j}:{OO + 2 * j + 1}], v[{OO + 2 * j}:{OO + 2 * j + 1}], v[{vM - 1}:{vM}] op_sel:[0,1] op_sel_hi:[1,1]')
    for j in range(8):
        a(f'v_cvt_pk_bf16_f32 v{PP + j}, v{OO + 2 * j}, v{OO + 2 * j + 1}')
    a(f'buffer_store_dwordx4 {vr(PP, 4)}, v2, {S(S_WS)}, 0 offen sc1')
    a(f'buffer_store_dwordx4 {vr(PP + 4, 4)}, v2, {S(S_WS)}, 0 offen offset:512 sc1')
    a(f's_lshl_b32 s86, s{sRB}, 2\ns_add_u32 s86, s86, s{sQS}\ns_lshl_b32 s86, s86, 7\ns_lshl_b32 s87, s{sHEAD}, 2\ns_add_u32 s86, s86, s87\ns_add_u32 s86, s86, {WS_OFLAG}')
    a(f'v_mov_b32 v4, s86\nv_mov_b32 v5, s{sNONCE}')
    a('s_waitcnt vmcnt(0)')
    a(f'v_cmp_eq_u32 vcc, 0, v{V_LANE}\ns_and_saveexec_b64 s[96:97], vcc')
    a(f'buffer_store_dword v5, v4, {S(S_WS)}, 0 offen sc1\ns_mov_b64 exec, s[96:97]')
    stamp(K, 11)


def true_max(K):
    a = K.a
    lloop, lnm, ldone = a.newlabel('tm_loop'), a.newlabel('tm_nomask'), a.newlabel('tm_done')
    a(f's_cmp_eq_u32 s{sRB}, 0\ns_cselect_b32 s{sT}, 8, s{sQS}\ns_cmp_eq_u32 s{sRB}, 1\ns_cselect_b32 s{sT}, 4, s{sT}')
    a(f's_add_u32 s{sTE}, s{sQS}, 8')
    a(f's_cmp_ge_u32 s{sT}, s{sTE}\ns_cbranch_scc1 {ldone}')
    a.label(lloop)
    set_block(K, f's{sT}')
    read_k(a, 0)
    a('s_waitcnt lgkmcnt(0)')
    qk(a, '0')
    a(f's_cmp_lt_u32 s{sRB}, 2\ns_cbranch_scc1 {lnm}\ns_cmp_lg_u32 s{sT}, s{sQS}\ns_cbranch_scc1 {lnm}')
    for i in range(16):
        a(f'v_cndmask_b32 v{SS + i}, v{SS + i}, v{vNINF}, s[{MASK0 + 2 * i}:{MASK0 + 2 * i + 1}]')
    a.label(lnm)
    a('s_nop 7\ns_nop 3')
    for i in range(0, 16, 2):
        a(f'v_max3_f32 v{vM}, v{vM}, v{SS + i}, v{SS + i + 1}')
    a(f's_add_u32 s{sT}, s{sT}, 1\ns_cmp_lt_u32 s{sT}, s{sTE}\ns_cbranch_scc1 {lloop}')
    a.label(ldone)
    xor32_op(a, 'v_max_f32', vM, vT0)
```

```python
from common import *

MF16 = 'v_mfma_f32_16x16x32_bf16'
V_LANE = 1
AC, WFA, WFB, VWO, XR, WRP, WRF, SW = 8, 40, 56, 72, 76, 84, 88, 96
T0 = 97
OF = 120
HP, HF = 40, 48
ST = 64
XNP = 120
OUTP = 128
sTB, sKH = 80, 81
L_WO0, L_WO1, L_EX = 98304, 0, 65536
L_STA = 0
L_ST2 = 4096
L_RR = 8192


def wo_dma(K, base, per):
    a = K.a
    a(f'v_lshrrev_b32 v2, 3, v{V_LANE}\nv_and_b32 v4, 7, v{V_LANE}')
    a('v_bfe_u32 v5, v2, 1, 2\nv_lshlrev_b32 v5, 1, v5\nv_xor_b32 v5, v5, v4')
    a(f's_mul_i32 s86, s{sW}, {per}\ns_add_u32 s86, s86, {base}')
    a(f's_lshl_b32 s87, s86, 3\nv_add_u32 v6, s87, v2\nv_lshlrev_b32 v6, 11, v6')
    a(f's_lshl_b32 s87, s{sCB}, 7\nv_lshl_add_u32 v6, v5, 4, v6\nv_add_u32 v6, s87, v6')
    if base < 64:
        a(f's_lshl_b32 s86, s86, 10\ns_add_u32 m0, s86, {L_WO0}')
    else:
        assert L_WO1 == 0
        a('s_lshl_b32 s86, s86, 10\ns_sub_u32 m0, s86, 65536')
    for i in range(per):
        if i:
            a('s_add_u32 m0, m0, 0x400')
        a(f's_mov_b32 s87, {i * 16384}\nbuffer_load_dwordx4 v6, {S(S_WO)}, s87 offen lds')


def outproj(K, stamp):
    a = K.a
    a(f's_and_b32 s{sTB}, s{sW}, 3\ns_lshr_b32 s{sKH}, s{sW}, 2')
    a('s_barrier')
    wo_dma(K, 64, 8)
    a(f'v_lshrrev_b32 v2, 4, v{V_LANE}\nv_and_b32 v4, 15, v{V_LANE}')
    a('v_lshrrev_b32 v6, 1, v2\nv_lshlrev_b32 v6, 4, v6\nv_and_b32 v7, 1, v2\nv_lshl_add_u32 v6, v7, 2, v6')
    a('v_lshrrev_b32 v8, 2, v4\nv_add_u32 v6, v6, v8\nv_lshlrev_b32 v6, 7, v6')
    a('v_and_b32 v8, 3, v4\nv_lshl_add_u32 v6, v8, 3, v6')
    a(f's_cmp_eq_u32 s{sKH}, 0\ns_cselect_b32 s87, {L_WO0}, {L_WO1}\nv_add_u32 v6, s87, v6')
    a('v_bfe_u32 v8, v4, 3, 1\nv_lshl_add_u32 v8, v7, 1, v8')
    a(f's_lshl_b32 s87, s{sKH}, 1\nv_xor_b32 v8, s87, v8')
    for n in range(4):
        a(f'v_xor_b32 v9, {n}, v8\nv_lshl_add_u32 v{VWO + n}, v9, 5, v6')
    a(f's_lshl_b32 s86, s{sCB}, 7\ns_lshl_b32 s87, s{sKH}, 6\ns_add_u32 s86, s86, s87')
    a(f'v_lshl_add_u32 v{T0}, v2, 3, s86')
    a(f's_lshl_b32 s87, s{sRB2}, 7\ns_lshl_b32 s88, s{sTB}, 5\ns_add_u32 s87, s87, s88\nv_add_u32 v6, s87, v4\nv_lshl_add_u32 v{T0 + 1}, v6, 11, v{T0}')
    a(f'v_lshlrev_b32 v{T0 + 2}, 4, v{V_LANE}')
    a(f's_lshl_b32 s86, s{sRB2}, 3\ns_lshl_b32 s87, s{sTB}, 1\ns_add_u32 s86, s86, s87\ns_lshl_b32 s86, s86, 5\ns_lshl_b32 s87, s{sKH}, 4\ns_add_u32 s86, s86, s87\ns_lshl_b32 s86, s86, 10\ns_add_u32 s86, s86, {WS_O}')
    a(f'v_add_u32 v{T0 + 11}, s86, v{T0 + 2}\nv_add_u32 v{T0 + 12}, 32768, v{T0 + 11}')
    a(f's_lshl_b32 s86, s{sRB2}, 2\ns_add_u32 s86, s86, s{sTB}\ns_lshl_b32 s86, s86, 7\ns_lshl_b32 s87, s{sKH}, 6\ns_add_u32 s86, s86, s87\ns_add_u32 s86, s86, {WS_OFLAG}')
    a(f'v_and_b32 v6, 15, v{V_LANE}\nv_lshl_add_u32 v6, v6, 2, s86\ns_mov_b32 s90, 0')
    lp, lok = a.newlabel('opoll'), a.newlabel('ook')
    a.label(lp)
    a(f'buffer_load_dword v7, v6, {S(S_WS)}, 0 offen sc1\ns_waitcnt vmcnt(0)')
    a(f'v_cmp_ne_u32 vcc, s{sNONCE}, v7\ns_cbranch_vccz {lok}')
    a(f's_add_u32 s90, s90, 1\ns_cmp_gt_u32 s90, {K.SPIN}\ns_cbranch_scc1 {lok}\ns_sleep 1\ns_branch {lp}')
    a.label(lok)
    stamp(K, 16)
    NSLOT, AHEAD = 10, K.opt.get('ahead', 7)
    slot = lambda hh: OF + 8 * (hh % NSLOT)
    q = []

    def vm(tag, t):
        a(t)
        q.append(tag)

    def oload(hh):
        a(f's_mov_b32 s87, {(hh >> 2) * 4096}')
        for b in range(2):
            vm(f'o{hh}', f'buffer_load_dwordx4 {vr(slot(hh) + 4 * b, 4)}, v{T0 + 11 + b}, {S(S_WS)}, s87 offen offset:{(hh % 4) * 1024} sc1')

    def wait_vm(tag, extra=''):
        last = max(i for i, t in enumerate(q) if t == tag)
        a(f's_waitcnt vmcnt({len(q) - 1 - last}){extra}')
    WALL = T0 + 3
    for hh in range(2):
        oload(hh)
    for nb in range(2):
        vm('wr', f'buffer_load_dwordx2 {vr(WRP + 2 * nb, 2)}, v{T0}, {S(S_WR)}, 0 offen offset:{32 * nb}')
    vm('wr', f'buffer_load_dwordx4 {vr(WALL, 4)}, v{T0 + 2}, {S(S_WR)}, 0 offen')
    vm('wr', f'buffer_load_dwordx4 {vr(WALL + 4, 4)}, v{T0 + 2}, {S(S_WR)}, 0 offen offset:1024')
    for hh in range(2, AHEAD):
        oload(hh)
    a('s_barrier')

    def wreads(Sset, hh):
        r = []
        for n in range(4):
            for rd in range(2):
                r.append(f'ds_read_b64_tr_b16 {vr(Sset + 4 * n + 2 * rd, 2)}, v{VWO + n} offset:{hh * 4096 + rd * 1024}')
        return r
    fill = []
    ta, tb_ = T0 + 13, T0 + 14
    for d in range(8):
        fill.append(f'v_lshlrev_b32 v{ta}, 16, v{WALL + d}')
        fill.append(f'v_and_b32 v{tb_}, 0xffff0000, v{WALL + d}')
        if d == 0:
            fill.append(f'v_add_f32 v{SW}, v{ta}, v{tb_}')
        else:
            fill.append(f'v_add_f32 v{ta}, v{ta}, v{tb_}')
            fill.append(f'v_add_f32 v{SW}, v{SW}, v{ta}')

    class C:
        def __call__(self, t):
            fill.extend(l for l in t.split('\n') if l)
    wave_sum(C(), SW, ta)
    for nb in range(2):
        for d in range(2):
            fill.append(f'v_lshlrev_b32 v{WRF + 4 * nb + 2 * d}, 16, v{WRP + 2 * nb + d}')
            fill.append(f'v_and_b32 v{WRF + 4 * nb + 2 * d + 1}, 0xffff0000, v{WRP + 2 * nb + d}')
    for x in wreads(WFA, 0):
        a(x)
    for hh in range(16):
        cur, nxt = (WFA, WFB) if hh % 2 == 0 else (WFB, WFA)
        r = wreads(nxt, hh + 1) if hh < 15 else []
        if hh + AHEAD < 16:
            oload(hh + AHEAD)
        elif hh + AHEAD == 16:
            a('s_mov_b32 s87, 32768')
            for b in range(2):
                for nb in range(2):
                    vm('x', f'buffer_load_dwordx2 {vr(XR + 4 * b + 2 * nb, 2)}, v{T0 + 1}, {S(S_X)}, {"0" if b == 0 else "s87"} offen offset:{32 * nb}')
        wait_vm(f'o{hh}', ' lgkmcnt(0)')
        k = 0
        for n in range(4):
            for b in range(2):
                c = vr(AC + 8 * n + 4 * b, 4)
                a(f'{MF16} {c}, {vr(cur + 4 * n, 4)}, {vr(slot(hh) + 4 * b, 4)}, {c if hh else "0"}')
                if k < len(r):
                    a(r[k])
                if hh >= 3 and fill:
                    a(fill.pop(0))
                k += 1
    assert not fill
    stamp(K, 17)
    a(f's_lshl_b32 s86, s{sTB}, 13\ns_lshl_b32 s87, s{sKH}, 12\ns_add_u32 s88, s86, s87\ns_add_u32 s88, s88, {L_EX}')
    a(f's_xor_b32 s87, s87, 4096\ns_add_u32 s86, s86, s87\ns_add_u32 s86, s86, {L_EX}')
    a(f'v_lshl_add_u32 v6, v{V_LANE}, 4, s86\nv_lshl_add_u32 v7, v{V_LANE}, 4, s88')
    for n in range(2):
        for b in range(2):
            a(f'ds_write_b128 v6, {vr(AC + 8 * (2 + n) + 4 * b, 4)} offset:{(2 * n + b) * 1024}')
    a('s_waitcnt vmcnt(0)')
    for b in range(2):
        for n in range(2):
            for h in range(2):
                x = XR + 4 * b + 2 * n + h
                d = HF + 8 * b + 4 * n + 2 * h
                a(f'v_lshlrev_b32 v{d}, 16, v{x}\nv_and_b32 v{d + 1}, 0xffff0000, v{x}')
    for n in range(2):
        for b in range(2):
            c = AC + 8 * n + 4 * b
            for h in range(2):
                d = HF + 8 * b + 4 * n + 2 * h
                a(f'v_pk_add_f32 v[{d}:{d + 1}], v[{d}:{d + 1}], v[{c + 2 * h}:{c + 2 * h + 1}]')
    a('s_waitcnt lgkmcnt(0)\ns_barrier')
    U = OF + 16
    for n in range(2):
        for b in range(2):
            a(f'ds_read_b128 {vr(OF + 4 * (2 * n + b), 4)}, v7 offset:{(2 * n + b) * 1024}')
    K.hook('ffn_dma0')
    a('s_waitcnt lgkmcnt(0)')
    for n in range(2):
        for b in range(2):
            e = OF + 4 * (2 * n + b)
            for h in range(2):
                d = HF + 8 * b + 4 * n + 2 * h
                a(f'v_pk_add_f32 v[{d}:{d + 1}], v[{d}:{d + 1}], v[{e + 2 * h}:{e + 2 * h + 1}]')
    p = lambda b, j: f'v[{HF + 8 * b + 2 * j}:{HF + 8 * b + 2 * j + 1}]'
    w = lambda j: f'v[{WRF + 2 * j}:{WRF + 2 * j + 1}]'
    tt = lambda b, k: f'v[{U + 6 * b + 2 * k}:{U + 6 * b + 2 * k + 1}]'
    for b in range(2):
        a(f'v_pk_add_f32 {tt(b, 0)}, {p(b, 0)}, {p(b, 1)}')
        a(f'v_pk_mul_f32 {tt(b, 1)}, {p(b, 0)}, {p(b, 0)}')
        a(f'v_pk_mul_f32 {tt(b, 2)}, {p(b, 0)}, {w(0)}')
    for b in range(2):
        a(f'v_pk_fma_f32 {tt(b, 1)}, {p(b, 1)}, {p(b, 1)}, {tt(b, 1)}')
        a(f'v_pk_fma_f32 {tt(b, 2)}, {p(b, 1)}, {w(1)}, {tt(b, 2)}')
    for j in (2, 3):
        for b in range(2):
            a(f'v_pk_add_f32 {tt(b, 0)}, {tt(b, 0)}, {p(b, j)}')
            a(f'v_pk_fma_f32 {tt(b, 1)}, {p(b, j)}, {p(b, j)}, {tt(b, 1)}')
            a(f'v_pk_fma_f32 {tt(b, 2)}, {p(b, j)}, {w(j)}, {tt(b, 2)}')
    for b in range(2):
        for k in range(3):
            a(f'v_add_f32 v{ST + 4 * b + k}, v{U + 6 * b + 2 * k}, v{U + 6 * b + 2 * k + 1}')
    for k in range(3):
        a(f'v_permlane16_swap_b32 v{ST + k}, v{ST + 4 + k}')
    for k in range(3):
        a(f'v_add_f32 v{ST + k}, v{ST + k}, v{ST + 4 + k}')
    for k in range(3):
        xor32_add(a, ST + k, ST + 4 + k)
    a(f'v_mov_b32 v{ST + 3}, s{sNONCE}')
    a(f's_lshl_b32 s86, s{sTB}, 10\ns_lshl_b32 s87, s{sKH}, 9\ns_add_u32 s88, s86, s87\ns_add_u32 s88, s88, {L_STA}')
    a(f'v_and_b32 v6, 31, v{V_LANE}\nv_lshl_add_u32 v7, v6, 4, s88')
    a(f'ds_write_b128 v7, {vr(ST, 4)}')
    a('s_waitcnt lgkmcnt(0)\ns_barrier')
    lg, lgj = a.newlabel('gather'), a.newlabel('gatherj')
    a(f's_cmp_eq_u32 s{sKH}, 0\ns_cbranch_scc1 {lg}')
    stamp(K, 18)
    K.hook('ffn_dma1')
    a(f's_branch {lgj}')
    a.label(lg)
    a(f'ds_read_b128 {vr(U + 4, 4)}, v7 offset:512')
    a(f's_lshl_b32 s86, s{sRB2}, 4\ns_add_u32 s86, s86, s{sCB}\ns_lshl_b32 s86, s86, 7\ns_lshl_b32 s87, s{sTB}, 5\ns_add_u32 s86, s86, s87\ns_lshl_b32 s86, s86, 4\ns_add_u32 s86, s86, {WS_ST2}')
    a('v_lshl_add_u32 v6, v6, 4, s86')
    a('s_waitcnt lgkmcnt(0)')
    for k in range(3):
        a(f'v_add_f32 v{ST + k}, v{ST + k}, v{U + 4 + k}')
    a(f'v_cmp_gt_u32 vcc, 32, v{V_LANE}\ns_and_saveexec_b64 s[96:97], vcc')
    a(f'buffer_store_dwordx4 {vr(ST, 4)}, v6, {S(S_WS)}, 0 offen sc1\ns_mov_b64 exec, s[96:97]')
    stamp(K, 18)
    a(f's_lshl_b32 s86, s{sRB2}, 4\ns_lshl_b32 s86, s86, 7\ns_lshl_b32 s87, s{sTB}, 5\ns_add_u32 s86, s86, s87\ns_lshl_b32 s86, s86, 4\ns_add_u32 s86, s86, {WS_ST2}')
    a(f'v_lshrrev_b32 v6, 5, v{V_LANE}\nv_lshlrev_b32 v6, 11, v6\nv_and_b32 v7, 31, v{V_LANE}\nv_lshl_add_u32 v6, v7, 4, v6\nv_add_u32 v6, s86, v6')
    a('s_mov_b32 s90, 0')
    lp, lok = a.newlabel('s2poll'), a.newlabel('s2ok')
    a.label(lp)
    for i in range(8):
        a(f's_mov_b32 s87, {i * 4096}\nbuffer_load_dwordx4 {vr(U + 4 * i, 4)}, v6, {S(S_WS)}, s87 offen sc1')
    a('s_waitcnt vmcnt(0)')
    a(f'v_cmp_ne_u32 vcc, s{sNONCE}, v{U + 3}')
    for i in range(1, 8):
        a(f'v_cmp_ne_u32 s[88:89], s{sNONCE}, v{U + 4 * i + 3}\ns_or_b64 vcc, vcc, s[88:89]')
    a(f's_cbranch_vccz {lok}')
    a(f's_add_u32 s90, s90, 1\ns_cmp_gt_u32 s90, {K.SPIN}\ns_cbranch_scc1 {lok}\ns_sleep 1\ns_branch {lp}')
    a.label(lok)
    for st in (4, 2, 1):
        for i in range(st):
            for k in range(3):
                a(f'v_add_f32 v{U + 4 * i + k}, v{U + 4 * i + k}, v{U + 4 * (i + st) + k}')
    for k in range(3):
        xor32_add(a, U + k, U + 4 + k)
    m, v, r = U, U + 1, U + 2
    a(f's_mov_b32 s88, {f32hex(1.0 / 1024)}\ns_mov_b32 s89, {f32hex(1e-5)}')
    a(f'v_mul_f32 v{m}, s88, v{m}\nv_mul_f32 v{v}, s88, v{v}')
    a(f'v_fma_f32 v{v}, -v{m}, v{m}, v{v}\nv_max_f32 v{v}, 0, v{v}')
    round_bf16(a, v, U + 4)
    round_bf16(a, m, U + 5)
    a(f'v_add_f32 v{v}, s89, v{v}')
    round_bf16(a, v, U + 4)
    a(f'v_sqrt_f32 v{v}, v{v}')
    round_bf16(a, v, U + 4)
    a(f'v_rcp_f32 v{v}, v{v}')
    a(f'v_fma_f32 v{r}, -v{m}, v{SW}, v{r}')
    a(f'v_mul_f32 v{r}, v{r}, v{v}\nv_mul_f32 v{m}, v{m}, v{v}')
    a(f'v_sub_f32 v{U + 5}, 0, v{m}\nv_mov_b32 v{U + 4}, v{v}\nv_mov_b32 v{U + 6}, v{r}')
    a(f's_lshl_b32 s86, s{sTB}, 9\ns_add_u32 s88, s86, {L_ST2}')
    a(f'v_lshl_add_u32 v7, v7, 4, s88')
    a(f'ds_write_b128 v7, {vr(U + 4, 4)}')
    a('s_waitcnt lgkmcnt(0)')
    a.label(lgj)
    a('s_barrier')
    K.hook('ffn_dma2')
    stamp(K, 19)
    a(f's_lshl_b32 s86, s{sTB}, 9\ns_add_u32 s86, s86, {L_ST2}\nv_and_b32 v6, 15, v{V_LANE}\nv_lshl_add_u32 v6, v6, 4, s86')
    a(f'v_lshlrev_b32 v7, 4, v{V_LANE}\nv_add_u32 v7, {L_ST2}, v7')
    a(f'ds_read_b32 v{U}, v7 offset:8\nds_read_b32 v{U + 1}, v7 offset:1032')
    for b in range(2):
        a(f'ds_read_b128 {vr(ST + 4 * b, 4)}, v6 offset:{256 * b}')
    candidates(K, stamp, U)
    for b in range(2):
        a(f'v_add_f32 v{ST + 4 * b + 2}, 1.0, v{ST + 4 * b}')
    for b in range(2):
        ab = f'v[{ST + 4 * b + 2}:{ST + 4 * b + 3}]'
        bb = f'v[{ST + 4 * b}:{ST + 4 * b + 1}]'
        for j in range(4):
            i = 4 * b + j
            a(f'v_pk_fma_f32 v[{U + 2 * i}:{U + 2 * i + 1}], v[{HF + 2 * i}:{HF + 2 * i + 1}], {ab}, {bb} op_sel:[0,0,1] op_sel_hi:[1,0,1]')
    for i in range(8):
        a(f'v_cvt_pk_bf16_f32 v{OUTP + i}, v{U + 2 * i}, v{U + 2 * i + 1}')
    a(f'v_lshrrev_b32 v2, 4, v{V_LANE}\nv_and_b32 v4, 15, v{V_LANE}')
    a('v_and_b32 v7, 1, v2\nv_lshlrev_b32 v7, 5, v7\nv_lshrrev_b32 v8, 1, v2\nv_lshl_add_u32 v7, v8, 4, v7')
    a(f's_lshl_b32 s86, s{sCB}, 7\ns_lshl_b32 s87, s{sKH}, 6\ns_add_u32 s86, s86, s87\nv_add_u32 v7, s86, v7')
    a(f's_lshl_b32 s87, s{sRB2}, 7\ns_lshl_b32 s88, s{sTB}, 5\ns_add_u32 s87, s87, s88\nv_add_u32 v8, s87, v4\nv_lshl_add_u32 v7, v8, 11, v7')
    for b in range(2):
        for h in range(2):
            a(f'v_permlane16_swap_b32 v{OUTP + 4 * b + h}, v{OUTP + 4 * b + 2 + h}')
    a(f'buffer_store_dwordx4 {vr(OUTP, 4)}, v7, {S(S_OUT)}, 0 offen sc1')
    a(f's_mov_b32 s87, 32768\nbuffer_store_dwordx4 {vr(OUTP + 4, 4)}, v7, {S(S_OUT)}, s87 offen sc1')
    stamp(K, 21)


def wave_max_u32(a, v, t):
    for ctl in ('quad_perm:[1,0,3,2]', 'quad_perm:[2,3,0,1]', 'row_half_mirror', 'row_mirror'):
        a(f'v_max_u32_dpp v{v}, v{v}, v{v} {ctl} row_mask:0xf bank_mask:0xf')
    xor16_op(a, 'v_max_u32', v, t)
    xor32_op(a, 'v_max_u32', v, t)


def sortable(a, dst, src, t):
    a(f'v_ashrrev_i32 v{t}, 31, v{src}\nv_or_b32 v{t}, 0x80000000, v{t}\nv_xor_b32 v{dst}, v{src}, v{t}')


sI1, sI2 = 82, 83


def candidates(K, stamp, U):
    a = K.a
    R0, R1, K0, K1, HI, LO, M1, TT = U, U + 1, U + 2, U + 3, U + 4, U + 5, U + 6, U + 7
    a('s_waitcnt lgkmcnt(0)')
    sortable(a, K0, R0, TT)
    sortable(a, K1, R1, TT)
    a(f'v_sub_u32 v{TT}, 127, v{V_LANE}\ns_movk_i32 s88, 0xff80')
    a(f'v_and_or_b32 v{K0}, v{K0}, s88, v{TT}\nv_subrev_u32 v{TT}, 64, v{TT}\nv_and_or_b32 v{K1}, v{K1}, s88, v{TT}')
    a(f'v_max_u32 v{HI}, v{K0}, v{K1}\nv_min_u32 v{LO}, v{K0}, v{K1}\nv_mov_b32 v{M1}, v{HI}')
    wave_max_u32(a, M1, TT)
    a(f'v_cmp_eq_u32 vcc, v{M1}, v{HI}')
    a(f'v_cndmask_b32 v{HI}, v{HI}, v{LO}, vcc')
    wave_max_u32(a, HI, TT)
    a(f'v_readfirstlane_b32 s{sI1}, v{M1}\nv_readfirstlane_b32 s{sI2}, v{HI}')
    a(f's_and_b32 s{sI1}, s{sI1}, 127\ns_sub_u32 s{sI1}, 127, s{sI1}\ns_and_b32 s{sI2}, s{sI2}, 127\ns_sub_u32 s{sI2}, 127, s{sI2}')
    lab = a.newlabel('nocand')
    a(f's_cmp_lg_u32 s{sCB}, 0\ns_cbranch_scc1 {lab}\ns_cmp_lg_u32 s{sW}, 0\ns_cbranch_scc1 {lab}')
    a(f's_lshl_b32 s86, s{sI1}, 4\ns_add_u32 s86, s86, {L_ST2 + 8}\nv_mov_b32 v6, s86\nds_read_b32 v{U + 8}, v6')
    a(f's_lshl_b32 s86, s{sI2}, 4\ns_add_u32 s86, s86, {L_ST2 + 8}\nv_mov_b32 v7, s86\nds_read_b32 v{U + 9}, v7')
    a(f's_lshl_b32 s86, s{sRB2}, 7\ns_add_u32 s87, s86, s{sI1}\ns_add_u32 s88, s86, s{sI2}\ns_lshl_b32 s88, s88, 16\ns_or_b32 s87, s87, s88')
    a(f'v_mov_b32 v{U + 10}, s87\nv_mov_b32 v{U + 11}, s{sNONCE}')
    a(f's_lshl_b32 s86, s{sRB2}, 6\ns_add_u32 s86, s86, {WS_CAND}\nv_mov_b32 v6, s86')
    a(f's_waitcnt lgkmcnt(0)\nv_cmp_eq_u32 vcc, 0, v{V_LANE}\ns_and_saveexec_b64 s[96:97], vcc')
    a(f'buffer_store_dwordx4 {vr(U + 8, 4)}, v6, {S(S_WS)}, 0 offen sc1\ns_mov_b64 exec, s[96:97]')
    a.label(lab)
    a(f'v_lshrrev_b32 v2, 4, v{V_LANE}\nv_and_b32 v4, 15, v{V_LANE}')
    G = U + 12
    a('s_mov_b32 s88, 0x05040100\ns_mov_b32 s89, 0x07060302')
    for slot, sI in ((0, sI1), (1, sI2)):
        lskip, lb1, lst = a.newlabel('crskip'), a.newlabel('crb1'), a.newlabel('crst')
        a(f's_lshr_b32 s86, s{sI}, 5\ns_cmp_lg_u32 s86, s{sTB}\ns_cbranch_scc1 {lskip}')
        a(f's_bitcmp1_b32 s{sI}, 4\ns_cbranch_scc1 {lb1}')
        for b in range(2):
            if b == 1:
                a.label(lb1)
            rs = f'v[{ST + 4 * b}:{ST + 4 * b + 1}]'
            for j in range(4):
                hp = f'v[{HF + 8 * b + 2 * j}:{HF + 8 * b + 2 * j + 1}]'
                a(f'v_pk_fma_f32 v[{G + 16 + 2 * j}:{G + 17 + 2 * j}], {hp}, {rs}, {rs} op_sel:[0,0,1] op_sel_hi:[1,0,1]')
            for j in range(4):
                a(f'v_cvt_pk_bf16_f32 v{G + 24 + j}, v{HF + 8 * b + 2 * j}, v{HF + 8 * b + 2 * j + 1}')
                a(f'v_cvt_pk_bf16_f32 v{G + 28 + j}, v{G + 16 + 2 * j}, v{G + 17 + 2 * j}')
            for j in range(4):
                a(f'v_perm_b32 v{G + 4 * j}, v{G + 28 + j}, v{G + 24 + j}, s88\nv_perm_b32 v{G + 4 * j + 2}, v{G + 28 + j}, v{G + 24 + j}, s89')
                a(f'v_mov_b32 v{G + 4 * j + 1}, s{sNONCE}\nv_mov_b32 v{G + 4 * j + 3}, s{sNONCE}')
            if b == 0:
                a(f's_branch {lst}')
        a.label(lst)
        a(f's_lshl_b32 s86, s{sRB2}, 1\ns_add_u32 s86, s86, {slot}\ns_lshl_b32 s86, s86, 10\ns_lshl_b32 s87, s{sCB}, 6\ns_add_u32 s86, s86, s87\ns_lshl_b32 s87, s{sKH}, 5\ns_add_u32 s86, s86, s87\ns_lshl_b32 s86, s86, 3\ns_add_u32 s86, s86, {WS_CROW}')
        a(f'v_lshl_add_u32 v6, v2, 5, s86')
        a(f's_and_b32 s87, s{sI}, 15\nv_cmp_eq_u32 vcc, s87, v4\ns_and_saveexec_b64 s[96:97], vcc')
        for j in range(4):
            a(f'buffer_store_dwordx4 {vr(G + 4 * j, 4)}, v6, {S(S_WS)}, 0 offen offset:{(j >> 1) * 128 + (j & 1) * 16} sc1')
        a('s_mov_b64 exec, s[96:97]')
        a.label(lskip)
    stamp(K, 20)
```

```python
from common import *
import phase3

MF16 = 'v_mfma_f32_16x16x32_bf16'
MF32 = 'v_mfma_f32_32x32x16_bf16'
V_LANE = 1
L_G, L_U, L_D = 98304, 131072, 32768
L_XR = 16384
L_SEL = 12288
L_GU = 20480
L_RED = 24576
FST = 200
NF = 224
LOG2E = 1.4426950408889634


def ffn_dma(K, m):
    a = K.a
    lab = a.newlabel('noffn')
    a(f's_cmp_ge_u32 s{sF}, {NF}\ns_cbranch_scc1 {lab}\ns_cmp_lt_u32 s{sW}, 4\ns_cbranch_scc1 {lab}')
    a(f's_lshr_b32 s86, s{sF}, 2\ns_and_b32 s87, s{sF}, 3\ns_sub_u32 s91, s{sW}, 4')
    if m < 2:
        a(f'v_lshrrev_b32 v2, 3, v{V_LANE}\nv_and_b32 v4, 7, v{V_LANE}')
        a('v_bfe_u32 v5, v2, 1, 1\nv_lshlrev_b32 v5, 2, v5\nv_xor_b32 v5, v5, v4')
        a('s_lshl_b32 s88, s87, 8\ns_lshl_b32 s89, s91, 6\ns_add_u32 s88, s88, s89\nv_add_u32 v6, s88, v2\ns_mov_b32 s88, 7168\nv_mul_lo_u32 v6, v6, s88')
        a('s_lshl_b32 s88, s86, 7\nv_add_u32 v6, s88, v6')
        a('v_lshl_add_u32 v7, v5, 4, v6\nv_xor_b32 v5, 2, v5\nv_lshl_add_u32 v6, v5, 4, v6')
        a(f's_lshl_b32 s89, s91, 13\ns_add_u32 m0, s89, {L_G if m == 0 else L_U}')
        for i in range(8):
            if i:
                a('s_add_u32 m0, m0, 0x400')
            a(f's_mov_b32 s88, {i * 8 * 7168}\nbuffer_load_dwordx4 v{7 if i % 2 == 0 else 6}, {S(S_WG if m == 0 else S_WU)}, s88 offen lds')
    else:
        a(f's_lshl_b32 s88, s86, 6\ns_lshl_b32 s89, s91, 4\ns_add_u32 s88, s88, s89\nv_lshrrev_b32 v6, 5, v{V_LANE}\nv_add_u32 v6, s88, v6\nv_lshlrev_b32 v6, 11, v6')
        a(f's_lshl_b32 s88, s87, 9\nv_and_b32 v7, 31, v{V_LANE}\nv_lshl_add_u32 v6, v7, 4, v6\nv_add_u32 v6, s88, v6')
        a(f's_lshl_b32 s89, s91, 13\ns_add_u32 m0, s89, {L_D}')
        for i in range(8):
            if i:
                a('s_add_u32 m0, m0, 0x400')
            a(f's_mov_b32 s88, {i * 4096}\nbuffer_load_dwordx4 v6, {S(S_WD)}, s88 offen lds')
    a.label(lab)


def sigmoid(a, v, t):
    a(f'v_mul_f32 v{t}, {f32hex(-LOG2E)}, v{v}\nv_exp_f32 v{t}, v{t}\nv_add_f32 v{t}, 1.0, v{t}\nv_rcp_f32 v{v}, v{t}')


def out_flag(K):
    a = K.a
    a(f's_lshl_b32 s86, s{sRB2}, 4\ns_add_u32 s86, s86, s{sCB}\ns_lshl_b32 s86, s86, 3\ns_add_u32 s86, s86, s{sW}\ns_lshl_b32 s86, s86, 2\ns_add_u32 s86, s86, {WS_OUTFLAG}')
    a(f'v_mov_b32 v6, s86\nv_mov_b32 v7, s{sNONCE}')
    a(f'v_cmp_eq_u32 vcc, 0, v{V_LANE}\ns_and_saveexec_b64 s[96:97], vcc')
    a(f'buffer_store_dword v7, v6, {S(S_WS)}, 0 offen sc1\ns_mov_b64 exec, s[96:97]')


def tail(K, stamp):
    a = K.a
    U = 136
    lffn = a.newlabel('ffnwg')
    a(f's_cmp_lt_u32 s{sF}, {NF}\ns_cbranch_scc1 {lffn}')
    a('s_waitcnt vmcnt(0)')
    out_flag(K)
    a('s_branch L_fin')
    a.label(lffn)
    lw = a.newlabel('selj')
    a(f's_cmp_ge_u32 s{sW}, 2\ns_cbranch_scc1 {lw}')
    a(f'v_and_b32 v6, 15, v{V_LANE}\nv_lshlrev_b32 v6, 6, v6\nv_add_u32 v6, {WS_CAND}, v6\ns_mov_b32 s90, 0')
    lp, lok = a.newlabel('cpoll'), a.newlabel('cok')
    a.label(lp)
    a(f'buffer_load_dwordx4 {vr(U, 4)}, v6, {S(S_WS)}, 0 offen sc1\ns_waitcnt vmcnt(0)')
    a(f'v_cmp_ne_u32 vcc, s{sNONCE}, v{U + 3}\ns_cbranch_vccz {lok}')
    a(f's_add_u32 s90, s90, 1\ns_cmp_gt_u32 s90, {K.SPIN}\ns_cbranch_scc1 {lok}\ns_branch {lp}')
    a.label(lok)
    stamp(K, 22)
    K0, K1, HI, LO, M1, TT = U + 4, U + 5, U + 6, U + 7, U + 8, U + 9
    phase3.sortable(a, K0, U, TT)
    phase3.sortable(a, K1, U + 1, TT)
    a(f's_movk_i32 s88, 0xf800\ns_movk_i32 s89, 0x7ff')
    a(f'v_and_b32 v{TT}, 0xffff, v{U + 2}\nv_sub_u32 v{TT}, s89, v{TT}\nv_and_or_b32 v{K0}, v{K0}, s88, v{TT}')
    a(f'v_lshrrev_b32 v{TT}, 16, v{U + 2}\nv_sub_u32 v{TT}, s89, v{TT}\nv_and_or_b32 v{K1}, v{K1}, s88, v{TT}')
    a(f'v_max_u32 v{HI}, v{K0}, v{K1}\nv_min_u32 v{LO}, v{K0}, v{K1}\nv_mov_b32 v{M1}, v{HI}')
    for ctl in ('quad_perm:[1,0,3,2]', 'quad_perm:[2,3,0,1]', 'row_half_mirror', 'row_mirror'):
        a(f'v_max_u32_dpp v{M1}, v{M1}, v{M1} {ctl} row_mask:0xf bank_mask:0xf')
    a(f'v_cmp_eq_u32 vcc, v{M1}, v{HI}')
    a(f'v_cndmask_b32 v{HI}, v{HI}, v{LO}, vcc')
    for ctl in ('quad_perm:[1,0,3,2]', 'quad_perm:[2,3,0,1]', 'row_half_mirror', 'row_mirror'):
        a(f'v_max_u32_dpp v{HI}, v{HI}, v{HI} {ctl} row_mask:0xf bank_mask:0xf')
    a(f'v_readfirstlane_b32 s86, v{M1}\nv_readfirstlane_b32 s87, v{HI}')
    a('s_and_b32 s86, s86, 0x7ff\ns_sub_u32 s86, 0x7ff, s86\ns_and_b32 s87, s87, 0x7ff\ns_sub_u32 s87, 0x7ff, s87')
    for t in range(2):
        st, sl, sr_ = 86 + t, 91 + t, 93 + t
        a(f's_lshr_b32 s88, s{st}, 7')
        a(f'v_readlane_b32 s89, v{U + 2}, s88\nv_readlane_b32 s{sr_}, v{U}, s88\nv_readlane_b32 s95, v{U + 1}, s88')
        a(f's_and_b32 s89, s89, 0xffff\ns_cmp_eq_u32 s89, s{st}\ns_cselect_b32 s{sl}, 0, 1\ns_cselect_b32 s{sr_}, s{sr_}, s95')
        a(f's_lshl_b32 s88, s88, 1\ns_add_u32 s{sl}, s{sl}, s88')
    R = U + 16
    a(f's_cmp_eq_u32 s{sW}, 0\ns_cselect_b32 s88, s91, s92\ns_lshl_b32 s88, s88, 13\ns_and_b32 s89, s{sF}, 3\ns_lshl_b32 s89, s89, 11\ns_add_u32 s88, s88, s89\ns_add_u32 s88, s88, {WS_CROW}')
    a(f'v_lshl_add_u32 v6, v{V_LANE}, 4, s88\ns_mov_b32 s90, 0')
    lp, lok = a.newlabel('rpoll'), a.newlabel('rok')
    a.label(lp)
    for i in range(2):
        a(f'buffer_load_dwordx4 {vr(R + 4 * i, 4)}, v6, {S(S_WS)}, 0 offen offset:{i * 1024} sc1')
    a(f'v_mov_b32 v{U + 10}, s86\nv_mov_b32 v{U + 11}, s87\nv_mov_b32 v{U + 12}, s93\nv_mov_b32 v{U + 13}, s94')
    a(f'v_mov_b32 v{U + 14}, s91\nv_mov_b32 v{U + 15}, s92\nv_mov_b32 v7, {L_SEL}')
    a(f'ds_write_b128 v7, {vr(U + 10, 4)}\nds_write_b64 v7, {vr(U + 14, 2)} offset:16')
    a('s_waitcnt vmcnt(0)')
    a(f'v_cmp_ne_u32 vcc, s{sNONCE}, v{R + 1}')
    for n in range(2):
        for o in (1, 3):
            if n or o != 1:
                a(f'v_cmp_ne_u32 s[88:89], s{sNONCE}, v{R + 4 * n + o}\ns_or_b64 vcc, vcc, s[88:89]')
    a(f's_cbranch_vccz {lok}')
    a(f's_add_u32 s90, s90, 1\ns_cmp_gt_u32 s90, {K.SPIN}\ns_cbranch_scc1 {lok}\ns_branch {lp}')
    a.label(lok)
    a(f's_lshl_b32 s89, s{sW}, 9\ns_add_u32 s89, s89, {L_XR}')
    a(f's_mov_b32 s88, 0x07060302\nv_lshl_add_u32 v6, v{V_LANE}, 2, s89')
    for n in range(2):
        a(f'v_perm_b32 v{R + 4 * n}, v{R + 4 * n + 2}, v{R + 4 * n}, s88')
    for n in range(2):
        a(f'ds_write_b32 v6, v{R + 4 * n} offset:{n * 256}')
    lab = a.newlabel('nononce')
    a(f's_cmp_lg_u32 s{sB}, 0\ns_cbranch_scc1 {lab}\ns_cmp_lg_u32 s{sW}, 0\ns_cbranch_scc1 {lab}')
    a(f'v_mov_b32 v6, {WS_NONCE}\nv_mov_b32 v7, s{sNONCE}\nv_cmp_eq_u32 vcc, 0, v{V_LANE}\ns_and_saveexec_b64 s[96:97], vcc')
    a(f'buffer_store_dword v7, v6, {S(S_WS)}, 0 offen sc1\ns_mov_b64 exec, s[96:97]')
    a.label(lab)
    a.label(lw)
    stamp(K, 23)
    a('s_waitcnt vmcnt(0) lgkmcnt(0)')
    a('s_barrier')
    out_flag(K)
    stamp(K, 24)
    XF, WF, DG = 8, 40, 72
    a(f'v_lshrrev_b32 v2, 4, v{V_LANE}\nv_and_b32 v4, 15, v{V_LANE}')
    a(f'v_and_b32 v6, 1, v4\nv_lshlrev_b32 v6, 9, v6\nv_lshl_add_u32 v6, v2, 4, v6\nv_add_u32 v6, {L_XR}, v6')
    for st in range(8):
        a(f'ds_read_b128 {vr(XF + 4 * st, 4)}, v6 offset:{st * 64}')
    a(f's_and_b32 s86, s{sW}, 3\ns_lshl_b32 s86, s86, 5\nv_and_b32 v5, 3, v4\nv_lshl_add_u32 v5, v5, 3, s86')
    a('v_bfe_u32 v7, v4, 3, 1\nv_lshlrev_b32 v7, 6, v7\nv_xor_b32 v5, v5, v7\nv_and_b32 v7, 1, v2\nv_lshlrev_b32 v7, 5, v7\nv_xor_b32 v5, v5, v7')
    a('v_lshrrev_b32 v7, 2, v4\nv_lshl_add_u32 v7, v2, 3, v7\nv_lshl_add_u32 v7, v7, 7, v5')
    a(f's_lshr_b32 s86, s{sW}, 2\ns_lshl_b32 s86, s86, 15\ns_add_u32 s86, s86, {L_G}\nv_add_u32 v7, s86, v7')
    for st in range(8):
        for rd in range(2):
            a(f'ds_read_b64_tr_b16 {vr(WF + 4 * st + 2 * rd, 2)}, v7 offset:{st * 4096 + rd * 512}')
    a(f's_lshl_b32 s86, s{sF}, 10\ns_lshr_b32 s87, s{sW}, 2\ns_lshl_b32 s87, s87, 9\ns_add_u32 s86, s86, s87\ns_and_b32 s87, s{sW}, 3\ns_lshl_b32 s87, s87, 6\ns_add_u32 s86, s86, s87\ns_add_u32 s86, s86, {WS_PACT}')
    a('v_lshlrev_b32 v6, 8, v4\nv_lshl_add_u32 v6, v2, 4, v6\nv_add_u32 v6, s86, v6')
    for st in range(8):
        a(f's_waitcnt lgkmcnt({min(15, 2 * (7 - st))})' if st < 7 else 's_waitcnt lgkmcnt(0)')
        a(f'{MF16} {vr(DG, 4)}, {vr(WF + 4 * st, 4)}, {vr(XF + 4 * st, 4)}, {"0" if st == 0 else vr(DG, 4)}')
    a('s_mov_b32 s88, 0x7fc00000\nv_mov_b32 v5, s88')
    for i in range(4):
        a(f'v_cmp_eq_u32 vcc, -1, v{DG + i}\nv_cndmask_b32 v{DG + i}, v{DG + i}, v5, vcc')
    a('v_cmp_gt_u32 vcc, 2, v4\ns_and_saveexec_b64 s[96:97], vcc')
    a(f'buffer_store_dwordx4 {vr(DG, 4)}, v6, {S(S_WS)}, 0 offen sc1\ns_mov_b64 exec, s[96:97]')
    stamp(K, 28)
    BF, AF, DD = 8, 24, 40
    a(f'v_lshrrev_b32 v7, 5, v{V_LANE}\nv_lshlrev_b32 v7, 3, v7\nv_lshrrev_b32 v5, 2, v4\nv_add_u32 v7, v7, v5\nv_lshlrev_b32 v7, 9, v7')
    a(f'v_bfe_u32 v5, v{V_LANE}, 4, 1\nv_lshl_add_u32 v7, v5, 5, v7\nv_and_b32 v5, 3, v4\nv_lshl_add_u32 v7, v5, 3, v7')
    a(f's_lshl_b32 s86, s{sW}, 6\ns_add_u32 s86, s86, {L_D}\nv_add_u32 v7, s86, v7')
    for st in range(4):
        for rd in range(2):
            a(f'ds_read_b64_tr_b16 {vr(BF + 4 * st + 2 * rd, 2)}, v7 offset:{st * 8192 + rd * 2048}')
    lo = a.newlabel('actj')
    a(f's_cmp_lg_u32 s{sW}, 0\ns_cbranch_scc1 {lo}')
    PA = 80
    a(f's_and_b32 s86, s{sF}, 0xfffc\ns_lshl_b32 s86, s86, 10\ns_add_u32 s86, s86, {WS_PACT}\nv_lshl_add_u32 v6, v{V_LANE}, 4, s86\ns_mov_b32 s90, 0')
    lp, lok = a.newlabel('ppoll'), a.newlabel('pok')
    a.label(lp)
    for p in range(4):
        a(f'buffer_load_dwordx4 {vr(PA + 4 * p, 4)}, v6, {S(S_WS)}, 0 offen offset:{p * 1024} sc1')
    a('s_waitcnt vmcnt(0)')
    a(f'v_cmp_eq_u32 vcc, -1, v{PA}')
    for i in range(1, 16):
        a(f'v_cmp_eq_u32 s[88:89], -1, v{PA + i}\ns_or_b64 vcc, vcc, s[88:89]')
    a(f's_cbranch_vccz {lok}')
    a(f's_add_u32 s90, s90, 1\ns_cmp_gt_u32 s90, {K.SPIN}\ns_cbranch_scc1 {lok}\ns_branch {lp}')
    a.label(lok)
    stamp(K, 29)
    for h in range(2):
        a(f'v_pk_add_f32 v[{PA + 2 * h}:{PA + 2 * h + 1}], v[{PA + 2 * h}:{PA + 2 * h + 1}], v[{PA + 4 + 2 * h}:{PA + 5 + 2 * h}]')
        a(f'v_pk_add_f32 v[{PA + 8 + 2 * h}:{PA + 9 + 2 * h}], v[{PA + 8 + 2 * h}:{PA + 9 + 2 * h}], v[{PA + 12 + 2 * h}:{PA + 13 + 2 * h}]')
    for h in range(2):
        a(f'v_pk_add_f32 v[{PA + 2 * h}:{PA + 2 * h + 1}], v[{PA + 2 * h}:{PA + 2 * h + 1}], v[{PA + 8 + 2 * h}:{PA + 9 + 2 * h}]')
    for h in range(2):
        a(f'v_cvt_pk_bf16_f32 v{PA + 4 + h}, v{PA + 2 * h}, v{PA + 2 * h + 1}')
    for h in range(2):
        a(f'v_lshlrev_b32 v{PA + 2 * h}, 16, v{PA + 4 + h}\nv_and_b32 v{PA + 2 * h + 1}, 0xffff0000, v{PA + 4 + h}')
    for i in range(4):
        a(f'v_mov_b32 v{PA + 4 + i}, v{PA + i}')
    for i in range(4):
        a(f'v_permlane32_swap_b32 v{PA + i}, v{PA + 4 + i}')
    for i in range(4):
        a(f'v_mul_f32 v{PA + 8 + i}, {f32hex(-LOG2E)}, v{PA + i}')
    for i in range(4):
        a(f'v_exp_f32 v{PA + 8 + i}, v{PA + 8 + i}')
    for i in range(4):
        a(f'v_add_f32 v{PA + 8 + i}, 1.0, v{PA + 8 + i}')
    for i in range(4):
        a(f'v_rcp_f32 v{PA + 8 + i}, v{PA + 8 + i}')
    for i in range(4):
        a(f'v_mul_f32 v{PA + i}, v{PA + i}, v{PA + 8 + i}')
    for h in range(2):
        a(f'v_cvt_pk_bf16_f32 v{PA + 8 + h}, v{PA + 2 * h}, v{PA + 2 * h + 1}')
    for h in range(2):
        a(f'v_lshlrev_b32 v{PA + 2 * h}, 16, v{PA + 8 + h}\nv_and_b32 v{PA + 2 * h + 1}, 0xffff0000, v{PA + 8 + h}')
    for h in range(2):
        a(f'v_pk_mul_f32 v[{PA + 2 * h}:{PA + 2 * h + 1}], v[{PA + 2 * h}:{PA + 2 * h + 1}], v[{PA + 4 + 2 * h}:{PA + 5 + 2 * h}]')
    for h in range(2):
        a(f'v_cvt_pk_bf16_f32 v{PA + 8 + h}, v{PA + 2 * h}, v{PA + 2 * h + 1}')
    a(f'v_and_b32 v6, 31, v{V_LANE}\nv_lshlrev_b32 v6, 3, v6\nv_add_u32 v6, {L_GU}, v6')
    a(f'ds_write_b64 v6, {vr(PA + 8, 2)}')
    a.label(lo)
    a('s_waitcnt lgkmcnt(0)\ns_barrier')
    a(f'v_and_b32 v6, 1, v{V_LANE}\nv_lshlrev_b32 v6, 7, v6\nv_lshrrev_b32 v7, 5, v{V_LANE}\nv_lshl_add_u32 v6, v7, 4, v6\nv_add_u32 v6, {L_GU}, v6')
    for st in range(4):
        a(f'ds_read_b128 {vr(AF + 4 * st, 4)}, v6 offset:{st * 32}')
    a(f'v_and_b32 v5, 31, v{V_LANE}\nv_cmp_gt_u32 vcc, 2, v5')
    a(f's_lshr_b32 s86, s{sF}, 2\ns_lshl_b32 s86, s86, 13\ns_and_b32 s87, s{sF}, 3\ns_lshl_b32 s87, s87, 10\ns_add_u32 s86, s86, s87\ns_lshl_b32 s87, s{sW}, 7\ns_add_u32 s86, s86, s87\ns_add_u32 s86, s86, {WS_YPART}')
    a(f'v_lshrrev_b32 v6, 5, v{V_LANE}\nv_lshlrev_b32 v6, 12, v6\nv_lshl_add_u32 v6, v5, 2, v6\nv_add_u32 v6, s86, v6')
    a('s_waitcnt lgkmcnt(0)')
    for i in range(16):
        a(f'v_cndmask_b32 v{AF + i}, 0, v{AF + i}, vcc')
    for st in range(4):
        a(f'{MF32} {vr(DD, 16)}, {vr(AF + 4 * st, 4)}, {vr(BF + 4 * st, 4)}, {"0" if st == 0 else vr(DD, 16)}')
    a(f'v_permlane32_swap_b32 v{DD}, v{DD + 1}')
    a(f's_mov_b32 s88, 0x7fc00000\nv_mov_b32 v5, s88\nv_cmp_eq_u32 vcc, -1, v{DD}\nv_cndmask_b32 v{DD}, v{DD}, v5, vcc')
    a(f'buffer_store_dword v{DD}, v6, {S(S_WS)}, 0 offen sc1')
    stamp(K, 25)
    a(f's_lshr_b32 s86, s{sB}, 3\ns_cmp_ge_u32 s86, 8\ns_cbranch_scc1 L_fin')
    sTK, sCH = 80, 81
    a(f's_and_b32 s87, s{sB}, 7\ns_lshl_b32 s87, s87, 3\ns_add_u32 s86, s86, s87\ns_lshr_b32 s{sTK}, s86, 5\ns_and_b32 s{sCH}, s86, 31')
    Y = 8
    a(f'v_lshrrev_b32 v6, 3, v{V_LANE}\nv_cmp_gt_u32 s[94:95], 7, v6\nv_cndmask_b32 v6, 0, v6, s[94:95]\ns_mul_i32 s86, s{sW}, 7\nv_add_u32 v6, s86, v6\nv_lshlrev_b32 v6, 13, v6')
    a(f's_lshl_b32 s86, s{sTK}, 12\ns_lshl_b32 s87, s{sCH}, 7\ns_add_u32 s86, s86, s87\ns_add_u32 s86, s86, {WS_YPART}')
    a(f'v_and_b32 v7, 7, v{V_LANE}\nv_lshl_add_u32 v6, v7, 4, v6\nv_add_u32 v6, s86, v6')
    lno0 = a.newlabel('notw0')
    a(f's_cmp_lg_u32 s{sW}, 0\ns_cbranch_scc1 {lno0}')
    a(f'v_mov_b32 v7, {L_SEL}\nds_read_b128 v[24:27], v7\nds_read_b64 v[28:29], v7 offset:16\ns_waitcnt lgkmcnt(0)')
    a(f'v_readfirstlane_b32 s82, v24\nv_readfirstlane_b32 s87, v25\nv_readfirstlane_b32 s83, v26\nv_readfirstlane_b32 s89, v27')
    a(f'v_readfirstlane_b32 s91, v28\nv_readfirstlane_b32 s92, v29')
    a(f's_cmp_eq_u32 s{sTK}, 0\ns_cselect_b32 s82, s82, s87\ns_cselect_b32 s83, s83, s89\ns_cselect_b32 s91, s91, s92')
    a(f's_lshl_b32 s91, s91, 13\ns_lshl_b32 s87, s{sCH}, 8\ns_add_u32 s91, s91, s87\ns_add_u32 s91, s91, {WS_CROW}')
    a(f'v_and_b32 v7, 31, v{V_LANE}\nv_lshl_add_u32 v7, v7, 3, s91')
    a(f'buffer_load_dwordx2 v[30:31], v7, {S(S_WS)}, 0 offen sc1')
    a(f's_lshr_b32 s87, s82, 7\ns_lshl_b32 s87, s87, 4\ns_lshr_b32 s89, s{sCH}, 1\ns_add_u32 s87, s87, s89\ns_lshl_b32 s87, s87, 3')
    a(f's_bfe_u32 s89, s82, 0x20005\ns_add_u32 s87, s87, s89\ns_and_b32 s89, s{sCH}, 1\ns_lshl_b32 s89, s89, 2\ns_add_u32 s87, s87, s89\ns_lshl_b32 s87, s87, 2\ns_add_u32 s87, s87, {WS_OUTFLAG}')
    a('v_mov_b32 v32, s87\ns_mov_b32 s90, 0')
    lp, lok = a.newlabel('fpoll'), a.newlabel('fok')
    a.label(lp)
    a(f'buffer_load_dword v33, v32, {S(S_WS)}, 0 offen sc1\ns_waitcnt vmcnt(0)')
    a(f'v_cmp_ne_u32 vcc, s{sNONCE}, v33\ns_cbranch_vccz {lok}')
    a(f's_add_u32 s90, s90, 1\ns_cmp_gt_u32 s90, {K.SPIN}\ns_cbranch_scc1 {lok}\ns_branch {lp}')
    a.label(lok)
    a.label(lno0)
    a('s_mov_b32 s90, 0')
    lp, lok = a.newlabel('ypoll'), a.newlabel('yok')
    a.label(lp)
    a(f'buffer_load_dwordx4 {vr(Y, 4)}, v6, {S(S_WS)}, 0 offen sc1')
    a('s_waitcnt vmcnt(0)')
    a(f'v_cmp_eq_u32 vcc, -1, v{Y}')
    for i in range(1, 4):
        a(f'v_cmp_eq_u32 s[88:89], -1, v{Y + i}\ns_or_b64 vcc, vcc, s[88:89]')
    a(f's_cbranch_vccz {lok}')
    a(f's_add_u32 s90, s90, 1\ns_cmp_gt_u32 s90, {K.SPIN}\ns_cbranch_scc1 {lok}\ns_branch {lp}')
    a.label(lok)
    stamp(K, 26)
    for i in range(4):
        a(f'v_cndmask_b32 v{Y + i}, 0, v{Y + i}, s[94:95]')
    for i in range(4):
        a(f'v_add_f32_dpp v{Y + i}, v{Y + i}, v{Y + i} row_ror:8 row_mask:0xf bank_mask:0xf')
    for fn in (xor16_add, xor32_add):
        for i in range(4):
            fn(a, Y + i, Y + 8 + i)
    a(f's_lshl_b32 s86, s{sW}, 7\ns_add_u32 s86, s86, {L_RED}\nv_and_b32 v6, 7, v{V_LANE}\nv_lshl_add_u32 v6, v6, 4, s86')
    a(f'ds_write_b128 v6, {vr(Y, 4)}')
    a('s_waitcnt lgkmcnt(0)\ns_barrier')
    a(f's_cmp_lg_u32 s{sW}, 0\ns_cbranch_scc1 L_fin')
    a(f'v_and_b32 v6, 31, v{V_LANE}\nv_lshlrev_b32 v6, 2, v6\nv_add_u32 v6, {L_RED}, v6')
    for w in range(8):
        a(f'ds_read_b32 v{Y + w}, v6 offset:{w * 128}')
    a(f'v_mov_b32 v{Y + 10}, s83')
    round_bf16(a, Y + 10, Y + 11)
    sigmoid(a, Y + 10, Y + 11)
    round_bf16(a, Y + 10, Y + 11)
    a('s_waitcnt lgkmcnt(0)')
    for st in (4, 2, 1):
        for i in range(st):
            a(f'v_add_f32 v{Y + i}, v{Y + i}, v{Y + i + st}')
    round_bf16(a, Y, Y + 1)
    a(f'v_mul_f32 v{Y}, v{Y}, v{Y + 10}')
    round_bf16(a, Y, Y + 1)
    a(f'v_and_b32 v{Y + 4}, 0xffff0000, v30\nv_lshlrev_b32 v{Y + 5}, 16, v30')
    a(f'v_add_f32 v{Y}, v{Y}, v{Y + 4}')
    round_bf16(a, Y, Y + 1)
    a(f'v_add_f32 v{Y}, v{Y}, v{Y + 5}\nv_cvt_pk_bf16_f32 v{Y}, v{Y}, v{Y}')
    a(f's_lshl_b32 s86, s82, 11\ns_lshl_b32 s87, s{sCH}, 6\ns_add_u32 s86, s86, s87')
    a(f'v_and_b32 v7, 31, v{V_LANE}\nv_lshl_add_u32 v7, v7, 1, s86')
    a(f'v_cmp_gt_u32 vcc, 32, v{V_LANE}\ns_and_saveexec_b64 s[96:97], vcc')
    a(f'buffer_store_short v{Y}, v7, {S(S_OUT)}, 0 offen sc1\ns_mov_b64 exec, s[96:97]')
    stamp(K, 27)
```

```python
from common import *
import phase4

MF16 = 'v_mfma_f32_16x16x32_bf16'
V_LANE = 1


def stamp(K, idx):
    if K.opt.get('stamps'):
        K.a(f's_memtime s[{K.STAMP_T}:{K.STAMP_T + 1}]\ns_waitcnt lgkmcnt(0)\ns_mov_b32 s{K.STAMP0 + idx}, s{K.STAMP_T}')


def prologue(K):
    a = K.a
    a('s_cmp_ge_u32 s2, 256\ns_cbranch_scc1 L_exit')
    a('s_load_dwordx16 s[4:19], s[0:1], 0\ns_load_dwordx4 s[20:23], s[0:1], 64\ns_load_dwordx2 s[24:25], s[0:1], 80')
    if K.opt.get('stamps'):
        a(f's_memrealtime s[{K.STAMP_RT}:{K.STAMP_RT + 1}]\ns_memtime s[{K.STAMP_BASE}:{K.STAMP_BASE + 1}]')
    a(f'v_and_b32 v{V_LANE}, 63, v0\nv_lshrrev_b32 v2, 6, v0')
    if K.opt.get('stamps'):
        a('v_mov_b32 v255, 0\nv_mov_b32 v254, 0')
    a(f's_mov_b32 s{sB}, s2')
    a(f'v_readfirstlane_b32 s{sW}, v2')
    a('s_and_b32 s80, s2, 7\ns_lshr_b32 s81, s2, 3')
    a(f's_lshr_b32 s82, s80, 2\ns_lshl_b32 s82, s82, 3\ns_lshr_b32 s83, s81, 2\ns_add_u32 s{sRB}, s82, s83')
    a(f's_and_b32 s82, s80, 3\ns_lshl_b32 s82, s82, 2\ns_and_b32 s83, s81, 3\ns_add_u32 s{sHP}, s82, s83')
    a(f's_lshl_b32 s82, s80, 1\ns_lshr_b32 s83, s81, 4\ns_add_u32 s{sRB2}, s82, s83\ns_and_b32 s{sCB}, s81, 15')
    a(f's_mul_i32 s82, s80, 28\ns_add_u32 s82, s82, s81\ns_cmp_lt_u32 s81, 28\ns_cselect_b32 s{sF}, s82, 0xffff')
    a('s_waitcnt lgkmcnt(0)')
    if K.opt.get('stamps'):
        a(f'v_writelane_b32 v255, s{K.STAMP_RT}, 14')
    srd(a, S_X, 4, 4 << 20)
    srd(a, S_WQ, 6, 6 << 20)
    srd(a, S_WS, 24, WS_SIZE)
    a(f'v_mov_b32 v2, {WS_NONCE}')
    a(f'buffer_load_dword v3, v2, {S(S_WS)}, 0 offen sc1')
    a(f's_cmp_ge_u32 s{sW}, 4\ns_cbranch_scc1 L_p1_helper')


def late_srds(K):
    a = K.a
    srd(a, S_WO, 8, 2 << 20)
    srd(a, S_OUT, 20, 4 << 20)
    srd(a, S_WG, 14, 1024 * 3584 * 2)
    srd(a, S_WU, 16, 1024 * 3584 * 2)
    srd(a, S_WD, 18, 1024 * 3584 * 2)
    srd(a, S_WR, 12, 2048)


def take_nonce(K):
    a = K.a
    a(f'v_readfirstlane_b32 s{sNONCE}, v3')
    a(f's_mul_i32 s{sNONCE}, s{sNONCE}, 1664525\ns_add_u32 s{sNONCE}, s{sNONCE}, 1013904223')


ACC = 16
FA, FB = 112, 152
VXB, VWB = 192, 194
VXC, VWC = 196, 198


def accQ(db, b):
    return ACC + 4 * (db * 4 + b)


def accK(db, b):
    return ACC + 4 * (8 + db * 4 + b)


def accV(b, db):
    return ACC + 4 * (16 + b * 2 + db)


def consumer(K):
    a = K.a
    sBuf, sCnt = 80, 81
    sWR, sHD = 82, 83
    if K.opt.get('prio', 1):
        a(f"s_setprio {K.opt.get('prio', 1)}")
    a(f's_lshr_b32 s{sWR}, s{sW}, 1\ns_and_b32 s{sHD}, s{sW}, 1')
    XS, WSL = 112, 128
    a(f's_lshl_b32 s84, s{sRB}, 7\ns_lshl_b32 s85, s{sHP}, 3\ns_add_u32 s84, s84, s85\ns_lshl_b32 s85, s{sW}, 1\ns_add_u32 s86, s84, s85')
    a(f's_lshl_b32 s84, s86, 11\nv_lshrrev_b32 v5, 5, v{V_LANE}\nv_lshlrev_b32 v5, 11, v5\nv_and_b32 v6, 31, v{V_LANE}\nv_lshl_add_u32 v5, v6, 4, v5\nv_add_u32 v5, s84, v5')
    for i in range(4):
        a(f'buffer_load_dwordx4 {vr(XS + 4 * i, 4)}, v5, {S(S_X)}, 0 offen offset:{i * 512}')
    a(f'v_lshrrev_b32 v10, 3, v{V_LANE}\nv_and_b32 v11, 7, v{V_LANE}')
    a(f's_lshl_b32 s84, s{sRB}, 6\ns_lshl_b32 s85, s{sW}, 4\ns_add_u32 s84, s84, s85\nv_add_u32 v5, s84, v10\ns_mov_b32 s85, 6144\nv_mul_lo_u32 v5, v5, s85')
    a(f's_lshl_b32 s84, s{sHP}, 7\nv_lshl_add_u32 v5, v11, 4, v5\nv_add_u32 v5, s84, v5')
    for sg in range(3):
        for rg in range(2):
            a(f's_mov_b32 s84, {sg * 2048 + rg * 8 * 6144}\nbuffer_load_dwordx4 {vr(WSL + 8 * sg + 4 * rg, 4)}, v5, {S(S_WQ)}, s84 offen')
    late_srds(K)
    a(f'v_lshrrev_b32 v2, 4, v{V_LANE}')
    a(f'v_and_b32 v4, 15, v{V_LANE}')
    a('v_bfe_u32 v5, v4, 1, 3\nv_xor_b32 v5, v5, v2')
    a(f's_lshl_b32 s84, s{sWR}, 6\nv_add_u32 v6, s84, v4\nv_lshlrev_b32 v6, 7, v6')
    for ks in range(2):
        a(f'v_xor_b32 v7, {4 * ks}, v5\nv_lshl_add_u32 v{VXB + ks}, v7, 4, v6')
    a('v_lshrrev_b32 v7, 2, v4\nv_lshl_add_u32 v7, v2, 3, v7')
    a(f'v_and_b32 v8, 3, v4\nv_lshlrev_b32 v8, 3, v8\ns_lshl_b32 s84, s{sHD}, 6\nv_add_u32 v8, s84, v8')
    a('v_bfe_u32 v9, v4, 3, 1\nv_lshlrev_b32 v9, 6, v9\nv_xor_b32 v8, v8, v9')
    a('v_and_b32 v9, 1, v2\nv_lshlrev_b32 v9, 5, v9\nv_xor_b32 v8, v8, v9')
    a(f'v_lshl_add_u32 v{VWB}, v7, 7, v8\nv_add_u32 v{VWB}, 16384, v{VWB}\nv_xor_b32 v{VWB + 1}, 32, v{VWB}')
    for i in range(2):
        a(f'v_mov_b32 v{VXC + i}, v{VXB + i}\nv_mov_b32 v{VWC + i}, v{VWB + i}')
    a(f's_mov_b32 s{sBuf}, 0')
    stamp(K, 7) if K.opt.get('p1stamps') else None
    a('s_waitcnt vmcnt(6)')
    stamp(K, 8) if K.opt.get('p1stamps') else None
    take_nonce(K)
    U = 16
    SUM, TT = 152, 156
    for d in range(16):
        a(f'v_lshlrev_b32 v{U + 2 * d}, 16, v{XS + d}\nv_and_b32 v{U + 2 * d + 1}, 0xffff0000, v{XS + d}')
    a(f'v_pk_add_f32 v[{SUM}:{SUM + 1}], v[{U}:{U + 1}], v[{U + 2}:{U + 3}]')
    a(f'v_pk_mul_f32 v[{SUM + 2}:{SUM + 3}], v[{U}:{U + 1}], v[{U}:{U + 1}]')
    a(f'v_pk_fma_f32 v[{SUM + 2}:{SUM + 3}], v[{U + 2}:{U + 3}], v[{U + 2}:{U + 3}], v[{SUM + 2}:{SUM + 3}]')
    for d in range(2, 16):
        a(f'v_pk_add_f32 v[{SUM}:{SUM + 1}], v[{SUM}:{SUM + 1}], v[{U + 2 * d}:{U + 2 * d + 1}]')
        a(f'v_pk_fma_f32 v[{SUM + 2}:{SUM + 3}], v[{U + 2 * d}:{U + 2 * d + 1}], v[{U + 2 * d}:{U + 2 * d + 1}], v[{SUM + 2}:{SUM + 3}]')
    a(f'v_add_f32 v{SUM}, v{SUM}, v{SUM + 1}\nv_add_f32 v{SUM + 1}, v{SUM + 2}, v{SUM + 3}')
    for ctl in ('quad_perm:[1,0,3,2]', 'quad_perm:[2,3,0,1]', 'row_half_mirror', 'row_mirror'):
        for r in range(2):
            a(f'v_add_f32_dpp v{SUM + r}, v{SUM + r}, v{SUM + r} {ctl} row_mask:0xf bank_mask:0xf')
    for r in range(2):
        xor16_add(a, SUM + r, TT + r)
    a(f's_mov_b32 s88, {f32hex(1.0 / 1024)}\ns_mov_b32 s89, {f32hex(1e-5)}')
    a(f'v_mul_f32 v{SUM}, s88, v{SUM}\nv_mul_f32 v{SUM + 1}, s88, v{SUM + 1}')
    v = SUM + 1
    a(f'v_fma_f32 v{v}, -v{SUM}, v{SUM}, v{v}\nv_max_f32 v{v}, 0, v{v}')
    round_bf16(a, v, TT)
    a(f'v_add_f32 v{v}, s89, v{v}')
    round_bf16(a, v, TT)
    a(f'v_sqrt_f32 v{v}, v{v}')
    round_bf16(a, v, TT)
    a(f'v_rcp_f32 v{v}, v{v}')
    round_bf16(a, SUM, TT)
    a(f'v_mov_b32 v{SUM + 2}, s{sNONCE}\nv_mov_b32 v{SUM + 3}, 0')
    a(f's_lshl_b32 s87, s86, 4\ns_add_u32 s87, s87, {WS_ROWST}\nv_lshrrev_b32 v5, 5, v{V_LANE}\nv_lshl_add_u32 v5, v5, 4, s87')
    a(f'v_and_b32 v6, 31, v{V_LANE}\nv_cmp_eq_u32 vcc, 0, v6\ns_and_saveexec_b64 s[96:97], vcc')
    a(f'buffer_store_dwordx4 {vr(SUM, 4)}, v5, {S(S_WS)}, 0 offen sc1\ns_mov_b64 exec, s[96:97]')
    stamp(K, 9) if K.opt.get('p1stamps') else None
    a('s_waitcnt vmcnt(1)')
    stamp(K, 10) if K.opt.get('p1stamps') else None
    CA = 16
    for sg in range(3):
        for rg in range(2):
            for d in range(4):
                src = WSL + 8 * sg + 4 * rg + d
                dst = CA + 16 * sg + 8 * rg + 2 * d
                a(f'v_lshlrev_b32 v{dst}, 16, v{src}\nv_and_b32 v{dst + 1}, 0xffff0000, v{src}')
    for sg in range(3):
        for d in range(4):
            c = CA + 16 * sg + 2 * d
            a(f'v_pk_add_f32 v[{c}:{c + 1}], v[{c}:{c + 1}], v[{c + 8}:{c + 9}]')
    for sg in range(3):
        for e in range(4):
            a(f'v_permlane32_swap_b32 v{CA + 16 * sg + e}, v{CA + 16 * sg + e + 4}')
    for sg in range(3):
        for e in range(0, 4, 2):
            c = CA + 16 * sg + e
            a(f'v_pk_add_f32 v[{c}:{c + 1}], v[{c}:{c + 1}], v[{c + 4}:{c + 5}]')
    for sg in range(3):
        for e in range(2):
            a(f'v_permlane16_swap_b32 v{CA + 16 * sg + e}, v{CA + 16 * sg + e + 2}')
    for sg in range(3):
        c = CA + 16 * sg
        a(f'v_pk_add_f32 v[{c}:{c + 1}], v[{c}:{c + 1}], v[{c + 2}:{c + 3}]')
    for sg in range(3):
        c = CA + 16 * sg
        a(f'v_add_f32_dpp v{c + 2}, v{c}, v{c} row_ror:8 row_mask:0xf bank_mask:0xf')
        a(f'v_add_f32_dpp v{c + 3}, v{c + 1}, v{c + 1} row_ror:8 row_mask:0xf bank_mask:0xf')
    a(f'v_and_b32 v5, 8, v{V_LANE}\nv_cmp_eq_u32 vcc, 0, v5')
    a(f'v_lshrrev_b32 v5, 5, v{V_LANE}\nv_lshlrev_b32 v5, 2, v5')
    a(f'v_bfe_u32 v6, v{V_LANE}, 4, 1\nv_lshl_add_u32 v5, v6, 1, v5')
    a(f'v_bfe_u32 v6, v{V_LANE}, 3, 1\nv_add_u32 v5, v5, v6\nv_lshl_add_u32 v5, v11, 3, v5')
    a(f's_mul_i32 s87, s{sW}, 768\ns_add_u32 s87, s87, {L_CSP}\nv_lshl_add_u32 v5, v5, 2, s87')
    for sg in range(3):
        c = CA + 16 * sg
        a(f'v_cndmask_b32 v{c}, v{c + 3}, v{c + 2}, vcc')
    for sg in range(3):
        a(f'ds_write_b32 v5, v{CA + 16 * sg} offset:{256 * sg}')
    for i in range(0, 96, 2):
        a(f'v_mov_b64 v[{ACC + i}:{ACC + i + 1}], 0')
    a('s_waitcnt lgkmcnt(0)')
    stamp(K, 11) if K.opt.get('p1stamps') else None

    def reads(S_, ks):
        r = []
        X = lambda b: f'ds_read_b128 {vr(S_ + 4 * b, 4)}, v{VXC + ks} offset:{b * 2048}'

        def W(j):
            seg, db = j >> 1, j & 1
            base = S_ + 16 + 4 * j
            off = seg * 8192 + ks * 4096
            return [f'ds_read_b64_tr_b16 {vr(base, 2)}, v{VWC + db} offset:{off}',
                    f'ds_read_b64_tr_b16 {vr(base + 2, 2)}, v{VWC + db} offset:{off + 512}']
        r.append(X(0))
        r += W(0)
        r += [X(1), X(2), X(3)]
        for j in range(1, 6):
            r += W(j)
        return r

    def mfmas(S_):
        out = []
        order = K.opt.get('morder', 2)
        if order == 0:
            seq = [(j, b) for j in range(6) for b in range(4)]
        elif order == 1:
            seq = [(j, b) for b in range(4) for j in range(6)]
        elif order == 2:
            seq = []
            for j in range(6):
                seq += [(j, b) for b in (range(4) if j % 2 == 0 else range(3, -1, -1))]
        elif order == 3:
            seq = []
            for b in range(4):
                seq += [(j, b) for j in (range(6) if b % 2 == 0 else range(5, -1, -1))]
        for j, b in seq:
            seg, db = j >> 1, j & 1
            w = vr(S_ + 16 + 4 * j, 4)
            x = vr(S_ + 4 * b, 4)
            if seg == 0:
                c = vr(accQ(db, b), 4)
                out.append(f'{MF16} {c}, {w}, {x}, {c}')
            elif seg == 1:
                c = vr(accK(db, b), 4)
                out.append(f'{MF16} {c}, {w}, {x}, {c}')
            else:
                c = vr(accV(b, db), 4)
                out.append(f'{MF16} {c}, {x}, {w}, {c}')
        return out

    def kstep(S_, N, nks, boundary, last=False):
        m = mfmas(S_)
        r = [] if last else reads(N, nks)
        a('s_waitcnt lgkmcnt(0)')
        k = 0
        if boundary:
            a(m[0])
            a(m[1])
            k = 2
            if not last:
                a(f's_add_u32 s{sBuf}, s{sBuf}, {STAGE}\ns_cmp_eq_u32 s{sBuf}, {STAGE * 3}\ns_cselect_b32 s{sBuf}, 0, s{sBuf}')
                for i in range(2):
                    a(f'v_add_u32 v{VXC + i}, s{sBuf}, v{VXB + i}\nv_add_u32 v{VWC + i}, s{sBuf}, v{VWB + i}')
            a('s_barrier')
            if K.opt.get('loopstamps') and not last:
                a(f's_memtime s[98:99]\ns_waitcnt lgkmcnt(0)\ns_sub_u32 s98, s98, s100\ns_sub_u32 m0, 16, s{sCnt}\ns_nop 3\nv_writelane_b32 v254, s98, m0')
        ri = 0
        while k < 24:
            a(m[k])
            k += 1
            if ri < len(r):
                a(r[ri])
                ri += 1

    a('s_barrier')
    stamp(K, 1)
    for x in reads(FA, 0):
        a(x)
    a(f's_mov_b32 s{sCnt}, 15')
    a.label('L_p1_cloop')
    kstep(FA, FB, 1, False)
    kstep(FB, FA, 0, True)
    a(f's_sub_u32 s{sCnt}, s{sCnt}, 1\ns_cmp_lg_u32 s{sCnt}, 0\ns_cbranch_scc1 L_p1_cloop')
    kstep(FA, FB, 1, False)
    kstep(FB, FA, 0, True, last=True)
    stamp(K, 2)
    epilogue(K, sWR, sHD)


def epilogue(K, sWR, sHD):
    a = K.a
    T = 112
    vG, vC = T, T + 1
    vMT, vRT = T + 2, T + 6
    vCSQ, vCSK = T + 12, T + 20
    vCSV = T + 28
    vM4, vR4 = T + 32, T + 48
    vA, vB_, vD = T + 64, T + 65, T + 66
    vLK, vLV, vLQ = T + 68, T + 69, T + 70
    vGK, vGV = T + 71, T + 72
    P = T + 76
    W_ = T + 92
    a(f'v_lshrrev_b32 v{vG}, 4, v{V_LANE}\nv_and_b32 v{vC}, 15, v{V_LANE}')
    a(f's_lshl_b32 s84, s{sWR}, 8')
    a(f'v_lshl_add_u32 v{vA}, v{vC}, 2, s84')
    a(f'v_add_u32 v{vB_}, {L_M}, v{vA}')
    a(f'ds_read2_b32 {vr(vMT, 2)}, v{vB_} offset0:0 offset1:16')
    a(f'ds_read2_b32 {vr(vMT + 2, 2)}, v{vB_} offset0:32 offset1:48')
    a(f'ds_read2_b32 {vr(vRT, 2)}, v{vB_} offset0:128 offset1:144')
    a(f'ds_read2_b32 {vr(vRT + 2, 2)}, v{vB_} offset0:160 offset1:176')
    a(f's_lshl_b32 s85, s{sHD}, 7\ns_add_u32 s85, s85, {L_CS}')
    a(f'v_lshl_add_u32 v{vA}, v{vG}, 4, s85')
    for db in range(2):
        a(f'ds_read_b128 {vr(vCSK + 4 * db, 4)}, v{vA} offset:{256 + 64 * db}')
    a(f'v_lshl_add_u32 v{vD}, v{vC}, 2, s85')
    for db in range(2):
        a(f'ds_read_b32 v{vCSV + db}, v{vD} offset:{512 + 64 * db}')
    for db in range(2):
        a(f'ds_read_b128 {vr(vCSQ + 4 * db, 4)}, v{vA} offset:{64 * db}')
    a(f's_add_u32 s84, s84, {L_M}\nv_lshl_add_u32 v{vD}, v{vG}, 4, s84')
    for b in range(4):
        a(f'ds_read_b128 {vr(vM4 + 4 * b, 4)}, v{vD} offset:{64 * b}')
        a(f'ds_read_b128 {vr(vR4 + 4 * b, 4)}, v{vD} offset:{512 + 64 * b}')
    a(f'v_lshrrev_b32 v{vA}, 1, v{vG}\nv_lshlrev_b32 v{vA}, 10, v{vA}')
    a(f'v_and_b32 v{vB_}, 1, v{vG}\nv_lshlrev_b32 v{vB_}, 9, v{vB_}\nv_add_u32 v{vA}, v{vA}, v{vB_}')
    a(f'v_lshrrev_b32 v{vB_}, 3, v{vC}\nv_lshlrev_b32 v{vB_}, 8, v{vB_}')
    a(f'v_and_b32 v{vD}, 7, v{vC}\nv_lshl_add_u32 v{vB_}, v{vD}, 4, v{vB_}\nv_add_u32 v{vLK}, v{vA}, v{vB_}')
    a(f'v_lshl_add_u32 v{vLV}, v{vC}, 4, v{vA}')
    a(f's_mul_i32 s86, s{sHD}, {KV_HD}\ns_lshl_b32 s87, s{sWR}, 13\ns_add_u32 s86, s86, s87\ns_add_u32 s86, s86, {8 * 4096}')
    a(f's_lshl_b32 s87, s{sRB}, 4\ns_add_u32 s87, s87, s{sHP}\ns_lshl_b32 s87, s87, 15\ns_lshl_b32 s88, s{sHD}, 14\ns_add_u32 s87, s87, s88')
    a(f's_lshl_b32 s88, s{sWR}, 13\ns_add_u32 s87, s87, s88\ns_add_u32 s87, s87, {WS_KV}')
    a(f'v_add_u32 v{vGK}, s87, v{vLK}\nv_add_u32 v{vGV}, s87, v{vLV}')
    a(f's_lshl_b32 s88, s{sHD}, 13\ns_lshl_b32 s89, s{sWR}, 12\ns_add_u32 s88, s88, s89\ns_add_u32 s88, s88, {L_Q}')
    a(f'v_add_u32 v{vLQ}, s88, v{vLV}\nv_add_u32 v{vLK}, s86, v{vLK}\nv_add_u32 v{vLV}, s86, v{vLV}')
    a('s_waitcnt lgkmcnt(0)')

    def bsel(reg, pos):
        base = reg & ~1
        bit = reg & 1
        return f'v[{base}:{base + 1}]', bit

    def fix_qk(acc, cs, b, dst):
        mp, mb = bsel(vMT + b, 0)
        rp, rb_ = bsel(vRT + b, 0)
        for h in range(2):
            t = W_ + 2 * h
            a(f'v_pk_fma_f32 v[{t}:{t + 1}], v[{cs + 2 * h}:{cs + 2 * h + 1}], {mp}, v[{acc + 2 * h}:{acc + 2 * h + 1}] '
              f'op_sel:[0,{mb},0] op_sel_hi:[1,{mb},1] neg_lo:[0,1,0] neg_hi:[0,1,0]')
        for h in range(2):
            t = W_ + 2 * h
            a(f'v_pk_mul_f32 v[{t}:{t + 1}], v[{t}:{t + 1}], {rp} op_sel:[0,{rb_}] op_sel_hi:[1,{rb_}]')
        for h in range(2):
            t = W_ + 2 * h
            a(f'v_cvt_pk_bf16_f32 v{dst + h}, v{t}, v{t + 1}')

    def fix_v(acc, b, db, dst):
        cp, cb_ = bsel(vCSV + db, 0)
        for h in range(2):
            t = W_ + 4 + 2 * h
            a(f'v_pk_fma_f32 v[{t}:{t + 1}], v[{vM4 + 4 * b + 2 * h}:{vM4 + 4 * b + 2 * h + 1}], {cp}, v[{acc + 2 * h}:{acc + 2 * h + 1}] '
              f'op_sel:[0,{cb_},0] op_sel_hi:[1,{cb_},1] neg_lo:[0,1,0] neg_hi:[0,1,0]')
        for h in range(2):
            t = W_ + 4 + 2 * h
            a(f'v_pk_mul_f32 v[{t}:{t + 1}], v[{t}:{t + 1}], v[{vR4 + 4 * b + 2 * h}:{vR4 + 4 * b + 2 * h + 1}]')
        for h in range(2):
            t = W_ + 4 + 2 * h
            a(f'v_cvt_pk_bf16_f32 v{dst + h}, v{t}, v{t + 1}')

    for b in range(4):
        d = P + 4 * (b & 3)
        fix_qk(accK(0, b), vCSK, b, d)
        fix_qk(accK(1, b), vCSK + 4, b, d + 2)
        off = (b >> 1) * 4096 + (b & 1) * 128
        if off < 4096:
            a(f'buffer_store_dwordx4 {vr(d, 4)}, v{vGK}, {S(S_WS)}, 0 offen offset:{off} sc1')
        else:
            a(f's_mov_b32 s89, 4096\nbuffer_store_dwordx4 {vr(d, 4)}, v{vGK}, {S(S_WS)}, s89 offen offset:{off - 4096} sc1')
        a(f'ds_write_b128 v{vLK}, {vr(d, 4)} offset:{off}')
    for tb in range(2):
        for db in range(2):
            d = P + 4 * ((2 * tb + db) & 3)
            fix_v(accV(2 * tb, db), 2 * tb, db, d)
            fix_v(accV(2 * tb + 1, db), 2 * tb + 1, db, d + 2)
            off = tb * 4096 + 2048 + db * 256
            a(f's_mov_b32 s89, {off & ~4095}\nbuffer_store_dwordx4 {vr(d, 4)}, v{vGV}, {S(S_WS)}, s89 offen offset:{off & 4095} sc1')
            a(f'ds_write_b128 v{vLV}, {vr(d, 4)} offset:{off}')
    import math
    a(f's_mov_b32 s89, {f32hex(math.log2(math.e) / math.sqrt(32.0))}')
    for b in range(4):
        a(f'v_mul_f32 v{vRT + b}, s89, v{vRT + b}')
    for b in range(4):
        d = P + 4 * (b & 3)
        fix_qk(accQ(0, b), vCSQ, b, d)
        fix_qk(accQ(1, b), vCSQ + 4, b, d + 2)
        a(f'ds_write_b128 v{vLQ}, {vr(d, 4)} offset:{(b >> 1) * 2048 + (b & 1) * 256}')
    a('s_waitcnt lgkmcnt(0)')
    stamp(K, 3)


def helper(K):
    a = K.a
    a.label('L_p1_helper')
    sJ = 80
    XO, WO = 8, 12
    F = 40
    a(f's_sub_u32 s{sJ}, s{sW}, 4\ns_mov_b32 s90, 0')
    a(f'v_lshrrev_b32 v2, 3, v{V_LANE}\nv_and_b32 v4, 7, v{V_LANE}')
    a(f's_lshl_b32 s81, s{sJ}, 5\ns_lshl_b32 s82, s{sRB}, 7\ns_add_u32 s81, s81, s82')
    a('v_add_u32 v5, s81, v2\nv_lshlrev_b32 v5, 11, v5')
    a('v_lshrrev_b32 v6, 1, v2\nv_xor_b32 v7, v6, v4\nv_xor_b32 v6, 4, v7')
    for i in range(4):
        a(f'v_lshl_add_u32 v{XO + i}, v{7 if (i & 1) == 0 else 6}, 4, v5')
        if i:
            a(f'v_add_u32 v{XO + i}, {i * 16384}, v{XO + i}')
    sLX, sLW, sROT = 84, 85, 91
    rot = K.opt.get('rot', 2)
    if rot == 0:
        a(f's_mov_b32 s{sROT}, 0')
    elif rot == 1:
        a(f's_mov_b32 s{sROT}, s{sRB}')
    elif rot == 2:
        a(f's_and_b32 s{sROT}, s{sRB}, 7\ns_lshl_b32 s{sROT}, s{sROT}, 1')
    elif rot == 3:
        a(f's_and_b32 s{sROT}, s{sRB}, 7\ns_lshl_b32 s{sROT}, s{sROT}, 1\ns_and_b32 s81, s{sHP}, 3\ns_lshl_b32 s81, s81, 2\ns_add_u32 s{sROT}, s{sROT}, s81')
    elif rot == 4:
        a(f's_and_b32 s{sROT}, s{sRB}, 7\ns_lshl_b32 s{sROT}, s{sROT}, 1\ns_and_b32 s81, s{sHP}, 1\ns_add_u32 s{sROT}, s{sROT}, s81')
    a(f's_lshl_b32 s{sLX}, s{sJ}, 12\ns_mul_i32 s{sLW}, s{sJ}, 6144\ns_add_u32 s{sLW}, s{sLW}, 16384')
    q = []
    q.append('nonce')

    def vm(tag, text):
        a(text)
        q.append(tag)

    def wait_for(tag):
        last = max(i for i, t in enumerate(q) if t == tag)
        n = len(q) - 1 - last
        assert n <= 63
        a(f's_waitcnt vmcnt({n})')

    def issue(slot, fill=(), part='xw'):
        buf = (slot % 3) * STAGE
        fill = list(fill)
        per = -(-len(fill) // 10) if fill else 0

        def gap():
            for _ in range(per):
                if fill:
                    g = fill.pop(0)
                    if isinstance(g, tuple):
                        vm(g[1], g[0])
                    else:
                        a(g)
        a(f's_add_u32 s81, s{sROT}, {slot}\ns_and_b32 s81, s81, 15\ns_lshl_b32 s82, s81, 7\ns_mul_i32 s83, s81, 393216')
        if 'x' in part:
            a(f's_add_u32 m0, s{sLX}, {buf}')
            for i in range(4):
                if i:
                    a('s_add_u32 m0, m0, 0x400')
                vm(f'st{slot}', f'buffer_load_dwordx4 v{XO + i}, {S(S_X)}, s82 offen lds')
                gap()
        if 'w' in part:
            a(f's_add_u32 m0, s{sLW}, {buf}')
            for i in range(6):
                if i:
                    a('s_add_u32 m0, m0, 0x400')
                vm(f'st{slot}', f'buffer_load_dwordx4 v{WO + i}, {S(S_WQ)}, s83 offen lds')
                gap()
        while fill:
            g = fill.pop(0)
            if isinstance(g, tuple):
                vm(g[1], g[0])
            else:
                a(g)

    stamp(K, 4)
    issue(0, part='x')
    a('v_bfe_u32 v5, v2, 1, 1\nv_lshlrev_b32 v5, 2, v5\nv_xor_b32 v5, v5, v4')
    a('s_mov_b32 s89, 6144')
    a(f'v_mul_lo_u32 v6, v2, s89\ns_lshl_b32 s82, s{sHP}, 7\nv_add_u32 v6, s82, v6')
    for i in range(6):
        a(f's_mul_i32 s81, s{sJ}, 6\ns_add_u32 s81, s81, {i}\ns_lshr_b32 s82, s81, 3\ns_and_b32 s81, s81, 7')
        a(f's_lshl_b32 s82, s82, 11\ns_mul_i32 s83, s81, {8 * 6144}\ns_add_u32 s82, s82, s83')
        a('s_and_b32 s81, s81, 1\ns_lshl_b32 s81, s81, 1')
        a(f'v_xor_b32 v7, s81, v5\nv_lshl_add_u32 v7, v7, 4, v6\nv_add_u32 v{WO + i}, s82, v7')
    issue(0, part='w')
    issue(1)
    late_srds(K)

    def lines(txt):
        return [l for l in txt.split('\n') if l]

    class Coll:
        def __init__(self):
            self.g = []

        def __call__(self, t):
            self.g += lines(t)

        def group(self, t):
            self.g.append(t)

        def vm(self, tag, t):
            self.g.append((t, tag))

    f3 = Coll()
    f3(f'v_lshlrev_b32 v5, 2, v{V_LANE}\nv_add_u32 v5, {L_CSP}, v5')
    for w in range(4):
        for sg in range(3):
            f3(f'ds_read_b32 v{F + 4 * w + sg}, v5 offset:{768 * w + 256 * sg}')
    f3(f's_lshl_b32 s87, s{sHP}, 4\ns_add_u32 s87, s87, s{sRB}\ns_lshl_b32 s87, s87, 10\ns_add_u32 s87, s87, {WS_COLS}')
    f3(f'v_lshl_add_u32 v6, v{V_LANE}, 4, s87')
    f3('s_waitcnt lgkmcnt(0)')
    for sg in range(3):
        f3(f'v_add_f32 v{F + sg}, v{F + sg}, v{F + 4 + sg}\nv_add_f32 v{F + 8 + sg}, v{F + 8 + sg}, v{F + 12 + sg}')
    for sg in range(3):
        f3(f'v_add_f32 v{F + sg}, v{F + sg}, v{F + 8 + sg}')
    f3(f'v_mov_b32 v{F + 3}, s{sNONCE}')
    f3.vm('pub', f'v_lshrrev_b32 v5, 4, v{V_LANE}\nv_cmp_eq_u32 vcc, s{sJ}, v5\ns_and_saveexec_b64 s[96:97], vcc\n'
          f'buffer_store_dwordx4 {vr(F, 4)}, v6, {S(S_WS)}, 0 offen sc1\ns_mov_b64 exec, s[96:97]')
    f2 = Coll()
    f2(f's_min_u32 s87, s{sF}, 223\ns_lshr_b32 s88, s87, 2\ns_lshl_b32 s88, s88, 13\ns_and_b32 s89, s87, 3\ns_lshl_b32 s89, s89, 10\ns_add_u32 s88, s88, s89')
    f2(f's_lshr_b32 s89, s{sJ}, 1\ns_lshl_b32 s89, s89, 12\ns_add_u32 s88, s88, s89\ns_and_b32 s89, s{sJ}, 1\ns_lshl_b32 s89, s89, 9\ns_add_u32 s88, s88, s89\ns_add_u32 s88, s88, {WS_YPART}')
    f2(f'v_and_b32 v5, 31, v{V_LANE}\nv_lshl_add_u32 v5, v5, 4, s88\nv_mov_b64 v[{F}:{F + 1}], -1\nv_mov_b64 v[{F + 2}:{F + 3}], -1')
    f2.vm('clr', f'buffer_store_dwordx4 {vr(F, 4)}, v5, {S(S_WS)}, 0 offen sc1')
    f2(f's_lshl_b32 s87, s87, 10\ns_lshl_b32 s88, s{sJ}, 8\ns_add_u32 s87, s87, s88\ns_add_u32 s87, s87, {WS_PACT}')
    f2(f'v_and_b32 v5, 15, v{V_LANE}\nv_lshl_add_u32 v5, v5, 4, s87')
    f2.vm('clr', f'buffer_store_dwordx4 {vr(F, 4)}, v5, {S(S_WS)}, 0 offen sc1')
    f2(f's_lshl_b32 s87, s{sB}, 13\ns_lshl_b32 s88, s{sJ}, 11\ns_add_u32 s87, s87, s88\nv_and_b32 v6, 15, v{V_LANE}\nv_lshl_add_u32 v6, v6, 7, s87')
    f2.vm('touch', f'buffer_load_dword v{F + 8}, v6, {S(S_WO)}, 0 offen')
    GS = K.opt.get('gather_slot', 10)
    GR = F
    f9 = Coll()
    f9(f's_lshl_b32 s87, s{sHP}, 14\ns_lshl_b32 s88, s{sJ}, 8\ns_add_u32 s87, s87, s88\ns_add_u32 s87, s87, {WS_COLS}')
    f9(f'v_lshrrev_b32 v5, 4, v{V_LANE}\nv_lshlrev_b32 v5, 10, v5\nv_and_b32 v6, 15, v{V_LANE}\nv_lshl_add_u32 v5, v6, 4, v5\nv_add_u32 v30, s87, v5')
    f9(f's_lshl_b32 s87, s{sRB}, 11\ns_lshl_b32 s88, s{sJ}, 9\ns_add_u32 s87, s87, s88\ns_add_u32 s87, s87, {WS_ROWST}')
    f9(f'v_and_b32 v6, 31, v{V_LANE}\nv_lshl_add_u32 v31, v6, 4, s87')

    def gather(emit):
        for i in range(4):
            emit('gath', f's_mov_b32 s87, {i * 4096}\nbuffer_load_dwordx4 {vr(GR + 4 * i, 4)}, v30, {S(S_WS)}, s87 offen sc1')
        emit('gath', f'buffer_load_dwordx4 {vr(GR + 16, 4)}, v31, {S(S_WS)}, 0 offen sc1')
    gather(f9.vm)

    fa = Coll()
    for sg in range(3):
        for i in range(1, 4):
            fa(f'v_add_f32 v{GR + sg}, v{GR + sg}, v{GR + 4 * i + sg}')
    for sg in range(3):
        xor16_add(fa, GR + sg, GR + 4 + sg)
    for sg in range(3):
        xor32_add(fa, GR + sg, GR + 4 + sg)
    fa(f's_lshl_b32 s87, s{sJ}, 6\ns_add_u32 s87, s87, {L_CS}\nv_and_b32 v5, 15, v{V_LANE}\nv_lshl_add_u32 v5, v5, 2, s87')
    for sg in range(3):
        fa(f'ds_write_b32 v5, v{GR + sg} offset:{256 * sg}')
    fa(f's_lshl_b32 s87, s{sJ}, 7\ns_add_u32 s87, s87, {L_M}\nv_and_b32 v5, 31, v{V_LANE}\nv_lshl_add_u32 v5, v5, 2, s87')
    fa(f'ds_write_b32 v5, v{GR + 16}\nds_write_b32 v5, v{GR + 17} offset:512')

    def cut(g, parts):
        n = -(-len(g) // parts)
        return [g[k * n:(k + 1) * n] for k in range(parts)]
    da = cut(fa.g, 2)
    fills = {0: list(f3.g), 2: list(f2.g), GS: list(f9.g), GS + 2: list(da[0]), GS + 3: list(da[1])}
    nld = 0
    late = {}
    for s in range(16):
        wait_for(f'st{s}')
        if s == 0:
            take_nonce(K)
        if s == GS + 4:
            a('s_waitcnt lgkmcnt(0)')
        a('s_barrier')
        if s == GS + 2:
            wait_for('gath')
            lr, lo = a.newlabel('gretry'), a.newlabel('gok')
            a.label(lr)
            a(f'v_cmp_ne_u32 vcc, s{sNONCE}, v{GR + 3}')
            for i in range(1, 4):
                a(f'v_cmp_ne_u32 s[88:89], s{sNONCE}, v{GR + 4 * i + 3}\ns_or_b64 vcc, vcc, s[88:89]')
            a(f'v_cmp_ne_u32 s[88:89], s{sNONCE}, v{GR + 18}\ns_or_b64 vcc, vcc, s[88:89]')
            a(f's_cbranch_vccz {lo}')
            a(f's_add_u32 s90, s90, 1\ns_cmp_gt_u32 s90, {K.SPIN}\ns_cbranch_scc1 {lo}\ns_sleep 2')
            gather(lambda tag, t: a(t))
            a(f's_waitcnt vmcnt(0)\ns_branch {lr}')
            a.label(lo)
        if s + 2 < 16:
            issue(s + 2, fills.get(s, ()))
        else:
            for g in fills.get(s, ()):
                a(g)
        for n in late.get(s, ()):
            vm('ffn', phase4.ffn_load_text(n))
    a('s_waitcnt lgkmcnt(0)')
    a('s_barrier')
    stamp(K, 5)
```

```python
from common import *
import phase3

MF32 = 'v_mfma_f32_32x32x16_bf16'
V_LANE = 1
MASK0 = 4

QF, KF, VF = 8, 16, 24
SS, PP, OO, LL, CI, ONE = 32, 48, 56, 72, 88, 104
vKA = 108
vM, vT0, vT1 = 109, 110, 111
vNINF = 112
sQS, sHD2, sRED, sT, sTE, sHEAD = 80, 81, 82, 83, 84, 85


def key_of(i, h):
    return 16 * ((i >> 2) & 1) + 8 * ((i >> 3) & 1) + 4 * h + (i & 3)


def mask_const(i):
    m = 0
    for l in range(64):
        if key_of(i, l >> 5) <= (l & 31):
            m |= 1 << l
    return m


def read_k(a, off):
    a(f'ds_read_b128 {vr(KF, 4)}, v{vKA} offset:{off}\nds_read_b128 {vr(KF + 4, 4)}, v{vKA} offset:{off + 1024}')


def read_v(a, off):
    a(f'ds_read_b128 {vr(VF, 4)}, v{vKA} offset:{off + 2048}\nds_read_b128 {vr(VF + 4, 4)}, v{vKA} offset:{off + 3072}')


def qk(a, c):
    a(f'{MF32} {vr(SS, 16)}, {vr(KF, 4)}, {vr(QF, 4)}, {c}')
    a(f'{MF32} {vr(SS, 16)}, {vr(KF + 4, 4)}, {vr(QF + 4, 4)}, {vr(SS, 16)}')


def exp_cvt(a):
    for j in range(8):
        a(f'v_exp_f32 v{SS + 2 * j}, v{SS + 2 * j}\nv_exp_f32 v{SS + 2 * j + 1}, v{SS + 2 * j + 1}')
        if j:
            a(f'v_cvt_pk_bf16_f32 v{PP + j - 1}, v{SS + 2 * j - 2}, v{SS + 2 * j - 1}')
    a(f'v_cvt_pk_bf16_f32 v{PP + 7}, v{SS + 14}, v{SS + 15}')


def pv(a, first=False):
    co = '0' if first else vr(OO, 16)
    cl = '0' if first else vr(LL, 16)
    a(f'{MF32} {vr(OO, 16)}, {vr(VF, 4)}, {vr(PP, 4)}, {co}')
    a(f'{MF32} {vr(LL, 16)}, {vr(ONE, 4)}, {vr(PP, 4)}, {cl}')
    a(f'{MF32} {vr(OO, 16)}, {vr(VF + 4, 4)}, {vr(PP + 4, 4)}, {vr(OO, 16)}')
    a(f'{MF32} {vr(LL, 16)}, {vr(ONE, 4)}, {vr(PP + 4, 4)}, {vr(LL, 16)}')


def block_loop(K, name):
    a = K.a
    read_k(a, 0)
    a('s_waitcnt lgkmcnt(0)')
    qk(a, vr(CI, 16))
    a.label(name)
    read_k(a, 4096)
    read_v(a, 0)
    exp_cvt(a)
    a('s_waitcnt lgkmcnt(0)')
    qk(a, vr(CI, 16))
    pv(a)
    a(f'v_add_u32 v{vKA}, 4096, v{vKA}')
    a(f's_add_u32 s{sT}, s{sT}, 1\ns_cmp_lt_u32 s{sT}, s{sTE}\ns_cbranch_scc1 {name}')


def set_block(K, sreg_or_const):
    a = K.a
    a(f's_lshl_b32 s86, {sreg_or_const}, 12\nv_add_u32 v{vKA}, s86, v{vT1}')


def attention(K, stamp):
    a = K.a
    a(f's_and_b32 s{sHD2}, s{sW}, 1\ns_lshr_b32 s86, s{sW}, 1\ns_sub_u32 s87, 5, s86')
    a(f's_cmp_lt_u32 s{sW}, 4\ns_cselect_b32 s{sQS}, s86, s87')
    a(f's_lshl_b32 s{sHEAD}, s{sHP}, 1\ns_add_u32 s{sHEAD}, s{sHEAD}, s{sHD2}')
    a(f's_mov_b32 s{sRED}, 0')
    lab = a.newlabel('nowo1')
    a(f's_cmp_lt_u32 s{sW}, 4\ns_cbranch_scc1 {lab}')
    phase3.wo_dma(K, 0, 12, sub4=True)
    a.label(lab)
    a(f's_lshl_b32 s86, s{sHD2}, 13\ns_lshl_b32 s87, s{sQS}, 11\ns_add_u32 s86, s86, s87\ns_add_u32 s86, s86, {L_Q}')
    a(f'v_lshl_add_u32 v{vT0}, v{V_LANE}, 4, s86')
    a(f'ds_read_b128 {vr(QF, 4)}, v{vT0}\nds_read_b128 {vr(QF + 4, 4)}, v{vT0} offset:1024')
    a(f's_mul_i32 s86, s{sHD2}, {KV_HD}\nv_lshl_add_u32 v{vT1}, v{V_LANE}, 4, s86')
    for i in range(16):
        m = mask_const(i)
        a(f's_mov_b32 s{MASK0 + 2 * i}, 0x{m & 0xffffffff:08x}\ns_mov_b32 s{MASK0 + 2 * i + 1}, 0x{m >> 32:08x}')
    for i in range(4):
        a(f'v_mov_b32 v{ONE + i}, 0x3f803f80')
    a(f'v_mov_b32 v{vNINF}, 0xff800000')
    a.label('L_att_start')
    a(f's_add_u32 s{sT}, s{sQS}, 8')
    set_block(K, f's{sT}')
    read_k(a, 0)
    read_v(a, 0)
    a('s_waitcnt lgkmcnt(2)')
    qk(a, '0')
    for i in range(16):
        a(f'v_cndmask_b32 v{SS + i}, v{vNINF}, v{SS + i}, s[{MASK0 + 2 * i}:{MASK0 + 2 * i + 1}]')
    lab = a.newlabel('havemax')
    a(f's_cmp_lg_u32 s{sRED}, 0\ns_cbranch_scc1 {lab}')
    a(f'v_max3_f32 v{vM}, v{SS}, v{SS + 1}, v{SS + 2}')
    a(f'v_max3_f32 v{vT0}, v{SS + 3}, v{SS + 4}, v{SS + 5}')
    for i in range(6, 16, 4):
        a(f'v_max3_f32 v{vM}, v{vM}, v{SS + i}, v{SS + i + 1}')
        if i + 3 < 16:
            a(f'v_max3_f32 v{vT0}, v{vT0}, v{SS + i + 2}, v{SS + i + 3}')
    a(f'v_max_f32 v{vM}, v{vM}, v{vT0}')
    xor32_op(a, 'v_max_f32', vM, vT0)
    a.label(lab)
    a(f'v_sub_f32 v{CI}, 0, v{vM}\nv_sub_f32 v{CI + 1}, 0, v{vM}')
    for j in range(8):
        a(f'v_pk_add_f32 v[{SS + 2 * j}:{SS + 2 * j + 1}], v[{SS + 2 * j}:{SS + 2 * j + 1}], v[{CI}:{CI + 1}]')
    for j in range(1, 8):
        a(f'v_mov_b64 v[{CI + 2 * j}:{CI + 2 * j + 1}], v[{CI}:{CI + 1}]')
    exp_cvt(a)
    a('s_waitcnt lgkmcnt(0)')
    pv(a, first=True)
    stamp(K, 7)
    lab = a.newlabel('noflag')
    a(f's_cmp_ge_u32 s{sW}, 4\ns_cbranch_scc1 {lab}\ns_cmp_lg_u32 s{sRED}, 0\ns_cbranch_scc1 {lab}')
    a('s_waitcnt vmcnt(0)')
    a(f's_lshl_b32 s86, s{sRB}, 4\ns_add_u32 s86, s86, s{sHP}\ns_lshl_b32 s86, s86, 6\ns_lshl_b32 s87, s{sW}, 2\ns_add_u32 s86, s86, s87\ns_add_u32 s86, s86, {WS_KVFLAG}')
    a(f'v_mov_b32 v{vT0}, s86\nv_mov_b32 v2, s{sNONCE}')
    a(f'v_cmp_eq_u32 vcc, 0, v{V_LANE}\ns_and_saveexec_b64 s[96:97], vcc')
    a(f'buffer_store_dword v2, v{vT0}, {S(S_WS)}, 0 offen sc1\ns_mov_b64 exec, s[96:97]')
    stamp(K, 12)
    K.hook('ffn_load0')
    a.label(lab)
    lab = a.newlabel('nolocal')
    a(f's_cmp_eq_u32 s{sQS}, 0\ns_cbranch_scc1 {lab}')
    a(f's_mov_b32 s{sT}, 8\ns_add_u32 s{sTE}, s{sQS}, 8')
    set_block(K, f's{sT}')
    block_loop(K, 'L_att_local')
    a.label(lab)
    stamp(K, 8)
    lskip = a.newlabel('remdone')
    a(f's_cmp_lg_u32 s{sRED}, 0\ns_cbranch_scc1 {lskip}')
    lnod = a.newlabel('nodma')
    a(f's_lshr_b32 s86, s{sW}, 2\ns_add_u32 s87, s{sRB}, s86\ns_cmp_lt_u32 s87, 2\ns_cbranch_scc1 {lnod}')
    a(f's_sub_u32 s87, s87, 2\ns_lshl_b32 s87, s87, 4\ns_add_u32 s87, s87, s{sHP}')
    a(f's_and_b32 s88, s{sW}, 3\ns_lshl_b32 s89, s87, 6\ns_lshl_b32 s91, s88, 2\ns_add_u32 s89, s89, s91\ns_add_u32 s89, s89, {WS_KVFLAG}')
    a(f'v_mov_b32 v{vT0}, s89\ns_mov_b32 s90, 0')
    lp, lok = a.newlabel('kvpoll'), a.newlabel('kvok')
    a.label(lp)
    a(f'buffer_load_dword v2, v{vT0}, {S(S_WS)}, 0 offen sc1\ns_waitcnt vmcnt(0)')
    a(f'v_cmp_ne_u32 vcc, s{sNONCE}, v2\ns_cbranch_vccz {lok}')
    a(f's_add_u32 s90, s90, 1\ns_cmp_gt_u32 s90, {K.SPIN}\ns_cbranch_scc1 {lok}\ns_sleep 1\ns_branch {lp}')
    a.label(lok)
    stamp(K, 30)
    a('s_and_b32 s91, s88, 1\ns_lshr_b32 s92, s88, 1')
    a(f's_lshl_b32 s87, s87, 15\ns_lshl_b32 s93, s91, 14\ns_add_u32 s87, s87, s93\ns_lshl_b32 s93, s92, 13\ns_add_u32 s87, s87, s93\ns_add_u32 s87, s87, {WS_KV}')
    a(f's_mul_i32 s91, s91, {KV_HD}\ns_lshl_b32 s86, s86, 14\ns_add_u32 s91, s91, s86\ns_add_u32 s91, s91, s93')
    a(f'v_lshlrev_b32 v2, 4, v{V_LANE}\ns_mov_b32 m0, s91')
    for i in range(8):
        if i:
            a('s_add_u32 m0, m0, 0x400\ns_add_u32 s87, s87, 0x400')
        a(f'buffer_load_dwordx4 v2, {S(S_WS)}, s87 offen sc1 lds')
    a('s_waitcnt vmcnt(0)')
    stamp(K, 31)
    a.label(lnod)
    a('s_barrier')
    phase3.wo_dma(K, 48, 2)
    lab = a.newlabel('noffn1')
    a(f's_cmp_lt_u32 s{sW}, 4\ns_cbranch_scc1 {lab}')
    K.hook('ffn_load1')
    a.label(lab)
    a.label(lskip)
    stamp(K, 9)
    lnf, lrem, lend = a.newlabel('nofirst'), a.newlabel('remloop'), a.newlabel('remend')
    a(f's_cmp_eq_u32 s{sRB}, 0\ns_cbranch_scc1 {lend}')
    a(f's_cmp_eq_u32 s{sRB}, 1\ns_cbranch_scc1 {lnf}')
    set_block(K, f's{sQS}')
    read_k(a, 0)
    read_v(a, 0)
    a('s_waitcnt lgkmcnt(2)')
    qk(a, vr(CI, 16))
    for i in range(16):
        a(f'v_cndmask_b32 v{SS + i}, v{SS + i}, v{vNINF}, s[{MASK0 + 2 * i}:{MASK0 + 2 * i + 1}]')
    exp_cvt(a)
    a('s_waitcnt lgkmcnt(0)')
    pv(a)
    a(f's_add_u32 s{sT}, s{sQS}, 1\ns_max_u32 s{sT}, s{sT}, 1')
    a(f's_cmp_ge_u32 s{sT}, 8\ns_cbranch_scc1 {lend}\ns_branch {lrem}')
    a.label(lnf)
    a(f's_mov_b32 s{sT}, 4')
    a.label(lrem)
    a(f's_mov_b32 s{sTE}, 8')
    set_block(K, f's{sT}')
    block_loop(K, 'L_att_remote')
    a.label(lend)
    stamp(K, 10)
    lokk = a.newlabel('att_ok')
    a(f's_cmp_lg_u32 s{sRED}, 0\ns_cbranch_scc1 {lokk}')
    a(f'v_mov_b32 v{vT0}, 0x5f800000')
    a(f'v_cmp_nlt_f32 vcc, v{LL}, v{vT0}\ns_cbranch_vccz {lokk}')
    true_max(K)
    a(f's_mov_b32 s{sRED}, 1\ns_branch L_att_start')
    a.label(lokk)
    a('s_nop 5')
    a(f'v_rcp_f32 v{vM}, v{LL}')
    a(f's_lshl_b32 s86, s{sRB}, 3\ns_lshl_b32 s87, s{sQS}, 1\ns_add_u32 s86, s86, s87\ns_lshl_b32 s86, s86, 5\ns_add_u32 s86, s86, s{sHEAD}\ns_lshl_b32 s86, s86, 10\ns_add_u32 s86, s86, {WS_O}')
    a(f'v_bfe_u32 v2, v{V_LANE}, 4, 1\nv_lshlrev_b32 v2, 15, v2')
    a(f'v_lshrrev_b32 v4, 5, v{V_LANE}\nv_lshlrev_b32 v4, 8, v4\nv_add_u32 v2, v2, v4')
    a(f'v_and_b32 v4, 15, v{V_LANE}\nv_lshl_add_u32 v2, v4, 4, v2\nv_add_u32 v2, s86, v2')
    for j in range(8):
        a(f'v_pk_mul_f32 v[{OO + 2 * j}:{OO + 2 * j + 1}], v[{OO + 2 * j}:{OO + 2 * j + 1}], v[{vM - 1}:{vM}] op_sel:[0,1] op_sel_hi:[1,1]')
    for j in range(8):
        a(f'v_cvt_pk_bf16_f32 v{PP + j}, v{OO + 2 * j}, v{OO + 2 * j + 1}')
    a(f'buffer_store_dwordx4 {vr(PP, 4)}, v2, {S(S_WS)}, 0 offen sc1')
    a(f'buffer_store_dwordx4 {vr(PP + 4, 4)}, v2, {S(S_WS)}, 0 offen offset:512 sc1')
    a(f's_lshl_b32 s86, s{sRB}, 2\ns_add_u32 s86, s86, s{sQS}\ns_lshl_b32 s86, s86, 7\ns_lshl_b32 s87, s{sHEAD}, 2\ns_add_u32 s86, s86, s87\ns_add_u32 s86, s86, {WS_OFLAG}')
    a(f'v_mov_b32 v4, s86\nv_mov_b32 v5, s{sNONCE}')
    a('s_waitcnt vmcnt(0)')
    a(f'v_cmp_eq_u32 vcc, 0, v{V_LANE}\ns_and_saveexec_b64 s[96:97], vcc')
    a(f'buffer_store_dword v5, v4, {S(S_WS)}, 0 offen sc1\ns_mov_b64 exec, s[96:97]')
    stamp(K, 11)


def true_max(K):
    a = K.a
    lloop, lnm, ldone = a.newlabel('tm_loop'), a.newlabel('tm_nomask'), a.newlabel('tm_done')
    a(f's_cmp_eq_u32 s{sRB}, 0\ns_cselect_b32 s{sT}, 8, s{sQS}\ns_cmp_eq_u32 s{sRB}, 1\ns_cselect_b32 s{sT}, 4, s{sT}')
    a(f's_add_u32 s{sTE}, s{sQS}, 8')
    a(f's_cmp_ge_u32 s{sT}, s{sTE}\ns_cbranch_scc1 {ldone}')
    a.label(lloop)
    set_block(K, f's{sT}')
    read_k(a, 0)
    a('s_waitcnt lgkmcnt(0)')
    qk(a, '0')
    a(f's_cmp_lt_u32 s{sRB}, 2\ns_cbranch_scc1 {lnm}\ns_cmp_lg_u32 s{sT}, s{sQS}\ns_cbranch_scc1 {lnm}')
    for i in range(16):
        a(f'v_cndmask_b32 v{SS + i}, v{SS + i}, v{vNINF}, s[{MASK0 + 2 * i}:{MASK0 + 2 * i + 1}]')
    a.label(lnm)
    a('s_nop 7\ns_nop 3')
    for i in range(0, 16, 2):
        a(f'v_max3_f32 v{vM}, v{vM}, v{SS + i}, v{SS + i + 1}')
    a(f's_add_u32 s{sT}, s{sT}, 1\ns_cmp_lt_u32 s{sT}, s{sTE}\ns_cbranch_scc1 {lloop}')
    a.label(ldone)
    xor32_op(a, 'v_max_f32', vM, vT0)
```

```python
from common import *

MF16 = 'v_mfma_f32_16x16x32_bf16'
V_LANE = 1
AC, WFA, WFB, VWO, XR, WRP, WRF, SW = 8, 40, 56, 72, 76, 84, 88, 96
T0 = 97
OF = 112
HP, HF = 40, 48
ST = 64
OUTP = 112
sTB, sKH = 80, 81
L_WO0, L_WO1, L_EX = 98304, 0, 65536
L_STA = 0
L_ST2 = 4096
L_RR = 8192


def wo_dma(K, base, per, sub4=False):
    a = K.a
    if sub4:
        base -= 4 * per
    a(f'v_lshrrev_b32 v2, 3, v{V_LANE}\nv_and_b32 v4, 7, v{V_LANE}')
    a('v_bfe_u32 v5, v2, 1, 2\nv_lshlrev_b32 v5, 1, v5\nv_xor_b32 v5, v5, v4')
    a(f's_mul_i32 s86, s{sW}, {per}\n' + (f's_add_u32 s86, s86, {base}' if base >= 0 else f's_sub_u32 s86, s86, {-base}'))
    a(f's_lshl_b32 s87, s86, 3\nv_add_u32 v6, s87, v2\nv_lshlrev_b32 v6, 11, v6')
    a(f's_lshl_b32 s87, s{sCB}, 7\nv_lshl_add_u32 v6, v5, 4, v6\nv_add_u32 v6, s87, v6')
    if base < 64:
        a(f's_lshl_b32 s86, s86, 10\ns_add_u32 m0, s86, {L_WO0}')
    else:
        assert L_WO1 == 0
        a('s_lshl_b32 s86, s86, 10\ns_sub_u32 m0, s86, 65536')
    for i in range(per):
        if i:
            a('s_add_u32 m0, m0, 0x400')
        a(f's_mov_b32 s87, {i * 16384}\nbuffer_load_dwordx4 v6, {S(S_WO)}, s87 offen lds')


def outproj(K, stamp):
    a = K.a
    a(f's_and_b32 s{sTB}, s{sW}, 3\ns_lshr_b32 s{sKH}, s{sW}, 2')
    a('s_barrier')
    wo_dma(K, 64, 8)
    a(f'v_lshrrev_b32 v2, 4, v{V_LANE}\nv_and_b32 v4, 15, v{V_LANE}')
    a('v_lshrrev_b32 v6, 1, v2\nv_lshlrev_b32 v6, 4, v6\nv_and_b32 v7, 1, v2\nv_lshl_add_u32 v6, v7, 2, v6')
    a('v_lshrrev_b32 v8, 2, v4\nv_add_u32 v6, v6, v8\nv_lshlrev_b32 v6, 7, v6')
    a('v_and_b32 v8, 3, v4\nv_lshl_add_u32 v6, v8, 3, v6')
    a(f's_cmp_eq_u32 s{sKH}, 0\ns_cselect_b32 s87, {L_WO0}, {L_WO1}\nv_add_u32 v6, s87, v6')
    a('v_bfe_u32 v8, v4, 3, 1\nv_lshl_add_u32 v8, v7, 1, v8')
    a(f's_lshl_b32 s87, s{sKH}, 1\nv_xor_b32 v8, s87, v8')
    for n in range(4):
        a(f'v_xor_b32 v9, {n}, v8\nv_lshl_add_u32 v{VWO + n}, v9, 5, v6')
    a(f's_lshl_b32 s86, s{sCB}, 7\ns_lshl_b32 s87, s{sKH}, 6\ns_add_u32 s86, s86, s87')
    a(f'v_lshl_add_u32 v{T0}, v2, 3, s86')
    a(f's_lshl_b32 s87, s{sRB2}, 7\ns_lshl_b32 s88, s{sTB}, 5\ns_add_u32 s87, s87, s88\nv_add_u32 v6, s87, v4\nv_lshl_add_u32 v{T0 + 1}, v6, 11, v{T0}')
    a(f'v_lshlrev_b32 v{T0 + 2}, 4, v{V_LANE}')
    a(f's_lshl_b32 s86, s{sRB2}, 3\ns_lshl_b32 s87, s{sTB}, 1\ns_add_u32 s86, s86, s87\ns_lshl_b32 s86, s86, 5\ns_lshl_b32 s87, s{sKH}, 4\ns_add_u32 s86, s86, s87\ns_lshl_b32 s86, s86, 10\ns_add_u32 s86, s86, {WS_O}')
    a(f'v_add_u32 v{T0 + 11}, s86, v{T0 + 2}\nv_add_u32 v{T0 + 12}, 32768, v{T0 + 11}')
    a(f's_lshl_b32 s86, s{sRB2}, 2\ns_add_u32 s86, s86, s{sTB}\ns_lshl_b32 s86, s86, 7\ns_lshl_b32 s87, s{sKH}, 6\ns_add_u32 s86, s86, s87\ns_add_u32 s86, s86, {WS_OFLAG}')
    a(f'v_and_b32 v6, 15, v{V_LANE}\nv_lshl_add_u32 v6, v6, 2, s86\ns_mov_b32 s90, 0')
    lp, lok = a.newlabel('opoll'), a.newlabel('ook')
    a.label(lp)
    a(f'buffer_load_dword v7, v6, {S(S_WS)}, 0 offen sc1\ns_waitcnt vmcnt(0)')
    a(f'v_cmp_ne_u32 vcc, s{sNONCE}, v7\ns_cbranch_vccz {lok}')
    a(f's_add_u32 s90, s90, 1\ns_cmp_gt_u32 s90, {K.SPIN}\ns_cbranch_scc1 {lok}\ns_sleep 1\ns_branch {lp}')
    a.label(lok)
    stamp(K, 16)
    NSLOT, AHEAD = 5, K.opt.get('ahead', 4)
    slot = lambda hh: OF + 8 * (hh % NSLOT)
    q = []

    def vm(tag, t):
        a(t)
        q.append(tag)

    def oload(hh):
        a(f's_mov_b32 s87, {(hh >> 2) * 4096}')
        for b in range(2):
            vm(f'o{hh}', f'buffer_load_dwordx4 {vr(slot(hh) + 4 * b, 4)}, v{T0 + 11 + b}, {S(S_WS)}, s87 offen offset:{(hh % 4) * 1024} sc1')

    def wait_vm(tag, extra=''):
        last = max(i for i, t in enumerate(q) if t == tag)
        a(f's_waitcnt vmcnt({len(q) - 1 - last}){extra}')
    WALL = T0 + 3
    for hh in range(2):
        oload(hh)
    for nb in range(2):
        vm('wr', f'buffer_load_dwordx2 {vr(WRP + 2 * nb, 2)}, v{T0}, {S(S_WR)}, 0 offen offset:{32 * nb}')
    vm('wr', f'buffer_load_dwordx4 {vr(WALL, 4)}, v{T0 + 2}, {S(S_WR)}, 0 offen')
    vm('wr', f'buffer_load_dwordx4 {vr(WALL + 4, 4)}, v{T0 + 2}, {S(S_WR)}, 0 offen offset:1024')
    for hh in range(2, AHEAD):
        oload(hh)
    a('s_barrier')

    def wreads(Sset, hh):
        r = []
        for n in range(4):
            for rd in range(2):
                r.append(f'ds_read_b64_tr_b16 {vr(Sset + 4 * n + 2 * rd, 2)}, v{VWO + n} offset:{hh * 4096 + rd * 1024}')
        return r
    fill = []
    ta, tb_ = T0 + 13, T0 + 14
    for d in range(8):
        fill.append(f'v_lshlrev_b32 v{ta}, 16, v{WALL + d}')
        fill.append(f'v_and_b32 v{tb_}, 0xffff0000, v{WALL + d}')
        if d == 0:
            fill.append(f'v_add_f32 v{SW}, v{ta}, v{tb_}')
        else:
            fill.append(f'v_add_f32 v{ta}, v{ta}, v{tb_}')
            fill.append(f'v_add_f32 v{SW}, v{SW}, v{ta}')

    class C:
        def __call__(self, t):
            fill.extend(l for l in t.split('\n') if l)
    wave_sum(C(), SW, ta)
    for nb in range(2):
        for d in range(2):
            fill.append(f'v_lshlrev_b32 v{WRF + 4 * nb + 2 * d}, 16, v{WRP + 2 * nb + d}')
            fill.append(f'v_and_b32 v{WRF + 4 * nb + 2 * d + 1}, 0xffff0000, v{WRP + 2 * nb + d}')
    for x in wreads(WFA, 0):
        a(x)
    for hh in range(16):
        cur, nxt = (WFA, WFB) if hh % 2 == 0 else (WFB, WFA)
        r = wreads(nxt, hh + 1) if hh < 15 else []
        if hh + AHEAD < 16:
            oload(hh + AHEAD)
        elif hh + AHEAD == 16:
            a('s_mov_b32 s87, 32768')
            for b in range(2):
                for nb in range(2):
                    vm('x', f'buffer_load_dwordx2 {vr(XR + 4 * b + 2 * nb, 2)}, v{T0 + 1}, {S(S_X)}, {"0" if b == 0 else "s87"} offen offset:{32 * nb}')
        wait_vm(f'o{hh}', ' lgkmcnt(0)')
        k = 0
        for n in range(4):
            for b in range(2):
                c = vr(AC + 8 * n + 4 * b, 4)
                a(f'{MF16} {c}, {vr(cur + 4 * n, 4)}, {vr(slot(hh) + 4 * b, 4)}, {c if hh else "0"}')
                if k < len(r):
                    a(r[k])
                if hh >= 3 and fill:
                    a(fill.pop(0))
                k += 1
    assert not fill
    stamp(K, 17)
    a(f's_lshl_b32 s86, s{sTB}, 13\ns_lshl_b32 s87, s{sKH}, 12\ns_add_u32 s88, s86, s87\ns_add_u32 s88, s88, {L_EX}')
    a(f's_xor_b32 s87, s87, 4096\ns_add_u32 s86, s86, s87\ns_add_u32 s86, s86, {L_EX}')
    a(f'v_lshl_add_u32 v6, v{V_LANE}, 4, s86\nv_lshl_add_u32 v7, v{V_LANE}, 4, s88')
    for n in range(2):
        for b in range(2):
            a(f'ds_write_b128 v6, {vr(AC + 8 * (2 + n) + 4 * b, 4)} offset:{(2 * n + b) * 1024}')
    a('s_waitcnt vmcnt(0)')
    for b in range(2):
        for n in range(2):
            for h in range(2):
                x = XR + 4 * b + 2 * n + h
                d = HF + 8 * b + 4 * n + 2 * h
                a(f'v_lshlrev_b32 v{d}, 16, v{x}\nv_and_b32 v{d + 1}, 0xffff0000, v{x}')
    for n in range(2):
        for b in range(2):
            c = AC + 8 * n + 4 * b
            for h in range(2):
                d = HF + 8 * b + 4 * n + 2 * h
                a(f'v_pk_add_f32 v[{d}:{d + 1}], v[{d}:{d + 1}], v[{c + 2 * h}:{c + 2 * h + 1}]')
    a('s_waitcnt lgkmcnt(0)\ns_barrier')
    U = OF + 16
    for n in range(2):
        for b in range(2):
            a(f'ds_read_b128 {vr(OF + 4 * (2 * n + b), 4)}, v7 offset:{(2 * n + b) * 1024}')
    K.hook('ffn_dma0')
    a('s_waitcnt lgkmcnt(0)')
    for n in range(2):
        for b in range(2):
            e = OF + 4 * (2 * n + b)
            for h in range(2):
                d = HF + 8 * b + 4 * n + 2 * h
                a(f'v_pk_add_f32 v[{d}:{d + 1}], v[{d}:{d + 1}], v[{e + 2 * h}:{e + 2 * h + 1}]')
    p = lambda b, j: f'v[{HF + 8 * b + 2 * j}:{HF + 8 * b + 2 * j + 1}]'
    w = lambda j: f'v[{WRF + 2 * j}:{WRF + 2 * j + 1}]'
    tt = lambda b, k: f'v[{U + 6 * b + 2 * k}:{U + 6 * b + 2 * k + 1}]'
    for b in range(2):
        a(f'v_pk_add_f32 {tt(b, 0)}, {p(b, 0)}, {p(b, 1)}')
        a(f'v_pk_mul_f32 {tt(b, 1)}, {p(b, 0)}, {p(b, 0)}')
        a(f'v_pk_mul_f32 {tt(b, 2)}, {p(b, 0)}, {w(0)}')
    for b in range(2):
        a(f'v_pk_fma_f32 {tt(b, 1)}, {p(b, 1)}, {p(b, 1)}, {tt(b, 1)}')
        a(f'v_pk_fma_f32 {tt(b, 2)}, {p(b, 1)}, {w(1)}, {tt(b, 2)}')
    for j in (2, 3):
        for b in range(2):
            a(f'v_pk_add_f32 {tt(b, 0)}, {tt(b, 0)}, {p(b, j)}')
            a(f'v_pk_fma_f32 {tt(b, 1)}, {p(b, j)}, {p(b, j)}, {tt(b, 1)}')
            a(f'v_pk_fma_f32 {tt(b, 2)}, {p(b, j)}, {w(j)}, {tt(b, 2)}')
    for b in range(2):
        for k in range(3):
            a(f'v_add_f32 v{ST + 4 * b + k}, v{U + 6 * b + 2 * k}, v{U + 6 * b + 2 * k + 1}')
    for k in range(3):
        a(f'v_permlane16_swap_b32 v{ST + k}, v{ST + 4 + k}')
    for k in range(3):
        a(f'v_add_f32 v{ST + k}, v{ST + k}, v{ST + 4 + k}')
    for k in range(3):
        xor32_add(a, ST + k, ST + 4 + k)
    a(f'v_mov_b32 v{ST + 3}, s{sNONCE}')
    a(f's_lshl_b32 s86, s{sTB}, 10\ns_lshl_b32 s87, s{sKH}, 9\ns_add_u32 s88, s86, s87\ns_add_u32 s88, s88, {L_STA}')
    a(f'v_and_b32 v6, 31, v{V_LANE}\nv_lshl_add_u32 v7, v6, 4, s88')
    a(f'ds_write_b128 v7, {vr(ST, 4)}')
    a('s_waitcnt lgkmcnt(0)\ns_barrier')
    lg, lgj = a.newlabel('gather'), a.newlabel('gatherj')
    a(f's_cmp_eq_u32 s{sKH}, 0\ns_cbranch_scc1 {lg}')
    stamp(K, 18)
    K.hook('ffn_write1')
    K.hook('ffn_dma1')
    a('s_waitcnt lgkmcnt(0)')
    a(f's_branch {lgj}')
    a.label(lg)
    a(f'ds_read_b128 {vr(U + 4, 4)}, v7 offset:512')
    a(f's_lshl_b32 s86, s{sRB2}, 4\ns_add_u32 s86, s86, s{sCB}\ns_lshl_b32 s86, s86, 7\ns_lshl_b32 s87, s{sTB}, 5\ns_add_u32 s86, s86, s87\ns_lshl_b32 s86, s86, 4\ns_add_u32 s86, s86, {WS_ST2}')
    a('v_lshl_add_u32 v6, v6, 4, s86')
    a('s_waitcnt lgkmcnt(0)')
    for k in range(3):
        a(f'v_add_f32 v{ST + k}, v{ST + k}, v{U + 4 + k}')
    a(f'v_cmp_gt_u32 vcc, 32, v{V_LANE}\ns_and_saveexec_b64 s[96:97], vcc')
    a(f'buffer_store_dwordx4 {vr(ST, 4)}, v6, {S(S_WS)}, 0 offen sc1\ns_mov_b64 exec, s[96:97]')
    stamp(K, 18)
    a(f's_lshl_b32 s86, s{sRB2}, 4\ns_lshl_b32 s86, s86, 7\ns_lshl_b32 s87, s{sTB}, 5\ns_add_u32 s86, s86, s87\ns_lshl_b32 s86, s86, 4\ns_add_u32 s86, s86, {WS_ST2}')
    a(f'v_lshrrev_b32 v6, 5, v{V_LANE}\nv_lshlrev_b32 v6, 11, v6\nv_and_b32 v7, 31, v{V_LANE}\nv_lshl_add_u32 v6, v7, 4, v6\nv_add_u32 v6, s86, v6')
    a('s_mov_b32 s90, 0')
    lp, lok = a.newlabel('s2poll'), a.newlabel('s2ok')
    a.label(lp)
    for i in range(8):
        a(f's_mov_b32 s87, {i * 4096}\nbuffer_load_dwordx4 {vr(U + 4 * i, 4)}, v6, {S(S_WS)}, s87 offen sc1')
    lnw = a.newlabel('nowrite')
    a(f's_cmp_lg_u32 s90, 0\ns_cbranch_scc1 {lnw}')
    K.hook('ffn_write0')
    a.label(lnw)
    a('s_waitcnt vmcnt(0)')
    a(f'v_cmp_ne_u32 vcc, s{sNONCE}, v{U + 3}')
    for i in range(1, 8):
        a(f'v_cmp_ne_u32 s[88:89], s{sNONCE}, v{U + 4 * i + 3}\ns_or_b64 vcc, vcc, s[88:89]')
    a(f's_cbranch_vccz {lok}')
    a(f's_add_u32 s90, s90, 1\ns_cmp_gt_u32 s90, {K.SPIN}\ns_cbranch_scc1 {lok}\ns_sleep 1\ns_branch {lp}')
    a.label(lok)
    for st in (4, 2, 1):
        for i in range(st):
            for k in range(3):
                a(f'v_add_f32 v{U + 4 * i + k}, v{U + 4 * i + k}, v{U + 4 * (i + st) + k}')
    for k in range(3):
        xor32_add(a, U + k, U + 4 + k)
    m, v, r = U, U + 1, U + 2
    a(f's_mov_b32 s88, {f32hex(1.0 / 1024)}\ns_mov_b32 s89, {f32hex(1e-5)}')
    a(f'v_mul_f32 v{m}, s88, v{m}\nv_mul_f32 v{v}, s88, v{v}')
    a(f'v_fma_f32 v{v}, -v{m}, v{m}, v{v}\nv_max_f32 v{v}, 0, v{v}')
    round_bf16(a, v, U + 4)
    round_bf16(a, m, U + 5)
    a(f'v_add_f32 v{v}, s89, v{v}')
    round_bf16(a, v, U + 4)
    a(f'v_sqrt_f32 v{v}, v{v}')
    round_bf16(a, v, U + 4)
    a(f'v_rcp_f32 v{v}, v{v}')
    a(f'v_fma_f32 v{r}, -v{m}, v{SW}, v{r}')
    a(f'v_mul_f32 v{r}, v{r}, v{v}\nv_mul_f32 v{m}, v{m}, v{v}')
    a(f'v_sub_f32 v{U + 5}, 0, v{m}\nv_mov_b32 v{U + 4}, v{v}\nv_mov_b32 v{U + 6}, v{r}')
    a(f's_lshl_b32 s86, s{sTB}, 9\ns_add_u32 s88, s86, {L_ST2}')
    a(f'v_lshl_add_u32 v7, v7, 4, s88')
    a(f'ds_write_b128 v7, {vr(U + 4, 4)}')
    a('s_waitcnt lgkmcnt(0)')
    a.label(lgj)
    a('s_barrier')
    K.hook('ffn_dma2')
    stamp(K, 19)
    a(f's_lshl_b32 s86, s{sTB}, 9\ns_add_u32 s86, s86, {L_ST2}\nv_and_b32 v6, 15, v{V_LANE}\nv_lshl_add_u32 v6, v6, 4, s86')
    a(f'v_lshlrev_b32 v7, 4, v{V_LANE}\nv_add_u32 v7, {L_ST2}, v7')
    a(f'ds_read_b32 v{U}, v7 offset:8\nds_read_b32 v{U + 1}, v7 offset:1032')
    for b in range(2):
        a(f'ds_read_b128 {vr(ST + 4 * b, 4)}, v6 offset:{256 * b}')
    candidates(K, stamp, U)
    for b in range(2):
        a(f'v_add_f32 v{ST + 4 * b + 2}, 1.0, v{ST + 4 * b}')
    for b in range(2):
        ab = f'v[{ST + 4 * b + 2}:{ST + 4 * b + 3}]'
        bb = f'v[{ST + 4 * b}:{ST + 4 * b + 1}]'
        for j in range(4):
            i = 4 * b + j
            a(f'v_pk_fma_f32 v[{U + 2 * i}:{U + 2 * i + 1}], v[{HF + 2 * i}:{HF + 2 * i + 1}], {ab}, {bb} op_sel:[0,0,1] op_sel_hi:[1,0,1]')
    for i in range(8):
        a(f'v_cvt_pk_bf16_f32 v{OUTP + i}, v{U + 2 * i}, v{U + 2 * i + 1}')
    a(f'v_lshrrev_b32 v2, 4, v{V_LANE}\nv_and_b32 v4, 15, v{V_LANE}')
    a('v_and_b32 v7, 1, v2\nv_lshlrev_b32 v7, 5, v7\nv_lshrrev_b32 v8, 1, v2\nv_lshl_add_u32 v7, v8, 4, v7')
    a(f's_lshl_b32 s86, s{sCB}, 7\ns_lshl_b32 s87, s{sKH}, 6\ns_add_u32 s86, s86, s87\nv_add_u32 v7, s86, v7')
    a(f's_lshl_b32 s87, s{sRB2}, 7\ns_lshl_b32 s88, s{sTB}, 5\ns_add_u32 s87, s87, s88\nv_add_u32 v8, s87, v4\nv_lshl_add_u32 v7, v8, 11, v7')
    for b in range(2):
        for h in range(2):
            a(f'v_permlane16_swap_b32 v{OUTP + 4 * b + h}, v{OUTP + 4 * b + 2 + h}')
    a(f'buffer_store_dwordx4 {vr(OUTP, 4)}, v7, {S(S_OUT)}, 0 offen sc1')
    a(f's_mov_b32 s87, 32768\nbuffer_store_dwordx4 {vr(OUTP + 4, 4)}, v7, {S(S_OUT)}, s87 offen sc1')
    stamp(K, 21)


def wave_max_u32(a, v, t):
    for ctl in ('quad_perm:[1,0,3,2]', 'quad_perm:[2,3,0,1]', 'row_half_mirror', 'row_mirror'):
        a(f'v_max_u32_dpp v{v}, v{v}, v{v} {ctl} row_mask:0xf bank_mask:0xf')
    xor16_op(a, 'v_max_u32', v, t)
    xor32_op(a, 'v_max_u32', v, t)


def sortable(a, dst, src, t):
    a(f'v_ashrrev_i32 v{t}, 31, v{src}\nv_or_b32 v{t}, 0x80000000, v{t}\nv_xor_b32 v{dst}, v{src}, v{t}')


sI1, sI2 = 82, 83


def candidates(K, stamp, U):
    a = K.a
    R0, R1, K0, K1, HI, LO, M1, TT = U, U + 1, U + 2, U + 3, U + 4, U + 5, U + 6, U + 7
    a('s_waitcnt lgkmcnt(0)')
    sortable(a, K0, R0, TT)
    sortable(a, K1, R1, TT)
    a(f'v_sub_u32 v{TT}, 127, v{V_LANE}\ns_movk_i32 s88, 0xff80')
    a(f'v_and_or_b32 v{K0}, v{K0}, s88, v{TT}\nv_subrev_u32 v{TT}, 64, v{TT}\nv_and_or_b32 v{K1}, v{K1}, s88, v{TT}')
    a(f'v_max_u32 v{HI}, v{K0}, v{K1}\nv_min_u32 v{LO}, v{K0}, v{K1}\nv_mov_b32 v{M1}, v{HI}')
    wave_max_u32(a, M1, TT)
    a(f'v_cmp_eq_u32 vcc, v{M1}, v{HI}')
    a(f'v_cndmask_b32 v{HI}, v{HI}, v{LO}, vcc')
    wave_max_u32(a, HI, TT)
    a(f'v_readfirstlane_b32 s{sI1}, v{M1}\nv_readfirstlane_b32 s{sI2}, v{HI}')
    a(f's_and_b32 s{sI1}, s{sI1}, 127\ns_sub_u32 s{sI1}, 127, s{sI1}\ns_and_b32 s{sI2}, s{sI2}, 127\ns_sub_u32 s{sI2}, 127, s{sI2}')
    lab = a.newlabel('nocand')
    a(f's_cmp_lg_u32 s{sCB}, 0\ns_cbranch_scc1 {lab}\ns_cmp_lg_u32 s{sW}, 0\ns_cbranch_scc1 {lab}')
    a(f's_lshl_b32 s86, s{sI1}, 4\ns_add_u32 s86, s86, {L_ST2 + 8}\nv_mov_b32 v6, s86\nds_read_b32 v{U + 8}, v6')
    a(f's_lshl_b32 s86, s{sI2}, 4\ns_add_u32 s86, s86, {L_ST2 + 8}\nv_mov_b32 v7, s86\nds_read_b32 v{U + 9}, v7')
    a(f's_lshl_b32 s86, s{sRB2}, 7\ns_add_u32 s87, s86, s{sI1}\ns_add_u32 s88, s86, s{sI2}\ns_lshl_b32 s88, s88, 16\ns_or_b32 s87, s87, s88')
    a(f'v_mov_b32 v{U + 10}, s87\nv_mov_b32 v{U + 11}, s{sNONCE}')
    a(f's_lshl_b32 s86, s{sRB2}, 6\ns_add_u32 s86, s86, {WS_CAND}\nv_mov_b32 v6, s86')
    a(f's_waitcnt lgkmcnt(0)\nv_cmp_eq_u32 vcc, 0, v{V_LANE}\ns_and_saveexec_b64 s[96:97], vcc')
    a(f'buffer_store_dwordx4 {vr(U + 8, 4)}, v6, {S(S_WS)}, 0 offen sc1\ns_mov_b64 exec, s[96:97]')
    a.label(lab)
    a(f'v_lshrrev_b32 v2, 4, v{V_LANE}\nv_and_b32 v4, 15, v{V_LANE}')
    G = U + 12
    a('s_mov_b32 s88, 0x05040100\ns_mov_b32 s89, 0x07060302')
    for slot, sI in ((0, sI1), (1, sI2)):
        lskip, lb1, lst = a.newlabel('crskip'), a.newlabel('crb1'), a.newlabel('crst')
        a(f's_lshr_b32 s86, s{sI}, 5\ns_cmp_lg_u32 s86, s{sTB}\ns_cbranch_scc1 {lskip}')
        a(f's_bitcmp1_b32 s{sI}, 4\ns_cbranch_scc1 {lb1}')
        for b in range(2):
            if b == 1:
                a.label(lb1)
            rs = f'v[{ST + 4 * b}:{ST + 4 * b + 1}]'
            for j in range(4):
                hp = f'v[{HF + 8 * b + 2 * j}:{HF + 8 * b + 2 * j + 1}]'
                a(f'v_pk_fma_f32 v[{G + 16 + 2 * j}:{G + 17 + 2 * j}], {hp}, {rs}, {rs} op_sel:[0,0,1] op_sel_hi:[1,0,1]')
            for j in range(4):
                a(f'v_cvt_pk_bf16_f32 v{G + 24 + j}, v{HF + 8 * b + 2 * j}, v{HF + 8 * b + 2 * j + 1}')
                a(f'v_cvt_pk_bf16_f32 v{G + 28 + j}, v{G + 16 + 2 * j}, v{G + 17 + 2 * j}')
            for j in range(4):
                a(f'v_perm_b32 v{G + 4 * j}, v{G + 28 + j}, v{G + 24 + j}, s88\nv_perm_b32 v{G + 4 * j + 2}, v{G + 28 + j}, v{G + 24 + j}, s89')
                a(f'v_mov_b32 v{G + 4 * j + 1}, s{sNONCE}\nv_mov_b32 v{G + 4 * j + 3}, s{sNONCE}')
            if b == 0:
                a(f's_branch {lst}')
        a.label(lst)
        a(f's_lshl_b32 s86, s{sRB2}, 1\ns_add_u32 s86, s86, {slot}\ns_lshl_b32 s86, s86, 10\ns_lshl_b32 s87, s{sCB}, 6\ns_add_u32 s86, s86, s87\ns_lshl_b32 s87, s{sKH}, 5\ns_add_u32 s86, s86, s87\ns_lshl_b32 s86, s86, 3\ns_add_u32 s86, s86, {WS_CROW}')
        a(f'v_lshl_add_u32 v6, v2, 5, s86')
        a(f's_and_b32 s87, s{sI}, 15\nv_cmp_eq_u32 vcc, s87, v4\ns_and_saveexec_b64 s[96:97], vcc')
        for j in range(4):
            a(f'buffer_store_dwordx4 {vr(G + 4 * j, 4)}, v6, {S(S_WS)}, 0 offen offset:{(j >> 1) * 128 + (j & 1) * 16} sc1')
        a('s_mov_b64 exec, s[96:97]')
        a.label(lskip)
    stamp(K, 20)
```

```python
from common import *
import phase3

MF16 = 'v_mfma_f32_16x16x32_bf16'
MF32 = 'v_mfma_f32_32x32x16_bf16'
V_LANE = 1
L_G, L_U, L_D = 98304, 131072, 32768
L_XR = 16384
L_SEL = 12288
L_GU = 20480
L_RED = 24576
NF = 224
LOG2E = 1.4426950408889634


FST = 160
FA0, FA1, FA2 = 113, 114, 115


def ffn_addr(K, sJ):
    a = K.a
    a(f's_min_u32 s87, s{sF}, {NF - 1}\ns_lshr_b32 s86, s87, 2\ns_and_b32 s87, s87, 3')
    a(f'v_lshrrev_b32 v5, 3, v{V_LANE}\nv_and_b32 v6, 7, v{V_LANE}')
    a(f's_lshl_b32 s88, s87, 8\ns_lshl_b32 s89, s{sJ}, 6\ns_add_u32 s88, s88, s89\nv_add_u32 v7, s88, v5\ns_mov_b32 s88, 7168\nv_mul_lo_u32 v7, v7, s88')
    a('s_lshl_b32 s88, s86, 7\nv_add_u32 v7, s88, v7')
    a('v_bfe_u32 v5, v5, 1, 1\nv_lshlrev_b32 v5, 2, v5\nv_xor_b32 v5, v5, v6')
    a(f'v_lshl_add_u32 v{FA0}, v5, 4, v7\nv_xor_b32 v5, 2, v5\nv_lshl_add_u32 v{FA1}, v5, 4, v7')
    a(f's_lshl_b32 s88, s86, 6\ns_lshl_b32 s89, s{sJ}, 4\ns_add_u32 s88, s88, s89\nv_lshrrev_b32 v6, 5, v{V_LANE}\nv_add_u32 v6, s88, v6\nv_lshlrev_b32 v6, 11, v6')
    a(f's_lshl_b32 s88, s87, 9\nv_and_b32 v7, 31, v{V_LANE}\nv_lshl_add_u32 v6, v7, 4, v6\nv_add_u32 v{FA2}, s88, v6')


def ffn_load_text(n):
    m, i = n // 8, n % 8
    d = vr(FST + 4 * (n % 12), 4)
    if m < 2:
        return f's_mov_b32 s88, {i * 8 * 7168}\nbuffer_load_dwordx4 {d}, v{FA0 if i % 2 == 0 else FA1}, {S(S_WG if m == 0 else S_WU)}, s88 offen'
    return f's_mov_b32 s88, {i * 4096}\nbuffer_load_dwordx4 {d}, v{FA2}, {S(S_WD)}, s88 offen'


def ffn_load(K, half):
    a = K.a
    a(f's_and_b32 s91, s{sW}, 3')
    ffn_addr(K, 91)
    for n in range(12 * half, 12 * half + 12):
        a(ffn_load_text(n))


def ffn_write(K, half):
    a = K.a
    a(f's_and_b32 s86, s{sW}, 3\ns_lshl_b32 s86, s86, 13\nv_lshl_add_u32 v5, v{V_LANE}, 4, s86')
    a(f'v_add_u32 v4, {L_G}, v5\nv_add_u32 v5, {L_D}, v5')
    for n in range(12 * half, 12 * half + 12):
        m, i = n // 8, n % 8
        if m < 2:
            a(f'ds_write_b128 v4, {vr(FST + 4 * (n % 12), 4)} offset:{m * 32768 + i * 1024}')
        else:
            a(f'ds_write_b128 v5, {vr(FST + 4 * (n % 12), 4)} offset:{i * 1024}')


def sigmoid(a, v, t):
    a(f'v_mul_f32 v{t}, {f32hex(-LOG2E)}, v{v}\nv_exp_f32 v{t}, v{t}\nv_add_f32 v{t}, 1.0, v{t}\nv_rcp_f32 v{v}, v{t}')


def out_flag(K):
    a = K.a
    a(f's_lshl_b32 s86, s{sRB2}, 4\ns_add_u32 s86, s86, s{sCB}\ns_lshl_b32 s86, s86, 3\ns_add_u32 s86, s86, s{sW}\ns_lshl_b32 s86, s86, 2\ns_add_u32 s86, s86, {WS_OUTFLAG}')
    a(f'v_mov_b32 v6, s86\nv_mov_b32 v7, s{sNONCE}')
    a(f'v_cmp_eq_u32 vcc, 0, v{V_LANE}\ns_and_saveexec_b64 s[96:97], vcc')
    a(f'buffer_store_dword v7, v6, {S(S_WS)}, 0 offen sc1\ns_mov_b64 exec, s[96:97]')


def tail(K, stamp):
    a = K.a
    U = 136
    lffn = a.newlabel('ffnwg')
    a(f's_cmp_lt_u32 s{sF}, {NF}\ns_cbranch_scc1 {lffn}')
    a('s_waitcnt vmcnt(0)')
    out_flag(K)
    a('s_branch L_fin')
    a.label(lffn)
    lw = a.newlabel('selj')
    a(f's_cmp_ge_u32 s{sW}, 2\ns_cbranch_scc1 {lw}')
    a(f'v_and_b32 v6, 15, v{V_LANE}\nv_lshlrev_b32 v6, 6, v6\nv_add_u32 v6, {WS_CAND}, v6\ns_mov_b32 s90, 0')
    lp, lok = a.newlabel('cpoll'), a.newlabel('cok')
    a.label(lp)
    a(f'buffer_load_dwordx4 {vr(U, 4)}, v6, {S(S_WS)}, 0 offen sc1\ns_waitcnt vmcnt(0)')
    a(f'v_cmp_ne_u32 vcc, s{sNONCE}, v{U + 3}\ns_cbranch_vccz {lok}')
    a(f's_add_u32 s90, s90, 1\ns_cmp_gt_u32 s90, {K.SPIN}\ns_cbranch_scc1 {lok}\ns_branch {lp}')
    a.label(lok)
    stamp(K, 22)
    K0, K1, HI, LO, M1, TT = U + 4, U + 5, U + 6, U + 7, U + 8, U + 9
    phase3.sortable(a, K0, U, TT)
    phase3.sortable(a, K1, U + 1, TT)
    a(f's_movk_i32 s88, 0xf800\ns_movk_i32 s89, 0x7ff')
    a(f'v_and_b32 v{TT}, 0xffff, v{U + 2}\nv_sub_u32 v{TT}, s89, v{TT}\nv_and_or_b32 v{K0}, v{K0}, s88, v{TT}')
    a(f'v_lshrrev_b32 v{TT}, 16, v{U + 2}\nv_sub_u32 v{TT}, s89, v{TT}\nv_and_or_b32 v{K1}, v{K1}, s88, v{TT}')
    a(f'v_max_u32 v{HI}, v{K0}, v{K1}\nv_min_u32 v{LO}, v{K0}, v{K1}\nv_mov_b32 v{M1}, v{HI}')
    for ctl in ('quad_perm:[1,0,3,2]', 'quad_perm:[2,3,0,1]', 'row_half_mirror', 'row_mirror'):
        a(f'v_max_u32_dpp v{M1}, v{M1}, v{M1} {ctl} row_mask:0xf bank_mask:0xf')
    a(f'v_cmp_eq_u32 vcc, v{M1}, v{HI}')
    a(f'v_cndmask_b32 v{HI}, v{HI}, v{LO}, vcc')
    for ctl in ('quad_perm:[1,0,3,2]', 'quad_perm:[2,3,0,1]', 'row_half_mirror', 'row_mirror'):
        a(f'v_max_u32_dpp v{HI}, v{HI}, v{HI} {ctl} row_mask:0xf bank_mask:0xf')
    a(f'v_readfirstlane_b32 s86, v{M1}\nv_readfirstlane_b32 s87, v{HI}')
    a('s_and_b32 s86, s86, 0x7ff\ns_sub_u32 s86, 0x7ff, s86\ns_and_b32 s87, s87, 0x7ff\ns_sub_u32 s87, 0x7ff, s87')
    for t in range(2):
        st, sl, sr_ = 86 + t, 91 + t, 93 + t
        a(f's_lshr_b32 s88, s{st}, 7')
        a(f'v_readlane_b32 s89, v{U + 2}, s88\nv_readlane_b32 s{sr_}, v{U}, s88\nv_readlane_b32 s95, v{U + 1}, s88')
        a(f's_and_b32 s89, s89, 0xffff\ns_cmp_eq_u32 s89, s{st}\ns_cselect_b32 s{sl}, 0, 1\ns_cselect_b32 s{sr_}, s{sr_}, s95')
        a(f's_lshl_b32 s88, s88, 1\ns_add_u32 s{sl}, s{sl}, s88')
    R = U + 16
    a(f's_cmp_eq_u32 s{sW}, 0\ns_cselect_b32 s88, s91, s92\ns_lshl_b32 s88, s88, 13\ns_and_b32 s89, s{sF}, 3\ns_lshl_b32 s89, s89, 11\ns_add_u32 s88, s88, s89\ns_add_u32 s88, s88, {WS_CROW}')
    a(f'v_lshl_add_u32 v6, v{V_LANE}, 4, s88\ns_mov_b32 s90, 0')
    lp, lok = a.newlabel('rpoll'), a.newlabel('rok')
    a.label(lp)
    for i in range(2):
        a(f'buffer_load_dwordx4 {vr(R + 4 * i, 4)}, v6, {S(S_WS)}, 0 offen offset:{i * 1024} sc1')
    a(f'v_mov_b32 v{U + 10}, s86\nv_mov_b32 v{U + 11}, s87\nv_mov_b32 v{U + 12}, s93\nv_mov_b32 v{U + 13}, s94')
    a(f'v_mov_b32 v{U + 14}, s91\nv_mov_b32 v{U + 15}, s92\nv_mov_b32 v7, {L_SEL}')
    a(f'ds_write_b128 v7, {vr(U + 10, 4)}\nds_write_b64 v7, {vr(U + 14, 2)} offset:16')
    a('s_waitcnt vmcnt(0)')
    a(f'v_cmp_ne_u32 vcc, s{sNONCE}, v{R + 1}')
    for n in range(2):
        for o in (1, 3):
            if n or o != 1:
                a(f'v_cmp_ne_u32 s[88:89], s{sNONCE}, v{R + 4 * n + o}\ns_or_b64 vcc, vcc, s[88:89]')
    a(f's_cbranch_vccz {lok}')
    a(f's_add_u32 s90, s90, 1\ns_cmp_gt_u32 s90, {K.SPIN}\ns_cbranch_scc1 {lok}\ns_branch {lp}')
    a.label(lok)
    a(f's_lshl_b32 s89, s{sW}, 9\ns_add_u32 s89, s89, {L_XR}')
    a(f's_mov_b32 s88, 0x07060302\nv_lshl_add_u32 v6, v{V_LANE}, 2, s89')
    for n in range(2):
        a(f'v_perm_b32 v{R + 4 * n}, v{R + 4 * n + 2}, v{R + 4 * n}, s88')
    for n in range(2):
        a(f'ds_write_b32 v6, v{R + 4 * n} offset:{n * 256}')
    lab = a.newlabel('nononce')
    a(f's_cmp_lg_u32 s{sB}, 0\ns_cbranch_scc1 {lab}\ns_cmp_lg_u32 s{sW}, 0\ns_cbranch_scc1 {lab}')
    a(f'v_mov_b32 v6, {WS_NONCE}\nv_mov_b32 v7, s{sNONCE}\nv_cmp_eq_u32 vcc, 0, v{V_LANE}\ns_and_saveexec_b64 s[96:97], vcc')
    a(f'buffer_store_dword v7, v6, {S(S_WS)}, 0 offen sc1\ns_mov_b64 exec, s[96:97]')
    a.label(lab)
    a.label(lw)
    stamp(K, 23)
    a('s_waitcnt vmcnt(0) lgkmcnt(0)')
    a('s_barrier')
    out_flag(K)
    stamp(K, 24)
    XF, WF, DG = 8, 40, 72
    a(f'v_lshrrev_b32 v2, 4, v{V_LANE}\nv_and_b32 v4, 15, v{V_LANE}')
    a(f'v_and_b32 v6, 1, v4\nv_lshlrev_b32 v6, 9, v6\nv_lshl_add_u32 v6, v2, 4, v6\nv_add_u32 v6, {L_XR}, v6')
    for st in range(8):
        a(f'ds_read_b128 {vr(XF + 4 * st, 4)}, v6 offset:{st * 64}')
    a(f's_and_b32 s86, s{sW}, 3\ns_lshl_b32 s86, s86, 5\nv_and_b32 v5, 3, v4\nv_lshl_add_u32 v5, v5, 3, s86')
    a('v_bfe_u32 v7, v4, 3, 1\nv_lshlrev_b32 v7, 6, v7\nv_xor_b32 v5, v5, v7\nv_and_b32 v7, 1, v2\nv_lshlrev_b32 v7, 5, v7\nv_xor_b32 v5, v5, v7')
    a('v_lshrrev_b32 v7, 2, v4\nv_lshl_add_u32 v7, v2, 3, v7\nv_lshl_add_u32 v7, v7, 7, v5')
    a(f's_lshr_b32 s86, s{sW}, 2\ns_lshl_b32 s86, s86, 15\ns_add_u32 s86, s86, {L_G}\nv_add_u32 v7, s86, v7')
    for st in range(8):
        for rd in range(2):
            a(f'ds_read_b64_tr_b16 {vr(WF + 4 * st + 2 * rd, 2)}, v7 offset:{st * 4096 + rd * 512}')
    a(f's_lshl_b32 s86, s{sF}, 10\ns_lshr_b32 s87, s{sW}, 2\ns_lshl_b32 s87, s87, 9\ns_add_u32 s86, s86, s87\ns_and_b32 s87, s{sW}, 3\ns_lshl_b32 s87, s87, 6\ns_add_u32 s86, s86, s87\ns_add_u32 s86, s86, {WS_PACT}')
    a('v_lshlrev_b32 v6, 8, v4\nv_lshl_add_u32 v6, v2, 4, v6\nv_add_u32 v6, s86, v6')
    for st in range(8):
        a(f's_waitcnt lgkmcnt({min(15, 2 * (7 - st))})' if st < 7 else 's_waitcnt lgkmcnt(0)')
        a(f'{MF16} {vr(DG, 4)}, {vr(WF + 4 * st, 4)}, {vr(XF + 4 * st, 4)}, {"0" if st == 0 else vr(DG, 4)}')
    a('s_mov_b32 s88, 0x7fc00000\nv_mov_b32 v5, s88')
    for i in range(4):
        a(f'v_cmp_eq_u32 vcc, -1, v{DG + i}\nv_cndmask_b32 v{DG + i}, v{DG + i}, v5, vcc')
    a('v_cmp_gt_u32 vcc, 2, v4\ns_and_saveexec_b64 s[96:97], vcc')
    a(f'buffer_store_dwordx4 {vr(DG, 4)}, v6, {S(S_WS)}, 0 offen sc1\ns_mov_b64 exec, s[96:97]')
    stamp(K, 28)
    BF, AF, DD = 8, 24, 40
    a(f'v_lshrrev_b32 v7, 5, v{V_LANE}\nv_lshlrev_b32 v7, 3, v7\nv_lshrrev_b32 v5, 2, v4\nv_add_u32 v7, v7, v5\nv_lshlrev_b32 v7, 9, v7')
    a(f'v_bfe_u32 v5, v{V_LANE}, 4, 1\nv_lshl_add_u32 v7, v5, 5, v7\nv_and_b32 v5, 3, v4\nv_lshl_add_u32 v7, v5, 3, v7')
    a(f's_lshl_b32 s86, s{sW}, 6\ns_add_u32 s86, s86, {L_D}\nv_add_u32 v7, s86, v7')
    for st in range(4):
        for rd in range(2):
            a(f'ds_read_b64_tr_b16 {vr(BF + 4 * st + 2 * rd, 2)}, v7 offset:{st * 8192 + rd * 2048}')
    lo = a.newlabel('actj')
    a(f's_cmp_lg_u32 s{sW}, 0\ns_cbranch_scc1 {lo}')
    PA = 80
    a(f's_and_b32 s86, s{sF}, 0xfffc\ns_lshl_b32 s86, s86, 10\ns_add_u32 s86, s86, {WS_PACT}\nv_lshl_add_u32 v6, v{V_LANE}, 4, s86\ns_mov_b32 s90, 0')
    lp, lok = a.newlabel('ppoll'), a.newlabel('pok')
    a.label(lp)
    for p in range(4):
        a(f'buffer_load_dwordx4 {vr(PA + 4 * p, 4)}, v6, {S(S_WS)}, 0 offen offset:{p * 1024} sc1')
    a('s_waitcnt vmcnt(0)')
    a(f'v_cmp_eq_u32 vcc, -1, v{PA}')
    for i in range(1, 16):
        a(f'v_cmp_eq_u32 s[88:89], -1, v{PA + i}\ns_or_b64 vcc, vcc, s[88:89]')
    a(f's_cbranch_vccz {lok}')
    a(f's_add_u32 s90, s90, 1\ns_cmp_gt_u32 s90, {K.SPIN}\ns_cbranch_scc1 {lok}\ns_branch {lp}')
    a.label(lok)
    stamp(K, 29)
    for h in range(2):
        a(f'v_pk_add_f32 v[{PA + 2 * h}:{PA + 2 * h + 1}], v[{PA + 2 * h}:{PA + 2 * h + 1}], v[{PA + 4 + 2 * h}:{PA + 5 + 2 * h}]')
        a(f'v_pk_add_f32 v[{PA + 8 + 2 * h}:{PA + 9 + 2 * h}], v[{PA + 8 + 2 * h}:{PA + 9 + 2 * h}], v[{PA + 12 + 2 * h}:{PA + 13 + 2 * h}]')
    for h in range(2):
        a(f'v_pk_add_f32 v[{PA + 2 * h}:{PA + 2 * h + 1}], v[{PA + 2 * h}:{PA + 2 * h + 1}], v[{PA + 8 + 2 * h}:{PA + 9 + 2 * h}]')
    for h in range(2):
        a(f'v_cvt_pk_bf16_f32 v{PA + 4 + h}, v{PA + 2 * h}, v{PA + 2 * h + 1}')
    for h in range(2):
        a(f'v_lshlrev_b32 v{PA + 2 * h}, 16, v{PA + 4 + h}\nv_and_b32 v{PA + 2 * h + 1}, 0xffff0000, v{PA + 4 + h}')
    for i in range(4):
        a(f'v_mov_b32 v{PA + 4 + i}, v{PA + i}')
    for i in range(4):
        a(f'v_permlane32_swap_b32 v{PA + i}, v{PA + 4 + i}')
    for i in range(4):
        a(f'v_mul_f32 v{PA + 8 + i}, {f32hex(-LOG2E)}, v{PA + i}')
    for i in range(4):
        a(f'v_exp_f32 v{PA + 8 + i}, v{PA + 8 + i}')
    for i in range(4):
        a(f'v_add_f32 v{PA + 8 + i}, 1.0, v{PA + 8 + i}')
    for i in range(4):
        a(f'v_rcp_f32 v{PA + 8 + i}, v{PA + 8 + i}')
    for i in range(4):
        a(f'v_mul_f32 v{PA + i}, v{PA + i}, v{PA + 8 + i}')
    for h in range(2):
        a(f'v_cvt_pk_bf16_f32 v{PA + 8 + h}, v{PA + 2 * h}, v{PA + 2 * h + 1}')
    for h in range(2):
        a(f'v_lshlrev_b32 v{PA + 2 * h}, 16, v{PA + 8 + h}\nv_and_b32 v{PA + 2 * h + 1}, 0xffff0000, v{PA + 8 + h}')
    for h in range(2):
        a(f'v_pk_mul_f32 v[{PA + 2 * h}:{PA + 2 * h + 1}], v[{PA + 2 * h}:{PA + 2 * h + 1}], v[{PA + 4 + 2 * h}:{PA + 5 + 2 * h}]')
    for h in range(2):
        a(f'v_cvt_pk_bf16_f32 v{PA + 8 + h}, v{PA + 2 * h}, v{PA + 2 * h + 1}')
    a(f'v_and_b32 v6, 31, v{V_LANE}\nv_lshlrev_b32 v6, 3, v6\nv_add_u32 v6, {L_GU}, v6')
    a(f'ds_write_b64 v6, {vr(PA + 8, 2)}')
    a.label(lo)
    a('s_waitcnt lgkmcnt(0)\ns_barrier')
    a(f'v_and_b32 v6, 1, v{V_LANE}\nv_lshlrev_b32 v6, 7, v6\nv_lshrrev_b32 v7, 5, v{V_LANE}\nv_lshl_add_u32 v6, v7, 4, v6\nv_add_u32 v6, {L_GU}, v6')
    for st in range(4):
        a(f'ds_read_b128 {vr(AF + 4 * st, 4)}, v6 offset:{st * 32}')
    a(f'v_and_b32 v5, 31, v{V_LANE}\nv_cmp_gt_u32 vcc, 2, v5')
    a(f's_lshr_b32 s86, s{sF}, 2\ns_lshl_b32 s86, s86, 13\ns_and_b32 s87, s{sF}, 3\ns_lshl_b32 s87, s87, 10\ns_add_u32 s86, s86, s87\ns_lshl_b32 s87, s{sW}, 7\ns_add_u32 s86, s86, s87\ns_add_u32 s86, s86, {WS_YPART}')
    a(f'v_lshrrev_b32 v6, 5, v{V_LANE}\nv_lshlrev_b32 v6, 12, v6\nv_lshl_add_u32 v6, v5, 2, v6\nv_add_u32 v6, s86, v6')
    a('s_waitcnt lgkmcnt(0)')
    for i in range(16):
        a(f'v_cndmask_b32 v{AF + i}, 0, v{AF + i}, vcc')
    for st in range(4):
        a(f'{MF32} {vr(DD, 16)}, {vr(AF + 4 * st, 4)}, {vr(BF + 4 * st, 4)}, {"0" if st == 0 else vr(DD, 16)}')
    a(f'v_permlane32_swap_b32 v{DD}, v{DD + 1}')
    a(f's_mov_b32 s88, 0x7fc00000\nv_mov_b32 v5, s88\nv_cmp_eq_u32 vcc, -1, v{DD}\nv_cndmask_b32 v{DD}, v{DD}, v5, vcc')
    a(f'buffer_store_dword v{DD}, v6, {S(S_WS)}, 0 offen sc1')
    stamp(K, 25)
    a(f's_lshr_b32 s86, s{sB}, 3\ns_cmp_ge_u32 s86, 8\ns_cbranch_scc1 L_fin')
    sTK, sCH = 80, 81
    a(f's_and_b32 s87, s{sB}, 7\ns_lshl_b32 s87, s87, 3\ns_add_u32 s86, s86, s87\ns_lshr_b32 s{sTK}, s86, 5\ns_and_b32 s{sCH}, s86, 31')
    Y = 8
    a(f'v_lshrrev_b32 v6, 3, v{V_LANE}\nv_cmp_gt_u32 s[94:95], 7, v6\nv_cndmask_b32 v6, 0, v6, s[94:95]\ns_mul_i32 s86, s{sW}, 7\nv_add_u32 v6, s86, v6\nv_lshlrev_b32 v6, 13, v6')
    a(f's_lshl_b32 s86, s{sTK}, 12\ns_lshl_b32 s87, s{sCH}, 7\ns_add_u32 s86, s86, s87\ns_add_u32 s86, s86, {WS_YPART}')
    a(f'v_and_b32 v7, 7, v{V_LANE}\nv_lshl_add_u32 v6, v7, 4, v6\nv_add_u32 v6, s86, v6')
    lno0 = a.newlabel('notw0')
    a(f's_cmp_lg_u32 s{sW}, 0\ns_cbranch_scc1 {lno0}')
    a(f'v_mov_b32 v7, {L_SEL}\nds_read_b128 v[24:27], v7\nds_read_b64 v[28:29], v7 offset:16\ns_waitcnt lgkmcnt(0)')
    a(f'v_readfirstlane_b32 s82, v24\nv_readfirstlane_b32 s87, v25\nv_readfirstlane_b32 s83, v26\nv_readfirstlane_b32 s89, v27')
    a(f'v_readfirstlane_b32 s91, v28\nv_readfirstlane_b32 s92, v29')
    a(f's_cmp_eq_u32 s{sTK}, 0\ns_cselect_b32 s82, s82, s87\ns_cselect_b32 s83, s83, s89\ns_cselect_b32 s91, s91, s92')
    a(f's_lshl_b32 s91, s91, 13\ns_lshl_b32 s87, s{sCH}, 8\ns_add_u32 s91, s91, s87\ns_add_u32 s91, s91, {WS_CROW}')
    a(f'v_and_b32 v7, 31, v{V_LANE}\nv_lshl_add_u32 v7, v7, 3, s91')
    a(f'buffer_load_dwordx2 v[30:31], v7, {S(S_WS)}, 0 offen sc1')
    a(f's_lshr_b32 s87, s82, 7\ns_lshl_b32 s87, s87, 4\ns_lshr_b32 s89, s{sCH}, 1\ns_add_u32 s87, s87, s89\ns_lshl_b32 s87, s87, 3')
    a(f's_bfe_u32 s89, s82, 0x20005\ns_add_u32 s87, s87, s89\ns_and_b32 s89, s{sCH}, 1\ns_lshl_b32 s89, s89, 2\ns_add_u32 s87, s87, s89\ns_lshl_b32 s87, s87, 2\ns_add_u32 s87, s87, {WS_OUTFLAG}')
    a('v_mov_b32 v32, s87\ns_mov_b32 s90, 0')
    lp, lok = a.newlabel('fpoll'), a.newlabel('fok')
    a.label(lp)
    a(f'buffer_load_dword v33, v32, {S(S_WS)}, 0 offen sc1\ns_waitcnt vmcnt(0)')
    a(f'v_cmp_ne_u32 vcc, s{sNONCE}, v33\ns_cbranch_vccz {lok}')
    a(f's_add_u32 s90, s90, 1\ns_cmp_gt_u32 s90, {K.SPIN}\ns_cbranch_scc1 {lok}\ns_branch {lp}')
    a.label(lok)
    a.label(lno0)
    a('s_mov_b32 s90, 0')
    lp, lok = a.newlabel('ypoll'), a.newlabel('yok')
    a.label(lp)
    a(f'buffer_load_dwordx4 {vr(Y, 4)}, v6, {S(S_WS)}, 0 offen sc1')
    a('s_waitcnt vmcnt(0)')
    a(f'v_cmp_eq_u32 vcc, -1, v{Y}')
    for i in range(1, 4):
        a(f'v_cmp_eq_u32 s[88:89], -1, v{Y + i}\ns_or_b64 vcc, vcc, s[88:89]')
    a(f's_cbranch_vccz {lok}')
    a(f's_add_u32 s90, s90, 1\ns_cmp_gt_u32 s90, {K.SPIN}\ns_cbranch_scc1 {lok}\ns_branch {lp}')
    a.label(lok)
    stamp(K, 26)
    for i in range(4):
        a(f'v_cndmask_b32 v{Y + i}, 0, v{Y + i}, s[94:95]')
    for i in range(4):
        a(f'v_add_f32_dpp v{Y + i}, v{Y + i}, v{Y + i} row_ror:8 row_mask:0xf bank_mask:0xf')
    for fn in (xor16_add, xor32_add):
        for i in range(4):
            fn(a, Y + i, Y + 8 + i)
    a(f's_lshl_b32 s86, s{sW}, 7\ns_add_u32 s86, s86, {L_RED}\nv_and_b32 v6, 7, v{V_LANE}\nv_lshl_add_u32 v6, v6, 4, s86')
    a(f'ds_write_b128 v6, {vr(Y, 4)}')
    a('s_waitcnt lgkmcnt(0)\ns_barrier')
    a(f's_cmp_lg_u32 s{sW}, 0\ns_cbranch_scc1 L_fin')
    a(f'v_and_b32 v6, 31, v{V_LANE}\nv_lshlrev_b32 v6, 2, v6\nv_add_u32 v6, {L_RED}, v6')
    for w in range(8):
        a(f'ds_read_b32 v{Y + w}, v6 offset:{w * 128}')
    a(f'v_mov_b32 v{Y + 10}, s83')
    round_bf16(a, Y + 10, Y + 11)
    sigmoid(a, Y + 10, Y + 11)
    round_bf16(a, Y + 10, Y + 11)
    a('s_waitcnt lgkmcnt(0)')
    for st in (4, 2, 1):
        for i in range(st):
            a(f'v_add_f32 v{Y + i}, v{Y + i}, v{Y + i + st}')
    round_bf16(a, Y, Y + 1)
    a(f'v_mul_f32 v{Y}, v{Y}, v{Y + 10}')
    round_bf16(a, Y, Y + 1)
    a(f'v_and_b32 v{Y + 4}, 0xffff0000, v30\nv_lshlrev_b32 v{Y + 5}, 16, v30')
    a(f'v_add_f32 v{Y}, v{Y}, v{Y + 4}')
    round_bf16(a, Y, Y + 1)
    a(f'v_add_f32 v{Y}, v{Y}, v{Y + 5}\nv_cvt_pk_bf16_f32 v{Y}, v{Y}, v{Y}')
    a(f's_lshl_b32 s86, s82, 11\ns_lshl_b32 s87, s{sCH}, 6\ns_add_u32 s86, s86, s87')
    a(f'v_and_b32 v7, 31, v{V_LANE}\nv_lshl_add_u32 v7, v7, 1, s86')
    a(f'v_cmp_gt_u32 vcc, 32, v{V_LANE}\ns_and_saveexec_b64 s[96:97], vcc')
    a(f'buffer_store_short v{Y}, v7, {S(S_OUT)}, 0 offen sc1\ns_mov_b64 exec, s[96:97]')
    stamp(K, 27)
```

```python
import re
import sys

sys.setrecursionlimit(1000000)

REG_RE = re.compile(r'(?<![\w.])([vsa])\[(\d+):(\d+)\]|(?<![\w.\[])([vsa])(\d+)(?![\w\[])|(?<![\w.])(vcc_lo|vcc_hi|vcc|exec_lo|exec_hi|exec|m0|scc)(?![\w])')
TRANS = ('v_exp_', 'v_log_', 'v_rcp_', 'v_rsq_', 'v_sqrt_', 'v_sin_', 'v_cos_')


def regs_of(tok):
    out = []
    for m in REG_RE.finditer(tok):
        if m.group(1):
            out += [f'{m.group(1)}{i}' for i in range(int(m.group(2)), int(m.group(3)) + 1)]
        elif m.group(4):
            out.append(f'{m.group(4)}{m.group(5)}')
        else:
            r = m.group(6)
            if r.startswith('vcc'):
                r = 'vcc'
            if r.startswith('exec'):
                r = 'exec'
            out.append(r)
    return out


def split_ops(s):
    ops, depth, cur = [], 0, ''
    for ch in s:
        if ch in '[(':
            depth += 1
        if ch in '])':
            depth -= 1
        if ch == ',' and depth == 0:
            ops.append(cur.strip())
            cur = ''
        else:
            cur += ch
    if cur.strip():
        ops.append(cur.strip())
    return ops


class Ins:
    __slots__ = ('text', 'mn', 'ops', 'cls', 'defs', 'uses', 'passes', 'mA', 'mB', 'mC', 'trans', 'target',
                 'lds_dma', 'is_store', 'is_load', 'wide_store', 'store_data', 'nop', 'dpp', 'permlane', 'rdlane',
                 'vm', 'lgkm', 'wait', 'line', 'sgpr_const_uses', 'opsel_dst', 'lanesel')

    def __init__(self, text, line=0):
        self.text = text
        self.line = line
        t = text.split(';')[0].strip()
        parts = t.split(None, 1)
        self.mn = mn = parts[0]
        rest = parts[1] if len(parts) > 1 else ''
        self.ops = ops = split_ops(rest)
        self.defs, self.uses = set(), set()
        self.passes = 0
        self.mA = self.mB = self.mC = ()
        self.trans = False
        self.target = None
        self.lds_dma = self.is_store = self.is_load = self.wide_store = False
        self.store_data = ()
        self.nop = 0
        self.dpp = self.permlane = self.rdlane = False
        self.vm = self.lgkm = False
        self.wait = None
        self.sgpr_const_uses = set()
        self.opsel_dst = False
        self.lanesel = set()
        R = [regs_of(o) for o in ops]
        allr = [r for x in R for r in x]
        if mn.startswith('v_mfma'):
            self.cls = 'mfma'
            self.passes = 8 if '32x32' in mn else 4
            self.defs = set(R[0])
            self.mA, self.mB, self.mC = tuple(R[1]), tuple(R[2]), tuple(R[3])
            self.uses = set(R[1] + R[2] + R[3])
        elif mn.startswith('v_'):
            self.cls = 'valu'
            self.trans = mn.startswith(TRANS)
            self.dpp = ('quad_perm' in rest or 'row_' in rest or mn.endswith('_dpp') or 'wave_' in rest)
            if mn.startswith('v_permlane') and 'swap' in mn:
                self.permlane = True
                self.defs = set(R[0] + R[1])
                self.uses = set(R[0] + R[1])
            elif mn.startswith(('v_add_co', 'v_sub_co', 'v_subrev_co', 'v_addc_co', 'v_subb_co', 'v_mad_u64', 'v_div_scale')):
                self.defs = set(R[0] + R[1])
                self.uses = set(r for x in R[2:] for r in x)
            elif mn.startswith('v_swap'):
                self.defs = set(R[0] + R[1])
                self.uses = set(R[0] + R[1])
            else:
                self.defs = set(R[0])
                self.uses = set(r for x in R[1:] for r in x)
                if mn.startswith(('v_fmac', 'v_pk_fmac', 'v_dot2c', 'v_writelane', 'v_mac')) or self.dpp or 'UNUSED_PRESERVE' in rest:
                    self.uses |= set(R[0])
                if mn.startswith('v_cndmask') and len(ops) == 3:
                    self.uses.add('vcc')
                if mn.startswith(('v_readlane', 'v_readfirstlane')):
                    self.rdlane = True
                if mn.startswith(('v_readlane', 'v_writelane')) and len(R) > 2:
                    self.lanesel = set(r for r in R[2] if r[0] == 's' or r == 'vcc')
                if mn.startswith('v_cmpx'):
                    self.defs.add('exec')
            if 'dst_sel:' in rest and 'dst_sel:DWORD' not in rest:
                self.opsel_dst = True
            m = re.search(r'op_sel:\[([01,]+)\]', rest)
            if m and not mn.startswith('v_pk_') and m.group(1).split(',')[-1] == '1' and len(m.group(1).split(',')) == len(ops):
                self.opsel_dst = True
            self.sgpr_const_uses = set(r for r in self.uses if r[0] == 's' or r == 'vcc')
            self.uses.add('exec')
        elif mn.startswith('ds_'):
            self.cls = 'ds'
            self.lgkm = True
            if mn.startswith(('ds_read', 'ds_bpermute', 'ds_permute', 'ds_swizzle')) or '_rtn' in mn:
                self.defs = set(R[0])
                self.uses = set(r for x in R[1:] for r in x)
                self.is_load = True
            else:
                self.uses = set(allr)
            self.uses.add('exec')
        elif mn.startswith(('buffer_', 'global_')):
            self.cls = 'vmem'
            self.vm = True
            toks = rest.split()
            if mn in ('buffer_wbl2', 'buffer_inv'):
                pass
            elif 'lds' in toks or '_lds_' in mn:
                self.lds_dma = True
                self.uses = set(allr) | {'m0'}
            elif '_load_' in mn:
                self.defs = set(R[0])
                self.uses = set(r for x in R[1:] for r in x)
                self.is_load = True
            elif '_store_' in mn:
                self.uses = set(allr)
                self.is_store = True
                data = R[0] if mn.startswith('buffer_') else R[1]
                self.store_data = tuple(data)
                self.wide_store = mn.endswith(('x3', 'x4'))
            elif '_atomic_' in mn:
                self.uses = set(allr)
                if 'sc0' in toks:
                    self.defs = set(R[0])
                    self.is_load = True
            else:
                raise ValueError('unknown vmem ' + text)
            self.uses.add('exec')
        elif mn.startswith(('s_load', 's_memtime', 's_memrealtime', 's_buffer_load', 's_atomic')):
            self.cls = 'smem'
            self.lgkm = True
            self.defs = set(R[0])
            self.uses = set(r for x in R[1:] for r in x)
            self.is_load = True
        elif mn.startswith('s_'):
            self.cls = 'salu'
            if mn == 's_nop':
                self.nop = int(ops[0], 0) + 1
            elif mn == 's_waitcnt':
                w = {}
                for k, v in re.findall(r'(vmcnt|lgkmcnt|expcnt)\((\d+)\)', rest):
                    w[k] = int(v)
                self.wait = w
            elif mn.startswith(('s_cbranch', 's_branch')):
                self.target = ops[0]
                if 'vcc' in mn:
                    self.uses = {'vcc'}
                if 'exec' in mn:
                    self.uses = {'exec'}
                if 'scc' in mn:
                    self.uses = {'scc'}
            elif mn in ('s_barrier', 's_endpgm', 's_setprio', 's_sleep', 's_sethalt', 's_setreg_imm32_b32'):
                pass
            elif mn.startswith('s_cmp') or mn.startswith('s_bitcmp'):
                self.uses = set(allr)
                self.defs = {'scc'}
            elif 'saveexec' in mn:
                self.defs = set(R[0]) | {'exec', 'scc'}
                self.uses = set(R[1]) | {'exec'}
            elif mn.startswith(('s_addk', 's_mulk')):
                self.defs = set(R[0]) | {'scc'}
                self.uses = set(R[0])
            elif mn.startswith('s_getreg'):
                self.defs = set(R[0])
            else:
                self.defs = set(R[0])
                self.uses = set(r for x in R[1:] for r in x)
                if mn.startswith(('s_cselect', 's_addc', 's_subb', 's_cmov')):
                    self.uses.add('scc')
                if not mn.startswith(('s_mov', 's_cselect', 's_mul_', 's_movk', 's_cmov', 's_getpc', 's_bfm')):
                    self.defs.add('scc')
        else:
            raise ValueError('cannot parse: ' + text)

    @property
    def slots(self):
        return self.nop if self.nop else 1


WINDOW = 22


def need_states(prev, ins):
    need = 0
    why = ''

    def up(n, w):
        nonlocal need, why
        if n > need:
            need, why = n, w
    pv = set(r for r in prev.defs if r[0] in 'va' and r != 'vcc')
    if prev.cls == 'valu':
        if ins.cls == 'mfma' and pv & ins.uses:
            up(2, 'VALU->MFMA')
        if prev.trans and ins.cls == 'valu' and not ins.trans and pv & ins.uses:
            up(1, 'trans->VALU')
        if prev.trans and ins.cls in ('vmem', 'ds') and pv & ins.uses:
            up(1, 'trans->mem (safe pad)')
        if ins.cls == 'valu' and ins.rdlane and pv & ins.uses:
            up(1, 'VALU->readlane')
        if ins.cls == 'valu' and ins.dpp and pv & ins.uses:
            up(2, 'VALU->DPP')
        if ins.cls == 'valu' and ins.permlane and pv & ins.uses:
            up(2, 'VALU->permlane')
        if prev.opsel_dst and ins.cls == 'valu' and pv & (ins.uses | ins.defs):
            up(1, 'opsel dst')
        ps = set(r for r in prev.defs if r[0] == 's' or r == 'vcc')
        if ps:
            if ins.cls == 'valu' and ps & ins.sgpr_const_uses:
                up(2, 'VALU sgpr->VALU const')
            if ins.cls == 'valu' and ps & ins.lanesel:
                up(4, 'VALU sgpr->lanesel')
            if ins.cls == 'vmem' and ps & ins.uses:
                up(5, 'VALU sgpr->VMEM')
            if ins.cls in ('salu', 'smem') and ps & ins.uses:
                up(2, 'VALU sgpr->SALU (safe pad)')
        if 'exec' in prev.defs:
            up(5, 'VALU exec write')
    if prev.cls == 'mfma':
        p8 = prev.passes == 8
        D = prev.defs
        if ins.cls == 'mfma':
            if D & set(ins.mA) or D & set(ins.mB):
                up(12 if p8 else 8, 'MFMA D->A/B')
            if D & set(ins.mC):
                if not (set(ins.mC) == D and ins.passes == prev.passes):
                    up(10 if p8 else 6, 'MFMA D->C overlap')
            if D & ins.defs and not (D & set(ins.mC)):
                up(10 if p8 else 6, 'MFMA D->D WAW (safe pad)')
        elif ins.cls in ('valu', 'vmem', 'ds'):
            if D & (ins.uses | ins.defs):
                up(12 if p8 else 8, 'MFMA D->VALU/mem')
            if ins.cls == 'valu' and set(prev.mC) & ins.defs:
                up(7 if p8 else 3, 'MFMA C WAR')
            if ins.cls in ('vmem', 'ds') and set(prev.mC) & ins.defs:
                up(7 if p8 else 3, 'MFMA C WAR by load (safe pad)')
    if prev.cls == 'salu' and 'm0' in prev.defs and ins.lds_dma:
        up(1, 'm0->LDS DMA')
    if prev.cls == 'vmem' and prev.wide_store:
        sd = set(prev.store_data)
        if sd & ins.defs:
            up(2 if ins.cls == 'valu' else 1, 'wide store WAR')
    return need, why


class Asm:
    def __init__(self):
        self.lines = []
        self.uid = 0

    def __call__(self, text):
        for l in text.split('\n'):
            l = l.strip()
            if l:
                self.lines.append(l)

    def label(self, name):
        self.lines.append(name + ':')

    def newlabel(self, base):
        self.uid += 1
        return f'L_{base}_{self.uid}'

    def comment(self, c):
        self.lines.append('; ' + c)


def is_instr(l):
    if not l or l.startswith((';', '.')) or l.rstrip().endswith(':'):
        return False
    return True


def autonop(lines):
    out = []
    window = []
    added = 0
    for l in lines:
        if not is_instr(l):
            out.append(l)
            continue
        ins = Ins(l)
        req = 0
        why = ''
        for p, age in window:
            n, w = need_states(p, ins)
            if n - age > req:
                req, why = n - age, w
        if req > 0:
            added += 1
            r = req
            while r > 0:
                k = min(r, 16)
                out.append(f's_nop {k - 1}')
                r -= k
            for e in window:
                e[1] += req
        out.append(l)
        for e in window:
            e[1] += ins.slots
        window = [e for e in window if e[1] < WINDOW]
        if ins.cls in ('valu', 'mfma') or (ins.cls == 'salu' and 'm0' in ins.defs) or ins.wide_store:
            window.append([ins, 0])
        if ins.mn in ('s_branch', 's_endpgm'):
            window = []
    return out, added


def lint(lines, entries, verbose=True, max_states=600000):
    prog = []
    labels = {}
    for n, l in enumerate(lines):
        if l.rstrip().endswith(':') and not l.startswith(';'):
            labels[l.rstrip()[:-1]] = len(prog)
        elif is_instr(l):
            prog.append(Ins(l, n))
    errors = {}
    total = 0

    def walk(step, init):
        nonlocal total
        seen = set()
        stack = [(labels[e], init) for e in entries]
        n = 0
        while stack:
            pc, st = stack.pop()
            while True:
                if pc >= len(prog):
                    errors[('runoff', pc)] = 'path runs off the end'
                    break
                key = (pc, st)
                if key in seen:
                    break
                seen.add(key)
                n += 1
                if n > max_states:
                    errors[('limit', step.__name__)] = f'state limit reached in {step.__name__}'
                    total += n
                    return
                ins = prog[pc]
                st = step(pc, ins, st)
                if ins.mn == 's_endpgm':
                    break
                if ins.mn == 's_branch':
                    pc = labels[ins.target]
                    continue
                if ins.target is not None:
                    stack.append((labels[ins.target], st))
                pc += 1
        total += n

    def step_ws(pc, ins, win):
        for (pi, age) in win:
            n, w = need_states(prog[pi], ins)
            if n > age:
                errors[('ws', pi, pc)] = f'wait states: {w} need {n} have {age}: [{prog[pi].text}] -> [{ins.text}] (lines {prog[pi].line},{ins.line})'
        sl = ins.slots
        win = tuple((pi, age + sl) for (pi, age) in win if age + sl < WINDOW)
        if ins.cls in ('valu', 'mfma') or (ins.cls == 'salu' and 'm0' in ins.defs) or ins.wide_store:
            win = win + ((pc, 0),)
        return win

    def make_q(kind):
        cnt = 'vmcnt' if kind == 'vm' else 'lgkmcnt'
        cap = 63 if kind == 'vm' else 15

        def step(pc, ins, q):
            touched = ins.uses | ins.defs
            for (pi, yn) in q:
                p = prog[pi]
                if p.defs & touched:
                    if ins.is_load and ins.cls == p.cls and not (p.defs & ins.uses) and p.cls != 'smem':
                        continue
                    errors[(cnt, pi, pc)] = f'{cnt} missing: [{p.text}] -> [{ins.text}] (lines {p.line},{ins.line})'
            if ins.wait is not None and cnt in ins.wait:
                n = ins.wait[cnt]
                has_smem = kind == 'lg' and any(prog[pi].cls == 'smem' for pi, _ in q)
                if n == 0:
                    q = ()
                elif not has_smem:
                    q = tuple((pi, yn) for (pi, yn) in q if yn < n)
            mine = ins.vm if kind == 'vm' else ins.lgkm
            if mine:
                has_smem = kind == 'lg' and (ins.cls == 'smem' or any(prog[pi].cls == 'smem' for pi, _ in q))
                q = tuple((pi, yn + 1) for (pi, yn) in q if has_smem or yn + 1 <= cap)
                q = tuple((pi, min(yn, cap + 1)) for (pi, yn) in q)
                if ins.is_load and ins.defs:
                    q = tuple(e for e in q if e[0] != pc) + ((pc, 0),)
            return q
        step.__name__ = 'step_' + kind
        return step

    walk(step_ws, ())
    walk(make_q('vm'), ())
    walk(make_q('lg'), ())
    if verbose:
        for k in sorted(errors, key=lambda k: str(k)):
            print('LINT:', errors[k])
        print(f'lint: {len(prog)} instructions, {total} states, {len(errors)} findings')
    return errors
```

```python
import sys
sys.path.insert(0, 'gen')
from asmlib import Asm, autonop, lint
from common import *
import phase1
import phase2
import phase3
import phase4


class Kern:
    STAMP_T = 98
    STAMP_BASE = 100
    SPIN = 200000

    def __init__(self, **opt):
        self.opt = opt
        self.a = Asm()
        self.STAMP_RT = 26
        self.STAMP0 = 0
        self.hooks = {}

    def hook(self, name):
        if name in self.hooks:
            self.hooks[name](self)


def stamp(K, idx):
    if K.opt.get('stamps'):
        if K.opt.get('rt'):
            K.a(f's_memrealtime s[98:99]\ns_waitcnt lgkmcnt(0)\nv_writelane_b32 v255, s98, {idx}')
        else:
            K.a(f's_memtime s[98:99]\ns_waitcnt lgkmcnt(0)\ns_sub_u32 s98, s98, s100\nv_writelane_b32 v255, s98, {idx}')


phase1.stamp = stamp


def finish(K):
    a = K.a
    a.label('L_fin')
    if K.opt.get('stamps'):
        a('s_waitcnt vmcnt(0) lgkmcnt(0)')
        stamp(K, 13)
        a('s_memrealtime s[98:99]\ns_waitcnt lgkmcnt(0)')
        a('v_writelane_b32 v255, s98, 15')
        a(f's_lshl_b32 s80, s{sB}, 3\ns_add_u32 s80, s80, s{sW}\ns_lshl_b32 s80, s80, 7\ns_add_u32 s80, s80, {WS_DBG}')
        a('v_lshl_add_u32 v2, v1, 2, s80')
        a('v_cmp_gt_u32 vcc, 32, v1\ns_and_saveexec_b64 s[96:97], vcc')
        a(f'buffer_store_dword v255, v2, {S(S_WS)}, 0 offen')
        a('s_mov_b64 exec, s[96:97]')
        a(f's_add_u32 s80, s80, 0x80000\nv_lshl_add_u32 v2, v1, 2, s80')
        a('v_cmp_gt_u32 vcc, 32, v1\ns_and_saveexec_b64 s[96:97], vcc')
        a(f'buffer_store_dword v254, v2, {S(S_WS)}, 0 offen')
    if K.opt.get('dbgout'):
        a('s_mov_b64 exec, -1')
        a('s_load_dwordx2 s[80:81], s[0:1], 72\ns_waitcnt lgkmcnt(0)')
        a('s_mov_b32 s84, s80\ns_mov_b32 s85, s81\ns_mov_b32 s86, 256\ns_mov_b32 s87, 0x00020000')
        a('v_mov_b32 v254, 0')
        for k, idx in enumerate(K.opt['dbgout']):
            a(f'v_readlane_b32 s82, v255, {idx}')
            if idx == 14:
                a('s_not_b32 s82, s82')
            a(f'v_writelane_b32 v254, s82, {k}')
        a('v_lshlrev_b32 v2, 2, v1\nv_cmp_gt_u32 vcc, 16, v1\ns_and_saveexec_b64 s[96:97], vcc')
        a('buffer_atomic_umax v254, v2, s[84:87], 0 offen')
    a.label('L_exit')
    a('s_endpgm')


def build(**opt):
    K = Kern(**opt)
    a = K.a
    a('.amdgcn_target "amdgcn-amd-amdhsa--gfx950"\n.text\n.globl %s\n.p2align 8\n.type %s,@function' % (KNAME, KNAME))
    a.label(KNAME)
    phase1.prologue(K)
    phase1.consumer(K)
    a('s_branch L_p1_join')
    phase1.helper(K)
    a.label('L_p1_join')
    a('s_barrier')
    stamp(K, 6)
    stop = opt.get('stop')
    if stop == 'p1':
        a(f's_lshl_b32 s80, s{sRB}, 4\ns_add_u32 s80, s80, s{sHP}\ns_lshl_b32 s80, s80, 14\ns_add_u32 s80, s80, {WS_DUMP}')
        a(f'v_lshlrev_b32 v2, 4, v0\nv_add_u32 v3, s80, v2\nv_add_u32 v2, {L_Q}, v2')
        a('ds_read_b128 v[4:7], v2\nds_read_b128 v[8:11], v2 offset:8192\ns_waitcnt lgkmcnt(0)')
        a(f'buffer_store_dwordx4 v[4:7], v3, {S(S_WS)}, 0 offen\nv_add_u32 v3, 8192, v3\nbuffer_store_dwordx4 v[8:11], v3, {S(S_WS)}, 0 offen')
        a('s_waitcnt vmcnt(0)')
    else:
        if stop not in ('p2', 'p3'):
            for h in range(2):
                K.hooks[f'ffn_write{h}'] = (lambda h: (lambda K: phase4.ffn_write(K, h)))(h)
                K.hooks[f'ffn_load{h}'] = (lambda h: (lambda K: phase4.ffn_load(K, h)))(h)
        phase2.attention(K, stamp)
        if stop != 'p2':
            phase3.outproj(K, stamp)
            if stop != 'p3':
                phase4.tail(K, stamp)
    finish(K)
    a(f'''.section .rodata,"a"
.p2align 6
.amdhsa_kernel {KNAME}
  .amdhsa_next_free_vgpr 256
  .amdhsa_next_free_sgpr 102
  .amdhsa_accum_offset 256
  .amdhsa_group_segment_fixed_size 0
  .amdhsa_kernarg_size 88
  .amdhsa_user_sgpr_count 2
  .amdhsa_user_sgpr_kernarg_segment_ptr 1
  .amdhsa_system_sgpr_workgroup_id_x 1
.end_amdhsa_kernel''')
    lines, added = autonop(a.lines)
    errs = lint(lines, [KNAME])
    head = ['; fused pre-LN sliding-window attention + routed SwiGLU block (generated by my own script)',
            f'; @launch grid=(256,1,1) block=(512,1,1) lds={LDS_BYTES}']
    return '\n'.join(head + lines) + '\n', errs


if __name__ == '__main__':
    s, errs = build(stamps=True, stop=sys.argv[1] if len(sys.argv) > 1 else None)
    open('k.s', 'w').write(s)
    print(len(s), 'bytes')
```

```python
import sys
sys.path.insert(0, 'gen')
from asmlib import Asm, autonop, lint
from common import *
import phase1
import phase2
import phase3
import phase4


class Kern:
    STAMP_T = 98
    STAMP_BASE = 100
    SPIN = 200000

    def __init__(self, **opt):
        self.opt = opt
        self.a = Asm()
        self.STAMP_RT = 26
        self.STAMP0 = 0
        self.hooks = {}

    def hook(self, name):
        if name in self.hooks:
            self.hooks[name](self)


def stamp(K, idx):
    if K.opt.get('stamps'):
        if K.opt.get('rt'):
            K.a(f's_memrealtime s[98:99]\ns_waitcnt lgkmcnt(0)\nv_writelane_b32 v255, s98, {idx}')
        else:
            K.a(f's_memtime s[98:99]\ns_waitcnt lgkmcnt(0)\ns_sub_u32 s98, s98, s100\nv_writelane_b32 v255, s98, {idx}')


phase1.stamp = stamp


def finish(K):
    a = K.a
    a.label('L_fin')
    if K.opt.get('stamps'):
        a('s_waitcnt vmcnt(0) lgkmcnt(0)')
        stamp(K, 13)
        a('s_memrealtime s[98:99]\ns_waitcnt lgkmcnt(0)')
        a('v_writelane_b32 v255, s98, 15')
        a(f's_lshl_b32 s80, s{sB}, 3\ns_add_u32 s80, s80, s{sW}\ns_lshl_b32 s80, s80, 7\ns_add_u32 s80, s80, {WS_DBG}')
        a('v_lshl_add_u32 v2, v1, 2, s80')
        a('v_cmp_gt_u32 vcc, 32, v1\ns_and_saveexec_b64 s[96:97], vcc')
        a(f'buffer_store_dword v255, v2, {S(S_WS)}, 0 offen')
        a('s_mov_b64 exec, s[96:97]')
        a(f's_add_u32 s80, s80, 0x80000\nv_lshl_add_u32 v2, v1, 2, s80')
        a('v_cmp_gt_u32 vcc, 32, v1\ns_and_saveexec_b64 s[96:97], vcc')
        a(f'buffer_store_dword v254, v2, {S(S_WS)}, 0 offen')
    if K.opt.get('dbgout'):
        a('s_mov_b64 exec, -1')
        a('s_load_dwordx2 s[80:81], s[0:1], 72\ns_waitcnt lgkmcnt(0)')
        a('s_mov_b32 s84, s80\ns_mov_b32 s85, s81\ns_mov_b32 s86, 256\ns_mov_b32 s87, 0x00020000')
        a('v_mov_b32 v254, 0')
        for k, idx in enumerate(K.opt['dbgout']):
            a(f'v_readlane_b32 s82, v255, {idx}')
            if idx == 14:
                a('s_not_b32 s82, s82')
            a(f'v_writelane_b32 v254, s82, {k}')
        a('v_lshlrev_b32 v2, 2, v1\nv_cmp_gt_u32 vcc, 16, v1\ns_and_saveexec_b64 s[96:97], vcc')
        a('buffer_atomic_umax v254, v2, s[84:87], 0 offen')
    a.label('L_exit')
    a('s_endpgm')


def build(**opt):
    K = Kern(**opt)
    a = K.a
    a('.amdgcn_target "amdgcn-amd-amdhsa--gfx950"\n.text\n.globl %s\n.p2align 8\n.type %s,@function' % (KNAME, KNAME))
    a.label(KNAME)
    phase1.prologue(K)
    phase1.consumer(K)
    a('s_branch L_p1_join')
    phase1.helper(K)
    a.label('L_p1_join')
    a('s_barrier')
    stamp(K, 6)
    stop = opt.get('stop')
    if stop == 'p1':
        a(f's_lshl_b32 s80, s{sRB}, 4\ns_add_u32 s80, s80, s{sHP}\ns_lshl_b32 s80, s80, 14\ns_add_u32 s80, s80, {WS_DUMP}')
        a(f'v_lshlrev_b32 v2, 4, v0\nv_add_u32 v3, s80, v2\nv_add_u32 v2, {L_Q}, v2')
        a('ds_read_b128 v[4:7], v2\nds_read_b128 v[8:11], v2 offset:8192\ns_waitcnt lgkmcnt(0)')
        a(f'buffer_store_dwordx4 v[4:7], v3, {S(S_WS)}, 0 offen\nv_add_u32 v3, 8192, v3\nbuffer_store_dwordx4 v[8:11], v3, {S(S_WS)}, 0 offen')
        a('s_waitcnt vmcnt(0)')
    else:
        if stop not in ('p2', 'p3'):
            mode = opt.get('ffn_mode', 'dma3')
            if mode == 'split':
                for h in range(2):
                    K.hooks[f'ffn_write{h}'] = (lambda h: (lambda K: phase4.ffn_write(K, h)))(h)
                    K.hooks[f'ffn_load{h}'] = (lambda h: (lambda K: phase4.ffn_load(K, h)))(h)
            elif mode == 'dma3':
                for m in range(3):
                    K.hooks[f'ffn_dma{m}'] = (lambda m: (lambda K: phase4.ffn_dma(K, m)))(m)
        phase2.attention(K, stamp)
        if stop != 'p2':
            phase3.outproj(K, stamp)
            if stop != 'p3':
                phase4.tail(K, stamp)
    finish(K)
    a(f'''.section .rodata,"a"
.p2align 6
.amdhsa_kernel {KNAME}
  .amdhsa_next_free_vgpr 256
  .amdhsa_next_free_sgpr 102
  .amdhsa_accum_offset 256
  .amdhsa_group_segment_fixed_size 0
  .amdhsa_kernarg_size 88
  .amdhsa_user_sgpr_count 2
  .amdhsa_user_sgpr_kernarg_segment_ptr 1
  .amdhsa_system_sgpr_workgroup_id_x 1
.end_amdhsa_kernel''')
    lines, added = autonop(a.lines)
    errs = lint(lines, [KNAME])
    head = ['; fused pre-LN sliding-window attention + routed SwiGLU block (generated by my own script)',
            f'; @launch grid=(256,1,1) block=(512,1,1) lds={LDS_BYTES}']
    return '\n'.join(head + lines) + '\n', errs


if __name__ == '__main__':
    s, errs = build(stamps=True, stop=sys.argv[1] if len(sys.argv) > 1 else None)
    open('k.s', 'w').write(s)
    print(len(s), 'bytes')
```

```python
from common import *
import phase3

MF16 = 'v_mfma_f32_16x16x32_bf16'
MF32 = 'v_mfma_f32_32x32x16_bf16'
V_LANE = 1
L_G, L_U, L_D = 98304, 131072, 32768
L_XR = 16384
L_SEL = 12288
L_GU = 20480
L_RED = 24576
NF = 224
LOG2E = 1.4426950408889634


FST = 160
FA0, FA1, FA2 = 113, 114, 115


def ffn_addr(K, sJ):
    a = K.a
    a(f's_min_u32 s87, s{sF}, {NF - 1}\ns_lshr_b32 s86, s87, 2\ns_and_b32 s87, s87, 3')
    a(f'v_lshrrev_b32 v5, 3, v{V_LANE}\nv_and_b32 v6, 7, v{V_LANE}')
    a(f's_lshl_b32 s88, s87, 8\ns_lshl_b32 s89, s{sJ}, 6\ns_add_u32 s88, s88, s89\nv_add_u32 v7, s88, v5\ns_mov_b32 s88, 7168\nv_mul_lo_u32 v7, v7, s88')
    a('s_lshl_b32 s88, s86, 7\nv_add_u32 v7, s88, v7')
    a('v_bfe_u32 v5, v5, 1, 1\nv_lshlrev_b32 v5, 2, v5\nv_xor_b32 v5, v5, v6')
    a(f'v_lshl_add_u32 v{FA0}, v5, 4, v7\nv_xor_b32 v5, 2, v5\nv_lshl_add_u32 v{FA1}, v5, 4, v7')
    a(f's_lshl_b32 s88, s86, 6\ns_lshl_b32 s89, s{sJ}, 4\ns_add_u32 s88, s88, s89\nv_lshrrev_b32 v6, 5, v{V_LANE}\nv_add_u32 v6, s88, v6\nv_lshlrev_b32 v6, 11, v6')
    a(f's_lshl_b32 s88, s87, 9\nv_and_b32 v7, 31, v{V_LANE}\nv_lshl_add_u32 v6, v7, 4, v6\nv_add_u32 v{FA2}, s88, v6')


def ffn_load_text(n):
    m, i = n // 8, n % 8
    d = vr(FST + 4 * (n % 12), 4)
    if m < 2:
        return f's_mov_b32 s88, {i * 8 * 7168}\nbuffer_load_dwordx4 {d}, v{FA0 if i % 2 == 0 else FA1}, {S(S_WG if m == 0 else S_WU)}, s88 offen'
    return f's_mov_b32 s88, {i * 4096}\nbuffer_load_dwordx4 {d}, v{FA2}, {S(S_WD)}, s88 offen'


def ffn_load(K, half):
    a = K.a
    a(f's_and_b32 s91, s{sW}, 3')
    ffn_addr(K, 91)
    for n in range(12 * half, 12 * half + 12):
        a(ffn_load_text(n))


def ffn_write(K, half):
    a = K.a
    a(f's_and_b32 s86, s{sW}, 3\ns_lshl_b32 s86, s86, 13\nv_lshl_add_u32 v5, v{V_LANE}, 4, s86')
    a(f'v_add_u32 v4, {L_G}, v5\nv_add_u32 v5, {L_D}, v5')
    for n in range(12 * half, 12 * half + 12):
        m, i = n // 8, n % 8
        if m < 2:
            a(f'ds_write_b128 v4, {vr(FST + 4 * (n % 12), 4)} offset:{m * 32768 + i * 1024}')
        else:
            a(f'ds_write_b128 v5, {vr(FST + 4 * (n % 12), 4)} offset:{i * 1024}')


def ffn_dma(K, m):
    a = K.a
    lab = a.newlabel('noffn')
    a(f's_cmp_ge_u32 s{sF}, {NF}\ns_cbranch_scc1 {lab}\ns_cmp_lt_u32 s{sW}, 4\ns_cbranch_scc1 {lab}')
    a(f's_lshr_b32 s86, s{sF}, 2\ns_and_b32 s87, s{sF}, 3\ns_sub_u32 s91, s{sW}, 4')
    if m < 2:
        a(f'v_lshrrev_b32 v2, 3, v{V_LANE}\nv_and_b32 v4, 7, v{V_LANE}')
        a('v_bfe_u32 v5, v2, 1, 1\nv_lshlrev_b32 v5, 2, v5\nv_xor_b32 v5, v5, v4')
        a('s_lshl_b32 s88, s87, 8\ns_lshl_b32 s89, s91, 6\ns_add_u32 s88, s88, s89\nv_add_u32 v6, s88, v2\ns_mov_b32 s88, 7168\nv_mul_lo_u32 v6, v6, s88')
        a('s_lshl_b32 s88, s86, 7\nv_add_u32 v6, s88, v6')
        a('v_lshl_add_u32 v2, v5, 4, v6\nv_xor_b32 v5, 2, v5\nv_lshl_add_u32 v6, v5, 4, v6')
        a(f's_lshl_b32 s89, s91, 13\ns_add_u32 m0, s89, {L_G if m == 0 else L_U}')
        for i in range(8):
            if i:
                a('s_add_u32 m0, m0, 0x400')
            a(f's_mov_b32 s88, {i * 8 * 7168}\nbuffer_load_dwordx4 v{2 if i % 2 == 0 else 6}, {S(S_WG if m == 0 else S_WU)}, s88 offen lds')
    else:
        a(f's_lshl_b32 s88, s86, 6\ns_lshl_b32 s89, s91, 4\ns_add_u32 s88, s88, s89\nv_lshrrev_b32 v6, 5, v{V_LANE}\nv_add_u32 v6, s88, v6\nv_lshlrev_b32 v6, 11, v6')
        a(f's_lshl_b32 s88, s87, 9\nv_and_b32 v5, 31, v{V_LANE}\nv_lshl_add_u32 v6, v5, 4, v6\nv_add_u32 v6, s88, v6')
        a(f's_lshl_b32 s89, s91, 13\ns_add_u32 m0, s89, {L_D}')
        for i in range(8):
            if i:
                a('s_add_u32 m0, m0, 0x400')
            a(f's_mov_b32 s88, {i * 4096}\nbuffer_load_dwordx4 v6, {S(S_WD)}, s88 offen lds')
    a.label(lab)


def sigmoid(a, v, t):
    a(f'v_mul_f32 v{t}, {f32hex(-LOG2E)}, v{v}\nv_exp_f32 v{t}, v{t}\nv_add_f32 v{t}, 1.0, v{t}\nv_rcp_f32 v{v}, v{t}')


def out_flag(K):
    a = K.a
    a(f's_lshl_b32 s86, s{sRB2}, 4\ns_add_u32 s86, s86, s{sCB}\ns_lshl_b32 s86, s86, 3\ns_add_u32 s86, s86, s{sW}\ns_lshl_b32 s86, s86, 2\ns_add_u32 s86, s86, {WS_OUTFLAG}')
    a(f'v_mov_b32 v6, s86\nv_mov_b32 v7, s{sNONCE}')
    a(f'v_cmp_eq_u32 vcc, 0, v{V_LANE}\ns_and_saveexec_b64 s[96:97], vcc')
    a(f'buffer_store_dword v7, v6, {S(S_WS)}, 0 offen sc1\ns_mov_b64 exec, s[96:97]')


def tail(K, stamp):
    a = K.a
    U = 136
    lffn = a.newlabel('ffnwg')
    a(f's_cmp_lt_u32 s{sF}, {NF}\ns_cbranch_scc1 {lffn}')
    a('s_waitcnt vmcnt(0)')
    out_flag(K)
    a('s_branch L_fin')
    a.label(lffn)
    lw = a.newlabel('selj')
    a(f's_cmp_ge_u32 s{sW}, 2\ns_cbranch_scc1 {lw}')
    a(f'v_and_b32 v6, 15, v{V_LANE}\nv_lshlrev_b32 v6, 6, v6\nv_add_u32 v6, {WS_CAND}, v6\ns_mov_b32 s90, 0')
    lp, lok = a.newlabel('cpoll'), a.newlabel('cok')
    a.label(lp)
    a(f'buffer_load_dwordx4 {vr(U, 4)}, v6, {S(S_WS)}, 0 offen sc1\ns_waitcnt vmcnt(0)')
    a(f'v_cmp_ne_u32 vcc, s{sNONCE}, v{U + 3}\ns_cbranch_vccz {lok}')
    a(f's_add_u32 s90, s90, 1\ns_cmp_gt_u32 s90, {K.SPIN}\ns_cbranch_scc1 {lok}\ns_branch {lp}')
    a.label(lok)
    stamp(K, 22)
    K0, K1, HI, LO, M1, TT = U + 4, U + 5, U + 6, U + 7, U + 8, U + 9
    phase3.sortable(a, K0, U, TT)
    phase3.sortable(a, K1, U + 1, TT)
    a(f's_movk_i32 s88, 0xf800\ns_movk_i32 s89, 0x7ff')
    a(f'v_and_b32 v{TT}, 0xffff, v{U + 2}\nv_sub_u32 v{TT}, s89, v{TT}\nv_and_or_b32 v{K0}, v{K0}, s88, v{TT}')
    a(f'v_lshrrev_b32 v{TT}, 16, v{U + 2}\nv_sub_u32 v{TT}, s89, v{TT}\nv_and_or_b32 v{K1}, v{K1}, s88, v{TT}')
    a(f'v_max_u32 v{HI}, v{K0}, v{K1}\nv_min_u32 v{LO}, v{K0}, v{K1}\nv_mov_b32 v{M1}, v{HI}')
    for ctl in ('quad_perm:[1,0,3,2]', 'quad_perm:[2,3,0,1]', 'row_half_mirror', 'row_mirror'):
        a(f'v_max_u32_dpp v{M1}, v{M1}, v{M1} {ctl} row_mask:0xf bank_mask:0xf')
    a(f'v_cmp_eq_u32 vcc, v{M1}, v{HI}')
    a(f'v_cndmask_b32 v{HI}, v{HI}, v{LO}, vcc')
    for ctl in ('quad_perm:[1,0,3,2]', 'quad_perm:[2,3,0,1]', 'row_half_mirror', 'row_mirror'):
        a(f'v_max_u32_dpp v{HI}, v{HI}, v{HI} {ctl} row_mask:0xf bank_mask:0xf')
    a(f'v_readfirstlane_b32 s86, v{M1}\nv_readfirstlane_b32 s87, v{HI}')
    a('s_and_b32 s86, s86, 0x7ff\ns_sub_u32 s86, 0x7ff, s86\ns_and_b32 s87, s87, 0x7ff\ns_sub_u32 s87, 0x7ff, s87')
    for t in range(2):
        st, sl, sr_ = 86 + t, 91 + t, 93 + t
        a(f's_lshr_b32 s88, s{st}, 7')
        a(f'v_readlane_b32 s89, v{U + 2}, s88\nv_readlane_b32 s{sr_}, v{U}, s88\nv_readlane_b32 s95, v{U + 1}, s88')
        a(f's_and_b32 s89, s89, 0xffff\ns_cmp_eq_u32 s89, s{st}\ns_cselect_b32 s{sl}, 0, 1\ns_cselect_b32 s{sr_}, s{sr_}, s95')
        a(f's_lshl_b32 s88, s88, 1\ns_add_u32 s{sl}, s{sl}, s88')
    R = U + 16
    a(f's_cmp_eq_u32 s{sW}, 0\ns_cselect_b32 s88, s91, s92\ns_lshl_b32 s88, s88, 13\ns_and_b32 s89, s{sF}, 3\ns_lshl_b32 s89, s89, 11\ns_add_u32 s88, s88, s89\ns_add_u32 s88, s88, {WS_CROW}')
    a(f'v_lshl_add_u32 v6, v{V_LANE}, 4, s88\ns_mov_b32 s90, 0')
    lp, lok = a.newlabel('rpoll'), a.newlabel('rok')
    a.label(lp)
    for i in range(2):
        a(f'buffer_load_dwordx4 {vr(R + 4 * i, 4)}, v6, {S(S_WS)}, 0 offen offset:{i * 1024} sc1')
    a(f'v_mov_b32 v{U + 10}, s86\nv_mov_b32 v{U + 11}, s87\nv_mov_b32 v{U + 12}, s93\nv_mov_b32 v{U + 13}, s94')
    a(f'v_mov_b32 v{U + 14}, s91\nv_mov_b32 v{U + 15}, s92\nv_mov_b32 v7, {L_SEL}')
    a(f'ds_write_b128 v7, {vr(U + 10, 4)}\nds_write_b64 v7, {vr(U + 14, 2)} offset:16')
    a('s_waitcnt vmcnt(0)')
    a(f'v_cmp_ne_u32 vcc, s{sNONCE}, v{R + 1}')
    for n in range(2):
        for o in (1, 3):
            if n or o != 1:
                a(f'v_cmp_ne_u32 s[88:89], s{sNONCE}, v{R + 4 * n + o}\ns_or_b64 vcc, vcc, s[88:89]')
    a(f's_cbranch_vccz {lok}')
    a(f's_add_u32 s90, s90, 1\ns_cmp_gt_u32 s90, {K.SPIN}\ns_cbranch_scc1 {lok}\ns_branch {lp}')
    a.label(lok)
    a(f's_lshl_b32 s89, s{sW}, 9\ns_add_u32 s89, s89, {L_XR}')
    a(f's_mov_b32 s88, 0x07060302\nv_lshl_add_u32 v6, v{V_LANE}, 2, s89')
    for n in range(2):
        a(f'v_perm_b32 v{R + 4 * n}, v{R + 4 * n + 2}, v{R + 4 * n}, s88')
    for n in range(2):
        a(f'ds_write_b32 v6, v{R + 4 * n} offset:{n * 256}')
    lab = a.newlabel('nononce')
    a(f's_cmp_lg_u32 s{sB}, 0\ns_cbranch_scc1 {lab}\ns_cmp_lg_u32 s{sW}, 0\ns_cbranch_scc1 {lab}')
    a(f'v_mov_b32 v6, {WS_NONCE}\nv_mov_b32 v7, s{sNONCE}\nv_cmp_eq_u32 vcc, 0, v{V_LANE}\ns_and_saveexec_b64 s[96:97], vcc')
    a(f'buffer_store_dword v7, v6, {S(S_WS)}, 0 offen sc1\ns_mov_b64 exec, s[96:97]')
    a.label(lab)
    a.label(lw)
    stamp(K, 23)
    a('s_waitcnt vmcnt(0) lgkmcnt(0)')
    a('s_barrier')
    out_flag(K)
    stamp(K, 24)
    XF, WF, DG = 8, 40, 72
    a(f'v_lshrrev_b32 v2, 4, v{V_LANE}\nv_and_b32 v4, 15, v{V_LANE}')
    a(f'v_and_b32 v6, 1, v4\nv_lshlrev_b32 v6, 9, v6\nv_lshl_add_u32 v6, v2, 4, v6\nv_add_u32 v6, {L_XR}, v6')
    for st in range(8):
        a(f'ds_read_b128 {vr(XF + 4 * st, 4)}, v6 offset:{st * 64}')
    a(f's_and_b32 s86, s{sW}, 3\ns_lshl_b32 s86, s86, 5\nv_and_b32 v5, 3, v4\nv_lshl_add_u32 v5, v5, 3, s86')
    a('v_bfe_u32 v7, v4, 3, 1\nv_lshlrev_b32 v7, 6, v7\nv_xor_b32 v5, v5, v7\nv_and_b32 v7, 1, v2\nv_lshlrev_b32 v7, 5, v7\nv_xor_b32 v5, v5, v7')
    a('v_lshrrev_b32 v7, 2, v4\nv_lshl_add_u32 v7, v2, 3, v7\nv_lshl_add_u32 v7, v7, 7, v5')
    a(f's_lshr_b32 s86, s{sW}, 2\ns_lshl_b32 s86, s86, 15\ns_add_u32 s86, s86, {L_G}\nv_add_u32 v7, s86, v7')
    for st in range(8):
        for rd in range(2):
            a(f'ds_read_b64_tr_b16 {vr(WF + 4 * st + 2 * rd, 2)}, v7 offset:{st * 4096 + rd * 512}')
    a(f's_lshl_b32 s86, s{sF}, 10\ns_lshr_b32 s87, s{sW}, 2\ns_lshl_b32 s87, s87, 9\ns_add_u32 s86, s86, s87\ns_and_b32 s87, s{sW}, 3\ns_lshl_b32 s87, s87, 6\ns_add_u32 s86, s86, s87\ns_add_u32 s86, s86, {WS_PACT}')
    a('v_lshlrev_b32 v6, 8, v4\nv_lshl_add_u32 v6, v2, 4, v6\nv_add_u32 v6, s86, v6')
    for st in range(8):
        a(f's_waitcnt lgkmcnt({min(15, 2 * (7 - st))})' if st < 7 else 's_waitcnt lgkmcnt(0)')
        a(f'{MF16} {vr(DG, 4)}, {vr(WF + 4 * st, 4)}, {vr(XF + 4 * st, 4)}, {"0" if st == 0 else vr(DG, 4)}')
    a('s_mov_b32 s88, 0x7fc00000\nv_mov_b32 v5, s88')
    for i in range(4):
        a(f'v_cmp_eq_u32 vcc, -1, v{DG + i}\nv_cndmask_b32 v{DG + i}, v{DG + i}, v5, vcc')
    a('v_cmp_gt_u32 vcc, 2, v4\ns_and_saveexec_b64 s[96:97], vcc')
    a(f'buffer_store_dwordx4 {vr(DG, 4)}, v6, {S(S_WS)}, 0 offen sc1\ns_mov_b64 exec, s[96:97]')
    stamp(K, 28)
    BF, AF, DD = 8, 24, 40
    a(f'v_lshrrev_b32 v7, 5, v{V_LANE}\nv_lshlrev_b32 v7, 3, v7\nv_lshrrev_b32 v5, 2, v4\nv_add_u32 v7, v7, v5\nv_lshlrev_b32 v7, 9, v7')
    a(f'v_bfe_u32 v5, v{V_LANE}, 4, 1\nv_lshl_add_u32 v7, v5, 5, v7\nv_and_b32 v5, 3, v4\nv_lshl_add_u32 v7, v5, 3, v7')
    a(f's_lshl_b32 s86, s{sW}, 6\ns_add_u32 s86, s86, {L_D}\nv_add_u32 v7, s86, v7')
    for st in range(4):
        for rd in range(2):
            a(f'ds_read_b64_tr_b16 {vr(BF + 4 * st + 2 * rd, 2)}, v7 offset:{st * 8192 + rd * 2048}')
    lo = a.newlabel('actj')
    a(f's_cmp_lg_u32 s{sW}, 0\ns_cbranch_scc1 {lo}')
    PA = 80
    a(f's_and_b32 s86, s{sF}, 0xfffc\ns_lshl_b32 s86, s86, 10\ns_add_u32 s86, s86, {WS_PACT}\nv_lshl_add_u32 v6, v{V_LANE}, 4, s86\ns_mov_b32 s90, 0')
    lp, lok = a.newlabel('ppoll'), a.newlabel('pok')
    a.label(lp)
    for p in range(4):
        a(f'buffer_load_dwordx4 {vr(PA + 4 * p, 4)}, v6, {S(S_WS)}, 0 offen offset:{p * 1024} sc1')
    a('s_waitcnt vmcnt(0)')
    a(f'v_cmp_eq_u32 vcc, -1, v{PA}')
    for i in range(1, 16):
        a(f'v_cmp_eq_u32 s[88:89], -1, v{PA + i}\ns_or_b64 vcc, vcc, s[88:89]')
    a(f's_cbranch_vccz {lok}')
    a(f's_add_u32 s90, s90, 1\ns_cmp_gt_u32 s90, {K.SPIN}\ns_cbranch_scc1 {lok}\ns_branch {lp}')
    a.label(lok)
    stamp(K, 29)
    for h in range(2):
        a(f'v_pk_add_f32 v[{PA + 2 * h}:{PA + 2 * h + 1}], v[{PA + 2 * h}:{PA + 2 * h + 1}], v[{PA + 4 + 2 * h}:{PA + 5 + 2 * h}]')
        a(f'v_pk_add_f32 v[{PA + 8 + 2 * h}:{PA + 9 + 2 * h}], v[{PA + 8 + 2 * h}:{PA + 9 + 2 * h}], v[{PA + 12 + 2 * h}:{PA + 13 + 2 * h}]')
    for h in range(2):
        a(f'v_pk_add_f32 v[{PA + 2 * h}:{PA + 2 * h + 1}], v[{PA + 2 * h}:{PA + 2 * h + 1}], v[{PA + 8 + 2 * h}:{PA + 9 + 2 * h}]')
    for h in range(2):
        a(f'v_cvt_pk_bf16_f32 v{PA + 4 + h}, v{PA + 2 * h}, v{PA + 2 * h + 1}')
    for h in range(2):
        a(f'v_lshlrev_b32 v{PA + 2 * h}, 16, v{PA + 4 + h}\nv_and_b32 v{PA + 2 * h + 1}, 0xffff0000, v{PA + 4 + h}')
    for i in range(4):
        a(f'v_mov_b32 v{PA + 4 + i}, v{PA + i}')
    for i in range(4):
        a(f'v_permlane32_swap_b32 v{PA + i}, v{PA + 4 + i}')
    for i in range(4):
        a(f'v_mul_f32 v{PA + 8 + i}, {f32hex(-LOG2E)}, v{PA + i}')
    for i in range(4):
        a(f'v_exp_f32 v{PA + 8 + i}, v{PA + 8 + i}')
    for i in range(4):
        a(f'v_add_f32 v{PA + 8 + i}, 1.0, v{PA + 8 + i}')
    for i in range(4):
        a(f'v_rcp_f32 v{PA + 8 + i}, v{PA + 8 + i}')
    for i in range(4):
        a(f'v_mul_f32 v{PA + i}, v{PA + i}, v{PA + 8 + i}')
    for h in range(2):
        a(f'v_cvt_pk_bf16_f32 v{PA + 8 + h}, v{PA + 2 * h}, v{PA + 2 * h + 1}')
    for h in range(2):
        a(f'v_lshlrev_b32 v{PA + 2 * h}, 16, v{PA + 8 + h}\nv_and_b32 v{PA + 2 * h + 1}, 0xffff0000, v{PA + 8 + h}')
    for h in range(2):
        a(f'v_pk_mul_f32 v[{PA + 2 * h}:{PA + 2 * h + 1}], v[{PA + 2 * h}:{PA + 2 * h + 1}], v[{PA + 4 + 2 * h}:{PA + 5 + 2 * h}]')
    for h in range(2):
        a(f'v_cvt_pk_bf16_f32 v{PA + 8 + h}, v{PA + 2 * h}, v{PA + 2 * h + 1}')
    a(f'v_and_b32 v6, 31, v{V_LANE}\nv_lshlrev_b32 v6, 3, v6\nv_add_u32 v6, {L_GU}, v6')
    a(f'ds_write_b64 v6, {vr(PA + 8, 2)}')
    a.label(lo)
    a('s_waitcnt lgkmcnt(0)\ns_barrier')
    a(f'v_and_b32 v6, 1, v{V_LANE}\nv_lshlrev_b32 v6, 7, v6\nv_lshrrev_b32 v7, 5, v{V_LANE}\nv_lshl_add_u32 v6, v7, 4, v6\nv_add_u32 v6, {L_GU}, v6')
    for st in range(4):
        a(f'ds_read_b128 {vr(AF + 4 * st, 4)}, v6 offset:{st * 32}')
    a(f'v_and_b32 v5, 31, v{V_LANE}\nv_cmp_gt_u32 vcc, 2, v5')
    a(f's_lshr_b32 s86, s{sF}, 2\ns_lshl_b32 s86, s86, 13\ns_and_b32 s87, s{sF}, 3\ns_lshl_b32 s87, s87, 10\ns_add_u32 s86, s86, s87\ns_lshl_b32 s87, s{sW}, 7\ns_add_u32 s86, s86, s87\ns_add_u32 s86, s86, {WS_YPART}')
    a(f'v_lshrrev_b32 v6, 5, v{V_LANE}\nv_lshlrev_b32 v6, 12, v6\nv_lshl_add_u32 v6, v5, 2, v6\nv_add_u32 v6, s86, v6')
    a('s_waitcnt lgkmcnt(0)')
    for i in range(16):
        a(f'v_cndmask_b32 v{AF + i}, 0, v{AF + i}, vcc')
    for st in range(4):
        a(f'{MF32} {vr(DD, 16)}, {vr(AF + 4 * st, 4)}, {vr(BF + 4 * st, 4)}, {"0" if st == 0 else vr(DD, 16)}')
    a(f'v_permlane32_swap_b32 v{DD}, v{DD + 1}')
    a(f's_mov_b32 s88, 0x7fc00000\nv_mov_b32 v5, s88\nv_cmp_eq_u32 vcc, -1, v{DD}\nv_cndmask_b32 v{DD}, v{DD}, v5, vcc')
    a(f'buffer_store_dword v{DD}, v6, {S(S_WS)}, 0 offen sc1')
    stamp(K, 25)
    a(f's_lshr_b32 s86, s{sB}, 3\ns_cmp_ge_u32 s86, 8\ns_cbranch_scc1 L_fin')
    sTK, sCH = 80, 81
    a(f's_and_b32 s87, s{sB}, 7\ns_lshl_b32 s87, s87, 3\ns_add_u32 s86, s86, s87\ns_lshr_b32 s{sTK}, s86, 5\ns_and_b32 s{sCH}, s86, 31')
    Y = 8
    a(f'v_lshrrev_b32 v6, 3, v{V_LANE}\nv_cmp_gt_u32 s[94:95], 7, v6\nv_cndmask_b32 v6, 0, v6, s[94:95]\ns_mul_i32 s86, s{sW}, 7\nv_add_u32 v6, s86, v6\nv_lshlrev_b32 v6, 13, v6')
    a(f's_lshl_b32 s86, s{sTK}, 12\ns_lshl_b32 s87, s{sCH}, 7\ns_add_u32 s86, s86, s87\ns_add_u32 s86, s86, {WS_YPART}')
    a(f'v_and_b32 v7, 7, v{V_LANE}\nv_lshl_add_u32 v6, v7, 4, v6\nv_add_u32 v6, s86, v6')
    lno0 = a.newlabel('notw0')
    a(f's_cmp_lg_u32 s{sW}, 0\ns_cbranch_scc1 {lno0}')
    a(f'v_mov_b32 v7, {L_SEL}\nds_read_b128 v[24:27], v7\nds_read_b64 v[28:29], v7 offset:16\ns_waitcnt lgkmcnt(0)')
    a(f'v_readfirstlane_b32 s82, v24\nv_readfirstlane_b32 s87, v25\nv_readfirstlane_b32 s83, v26\nv_readfirstlane_b32 s89, v27')
    a(f'v_readfirstlane_b32 s91, v28\nv_readfirstlane_b32 s92, v29')
    a(f's_cmp_eq_u32 s{sTK}, 0\ns_cselect_b32 s82, s82, s87\ns_cselect_b32 s83, s83, s89\ns_cselect_b32 s91, s91, s92')
    a(f's_lshl_b32 s91, s91, 13\ns_lshl_b32 s87, s{sCH}, 8\ns_add_u32 s91, s91, s87\ns_add_u32 s91, s91, {WS_CROW}')
    a(f'v_and_b32 v7, 31, v{V_LANE}\nv_lshl_add_u32 v7, v7, 3, s91')
    a(f'buffer_load_dwordx2 v[30:31], v7, {S(S_WS)}, 0 offen sc1')
    a(f's_lshr_b32 s87, s82, 7\ns_lshl_b32 s87, s87, 4\ns_lshr_b32 s89, s{sCH}, 1\ns_add_u32 s87, s87, s89\ns_lshl_b32 s87, s87, 3')
    a(f's_bfe_u32 s89, s82, 0x20005\ns_add_u32 s87, s87, s89\ns_and_b32 s89, s{sCH}, 1\ns_lshl_b32 s89, s89, 2\ns_add_u32 s87, s87, s89\ns_lshl_b32 s87, s87, 2\ns_add_u32 s87, s87, {WS_OUTFLAG}')
    a('v_mov_b32 v32, s87\ns_mov_b32 s90, 0')
    lp, lok = a.newlabel('fpoll'), a.newlabel('fok')
    a.label(lp)
    a(f'buffer_load_dword v33, v32, {S(S_WS)}, 0 offen sc1\ns_waitcnt vmcnt(0)')
    a(f'v_cmp_ne_u32 vcc, s{sNONCE}, v33\ns_cbranch_vccz {lok}')
    a(f's_add_u32 s90, s90, 1\ns_cmp_gt_u32 s90, {K.SPIN}\ns_cbranch_scc1 {lok}\ns_branch {lp}')
    a.label(lok)
    a.label(lno0)
    a('s_mov_b32 s90, 0')
    lp, lok = a.newlabel('ypoll'), a.newlabel('yok')
    a.label(lp)
    a(f'buffer_load_dwordx4 {vr(Y, 4)}, v6, {S(S_WS)}, 0 offen sc1')
    a('s_waitcnt vmcnt(0)')
    a(f'v_cmp_eq_u32 vcc, -1, v{Y}')
    for i in range(1, 4):
        a(f'v_cmp_eq_u32 s[88:89], -1, v{Y + i}\ns_or_b64 vcc, vcc, s[88:89]')
    a(f's_cbranch_vccz {lok}')
    a(f's_add_u32 s90, s90, 1\ns_cmp_gt_u32 s90, {K.SPIN}\ns_cbranch_scc1 {lok}\ns_branch {lp}')
    a.label(lok)
    stamp(K, 26)
    for i in range(4):
        a(f'v_cndmask_b32 v{Y + i}, 0, v{Y + i}, s[94:95]')
    for i in range(4):
        a(f'v_add_f32_dpp v{Y + i}, v{Y + i}, v{Y + i} row_ror:8 row_mask:0xf bank_mask:0xf')
    for fn in (xor16_add, xor32_add):
        for i in range(4):
            fn(a, Y + i, Y + 8 + i)
    a(f's_lshl_b32 s86, s{sW}, 7\ns_add_u32 s86, s86, {L_RED}\nv_and_b32 v6, 7, v{V_LANE}\nv_lshl_add_u32 v6, v6, 4, s86')
    a(f'ds_write_b128 v6, {vr(Y, 4)}')
    a('s_waitcnt lgkmcnt(0)\ns_barrier')
    a(f's_cmp_lg_u32 s{sW}, 0\ns_cbranch_scc1 L_fin')
    a(f'v_and_b32 v6, 31, v{V_LANE}\nv_lshlrev_b32 v6, 2, v6\nv_add_u32 v6, {L_RED}, v6')
    for w in range(8):
        a(f'ds_read_b32 v{Y + w}, v6 offset:{w * 128}')
    a(f'v_mov_b32 v{Y + 10}, s83')
    round_bf16(a, Y + 10, Y + 11)
    sigmoid(a, Y + 10, Y + 11)
    round_bf16(a, Y + 10, Y + 11)
    a('s_waitcnt lgkmcnt(0)')
    for st in (4, 2, 1):
        for i in range(st):
            a(f'v_add_f32 v{Y + i}, v{Y + i}, v{Y + i + st}')
    round_bf16(a, Y, Y + 1)
    a(f'v_mul_f32 v{Y}, v{Y}, v{Y + 10}')
    round_bf16(a, Y, Y + 1)
    a(f'v_and_b32 v{Y + 4}, 0xffff0000, v30\nv_lshlrev_b32 v{Y + 5}, 16, v30')
    a(f'v_add_f32 v{Y}, v{Y}, v{Y + 4}')
    round_bf16(a, Y, Y + 1)
    a(f'v_add_f32 v{Y}, v{Y}, v{Y + 5}\nv_cvt_pk_bf16_f32 v{Y}, v{Y}, v{Y}')
    a(f's_lshl_b32 s86, s82, 11\ns_lshl_b32 s87, s{sCH}, 6\ns_add_u32 s86, s86, s87')
    a(f'v_and_b32 v7, 31, v{V_LANE}\nv_lshl_add_u32 v7, v7, 1, s86')
    a(f'v_cmp_gt_u32 vcc, 32, v{V_LANE}\ns_and_saveexec_b64 s[96:97], vcc')
    a(f'buffer_store_short v{Y}, v7, {S(S_OUT)}, 0 offen sc1\ns_mov_b64 exec, s[96:97]')
    stamp(K, 27)
```

```python
import sys
sys.path.insert(0, 'gen')
from asmlib import Asm, autonop, lint
from common import *
import phase1
import phase2
import phase3
import phase4


class Kern:
    STAMP_T = 98
    STAMP_BASE = 100
    SPIN = 200000

    def __init__(self, **opt):
        self.opt = opt
        self.a = Asm()
        self.STAMP_RT = 26
        self.STAMP0 = 0
        self.hooks = {}

    def hook(self, name):
        if name in self.hooks:
            self.hooks[name](self)


def stamp(K, idx):
    if K.opt.get('stamps'):
        if K.opt.get('rt'):
            K.a(f's_memrealtime s[98:99]\ns_waitcnt lgkmcnt(0)\nv_writelane_b32 v255, s98, {idx}')
        else:
            K.a(f's_memtime s[98:99]\ns_waitcnt lgkmcnt(0)\ns_sub_u32 s98, s98, s100\nv_writelane_b32 v255, s98, {idx}')


phase1.stamp = stamp


def finish(K):
    a = K.a
    a.label('L_fin')
    if K.opt.get('stamps'):
        a('s_waitcnt vmcnt(0) lgkmcnt(0)')
        stamp(K, 13)
        a('s_memrealtime s[98:99]\ns_waitcnt lgkmcnt(0)')
        a('v_writelane_b32 v255, s98, 15')
        a(f's_lshl_b32 s80, s{sB}, 3\ns_add_u32 s80, s80, s{sW}\ns_lshl_b32 s80, s80, 7\ns_add_u32 s80, s80, {WS_DBG}')
        a('v_lshl_add_u32 v2, v1, 2, s80')
        a('v_cmp_gt_u32 vcc, 32, v1\ns_and_saveexec_b64 s[96:97], vcc')
        a(f'buffer_store_dword v255, v2, {S(S_WS)}, 0 offen')
        a('s_mov_b64 exec, s[96:97]')
        a(f's_add_u32 s80, s80, 0x80000\nv_lshl_add_u32 v2, v1, 2, s80')
        a('v_cmp_gt_u32 vcc, 32, v1\ns_and_saveexec_b64 s[96:97], vcc')
        a(f'buffer_store_dword v254, v2, {S(S_WS)}, 0 offen')
    if K.opt.get('dbgout'):
        a('s_mov_b64 exec, -1')
        a('s_load_dwordx2 s[80:81], s[0:1], 72\ns_waitcnt lgkmcnt(0)')
        a('s_mov_b32 s84, s80\ns_mov_b32 s85, s81\ns_mov_b32 s86, 256\ns_mov_b32 s87, 0x00020000')
        a('v_mov_b32 v254, 0')
        for k, idx in enumerate(K.opt['dbgout']):
            a(f'v_readlane_b32 s82, v255, {idx}')
            if idx == 14:
                a('s_not_b32 s82, s82')
            a(f'v_writelane_b32 v254, s82, {k}')
        a('v_lshlrev_b32 v2, 2, v1\nv_cmp_gt_u32 vcc, 16, v1\ns_and_saveexec_b64 s[96:97], vcc')
        a('buffer_atomic_umax v254, v2, s[84:87], 0 offen')
    a.label('L_exit')
    a('s_endpgm')


def install_hooks(K, opt):
    if opt.get('stop') in ('p1', 'p2', 'p3'):
        return
    mode = opt.get('ffn_mode', 'dma3')
    if mode == 'split':
        for h in range(2):
            K.hooks[f'ffn_write{h}'] = (lambda h: (lambda K: phase4.ffn_write(K, h)))(h)
            K.hooks[f'ffn_load{h}'] = (lambda h: (lambda K: phase4.ffn_load(K, h)))(h)
    elif mode == 'split2':
        K.hooks['ffn_load_b16'] = lambda K: phase4.ffn_load(K, 0)
        K.hooks['ffn_load1'] = lambda K: phase4.ffn_load(K, 1)
        K.hooks['ffn_write1'] = lambda K: phase4.ffn_write(K, 0)
        K.hooks['ffn_write0'] = lambda K: phase4.ffn_write(K, 1)
    elif mode == 'dma3':
        for m in range(3):
            K.hooks[f'ffn_dma{m}'] = (lambda m: (lambda K: phase4.ffn_dma(K, m)))(m)


def build(**opt):
    K = Kern(**opt)
    a = K.a
    a('.amdgcn_target "amdgcn-amd-amdhsa--gfx950"\n.text\n.globl %s\n.p2align 8\n.type %s,@function' % (KNAME, KNAME))
    a.label(KNAME)
    install_hooks(K, opt)
    phase1.prologue(K)
    phase1.consumer(K)
    a('s_branch L_p1_join')
    phase1.helper(K)
    a.label('L_p1_join')
    a('s_barrier')
    stamp(K, 6)
    stop = opt.get('stop')
    if stop == 'p1':
        a(f's_lshl_b32 s80, s{sRB}, 4\ns_add_u32 s80, s80, s{sHP}\ns_lshl_b32 s80, s80, 14\ns_add_u32 s80, s80, {WS_DUMP}')
        a(f'v_lshlrev_b32 v2, 4, v0\nv_add_u32 v3, s80, v2\nv_add_u32 v2, {L_Q}, v2')
        a('ds_read_b128 v[4:7], v2\nds_read_b128 v[8:11], v2 offset:8192\ns_waitcnt lgkmcnt(0)')
        a(f'buffer_store_dwordx4 v[4:7], v3, {S(S_WS)}, 0 offen\nv_add_u32 v3, 8192, v3\nbuffer_store_dwordx4 v[8:11], v3, {S(S_WS)}, 0 offen')
        a('s_waitcnt vmcnt(0)')
    else:
        phase2.attention(K, stamp)
        if stop != 'p2':
            phase3.outproj(K, stamp)
            if stop != 'p3':
                phase4.tail(K, stamp)
    finish(K)
    a(f'''.section .rodata,"a"
.p2align 6
.amdhsa_kernel {KNAME}
  .amdhsa_next_free_vgpr 256
  .amdhsa_next_free_sgpr 102
  .amdhsa_accum_offset 256
  .amdhsa_group_segment_fixed_size 0
  .amdhsa_kernarg_size 88
  .amdhsa_user_sgpr_count 2
  .amdhsa_user_sgpr_kernarg_segment_ptr 1
  .amdhsa_system_sgpr_workgroup_id_x 1
.end_amdhsa_kernel''')
    lines, added = autonop(a.lines)
    errs = lint(lines, [KNAME])
    head = ['; fused pre-LN sliding-window attention + routed SwiGLU block (generated by my own script)',
            f'; @launch grid=(256,1,1) block=(512,1,1) lds={LDS_BYTES}']
    return '\n'.join(head + lines) + '\n', errs


if __name__ == '__main__':
    s, errs = build(stamps=True, stop=sys.argv[1] if len(sys.argv) > 1 else None)
    open('k.s', 'w').write(s)
    print(len(s), 'bytes')
```

```python
from common import *
import phase4
import phase2

MF16 = 'v_mfma_f32_16x16x32_bf16'
V_LANE = 1


def stamp(K, idx):
    if K.opt.get('stamps'):
        K.a(f's_memtime s[{K.STAMP_T}:{K.STAMP_T + 1}]\ns_waitcnt lgkmcnt(0)\ns_mov_b32 s{K.STAMP0 + idx}, s{K.STAMP_T}')


def prologue(K):
    a = K.a
    a('s_cmp_ge_u32 s2, 256\ns_cbranch_scc1 L_exit')
    a('s_load_dwordx16 s[4:19], s[0:1], 0\ns_load_dwordx4 s[20:23], s[0:1], 64\ns_load_dwordx2 s[24:25], s[0:1], 80')
    if K.opt.get('stamps'):
        a(f's_memrealtime s[{K.STAMP_RT}:{K.STAMP_RT + 1}]\ns_memtime s[{K.STAMP_BASE}:{K.STAMP_BASE + 1}]')
    a(f'v_and_b32 v{V_LANE}, 63, v0\nv_lshrrev_b32 v2, 6, v0')
    if K.opt.get('stamps'):
        a('v_mov_b32 v255, 0\nv_mov_b32 v254, 0')
    a(f's_mov_b32 s{sB}, s2')
    a(f'v_readfirstlane_b32 s{sW}, v2')
    a('s_and_b32 s80, s2, 7\ns_lshr_b32 s81, s2, 3')
    a(f's_lshr_b32 s82, s80, 2\ns_lshl_b32 s82, s82, 3\ns_lshr_b32 s83, s81, 2\ns_add_u32 s{sRB}, s82, s83')
    a(f's_and_b32 s82, s80, 3\ns_lshl_b32 s82, s82, 2\ns_and_b32 s83, s81, 3\ns_add_u32 s{sHP}, s82, s83')
    a(f's_lshl_b32 s82, s80, 1\ns_lshr_b32 s83, s81, 4\ns_add_u32 s{sRB2}, s82, s83\ns_and_b32 s{sCB}, s81, 15')
    a(f's_mul_i32 s82, s80, 28\ns_add_u32 s82, s82, s81\ns_cmp_lt_u32 s81, 28\ns_cselect_b32 s{sF}, s82, 0xffff')
    a('s_waitcnt lgkmcnt(0)')
    if K.opt.get('stamps'):
        a(f'v_writelane_b32 v255, s{K.STAMP_RT}, 14')
    srd(a, S_X, 4, 4 << 20)
    srd(a, S_WQ, 6, 6 << 20)
    srd(a, S_WS, 24, WS_SIZE)
    a(f'v_mov_b32 v2, {WS_NONCE}')
    a(f'buffer_load_dword v3, v2, {S(S_WS)}, 0 offen sc1')
    a(f's_cmp_ge_u32 s{sW}, 4\ns_cbranch_scc1 L_p1_helper')


def late_srds(K):
    a = K.a
    srd(a, S_WO, 8, 2 << 20)
    srd(a, S_OUT, 20, 4 << 20)
    srd(a, S_WG, 14, 1024 * 3584 * 2)
    srd(a, S_WU, 16, 1024 * 3584 * 2)
    srd(a, S_WD, 18, 1024 * 3584 * 2)
    srd(a, S_WR, 12, 2048)


def take_nonce(K):
    a = K.a
    a(f'v_readfirstlane_b32 s{sNONCE}, v3')
    a(f's_mul_i32 s{sNONCE}, s{sNONCE}, 1664525\ns_add_u32 s{sNONCE}, s{sNONCE}, 1013904223')


ACC = 16
FA, FB = 112, 152
VXB, VWB = 192, 194
VXC, VWC = 196, 198


def accQ(db, b):
    return ACC + 4 * (db * 4 + b)


def accK(db, b):
    return ACC + 4 * (8 + db * 4 + b)


def accV(b, db):
    return ACC + 4 * (16 + b * 2 + db)


def consumer(K):
    a = K.a
    sBuf, sCnt = 80, 81
    sWR, sHD = 82, 83
    if K.opt.get('prio', 1):
        a(f"s_setprio {K.opt.get('prio', 1)}")
    a(f's_lshr_b32 s{sWR}, s{sW}, 1\ns_and_b32 s{sHD}, s{sW}, 1')
    XS, WSL = 112, 128
    a(f's_lshl_b32 s84, s{sRB}, 7\ns_lshl_b32 s85, s{sHP}, 3\ns_add_u32 s84, s84, s85\ns_lshl_b32 s85, s{sW}, 1\ns_add_u32 s92, s84, s85')
    a(f's_lshl_b32 s84, s92, 11\nv_lshrrev_b32 v5, 5, v{V_LANE}\nv_lshlrev_b32 v5, 11, v5\nv_and_b32 v6, 31, v{V_LANE}\nv_lshl_add_u32 v5, v6, 4, v5\nv_add_u32 v5, s84, v5')
    for i in range(4):
        a(f'buffer_load_dwordx4 {vr(XS + 4 * i, 4)}, v5, {S(S_X)}, 0 offen offset:{i * 512}')
    a(f'v_lshrrev_b32 v10, 3, v{V_LANE}\nv_and_b32 v11, 7, v{V_LANE}')
    a(f's_lshl_b32 s84, s{sRB}, 6\ns_lshl_b32 s85, s{sW}, 4\ns_add_u32 s84, s84, s85\nv_add_u32 v5, s84, v10\ns_mov_b32 s85, 6144\nv_mul_lo_u32 v5, v5, s85')
    a(f's_lshl_b32 s84, s{sHP}, 7\nv_lshl_add_u32 v5, v11, 4, v5\nv_add_u32 v5, s84, v5')
    for sg in range(3):
        for rg in range(2):
            a(f's_mov_b32 s84, {sg * 2048 + rg * 8 * 6144}\nbuffer_load_dwordx4 {vr(WSL + 8 * sg + 4 * rg, 4)}, v5, {S(S_WQ)}, s84 offen')
    late_srds(K)
    epilogue_addresses(K, sWR, sHD)
    phase2.setup_masks(K)
    a(f'v_lshrrev_b32 v2, 4, v{V_LANE}')
    a(f'v_and_b32 v4, 15, v{V_LANE}')
    a('v_bfe_u32 v5, v4, 1, 3\nv_xor_b32 v5, v5, v2')
    a(f's_lshl_b32 s84, s{sWR}, 6\nv_add_u32 v6, s84, v4\nv_lshlrev_b32 v6, 7, v6')
    for ks in range(2):
        a(f'v_xor_b32 v7, {4 * ks}, v5\nv_lshl_add_u32 v{VXB + ks}, v7, 4, v6')
    a('v_lshrrev_b32 v7, 2, v4\nv_lshl_add_u32 v7, v2, 3, v7')
    a(f'v_and_b32 v8, 3, v4\nv_lshlrev_b32 v8, 3, v8\ns_lshl_b32 s84, s{sHD}, 6\nv_add_u32 v8, s84, v8')
    a('v_bfe_u32 v9, v4, 3, 1\nv_lshlrev_b32 v9, 6, v9\nv_xor_b32 v8, v8, v9')
    a('v_and_b32 v9, 1, v2\nv_lshlrev_b32 v9, 5, v9\nv_xor_b32 v8, v8, v9')
    a(f'v_lshl_add_u32 v{VWB}, v7, 7, v8\nv_add_u32 v{VWB}, 16384, v{VWB}\nv_xor_b32 v{VWB + 1}, 32, v{VWB}')
    for i in range(2):
        a(f'v_mov_b32 v{VXC + i}, v{VXB + i}\nv_mov_b32 v{VWC + i}, v{VWB + i}')
    a(f's_mov_b32 s{sBuf}, 0')
    stamp(K, 7) if K.opt.get('p1stamps') else None
    a('s_waitcnt vmcnt(6)')
    stamp(K, 8) if K.opt.get('p1stamps') else None
    take_nonce(K)
    U = 16
    SUM, TT = 152, 156
    for d in range(16):
        a(f'v_lshlrev_b32 v{U + 2 * d}, 16, v{XS + d}\nv_and_b32 v{U + 2 * d + 1}, 0xffff0000, v{XS + d}')
    a(f'v_pk_add_f32 v[{SUM}:{SUM + 1}], v[{U}:{U + 1}], v[{U + 2}:{U + 3}]')
    a(f'v_pk_mul_f32 v[{SUM + 2}:{SUM + 3}], v[{U}:{U + 1}], v[{U}:{U + 1}]')
    a(f'v_pk_fma_f32 v[{SUM + 2}:{SUM + 3}], v[{U + 2}:{U + 3}], v[{U + 2}:{U + 3}], v[{SUM + 2}:{SUM + 3}]')
    for d in range(2, 16):
        a(f'v_pk_add_f32 v[{SUM}:{SUM + 1}], v[{SUM}:{SUM + 1}], v[{U + 2 * d}:{U + 2 * d + 1}]')
        a(f'v_pk_fma_f32 v[{SUM + 2}:{SUM + 3}], v[{U + 2 * d}:{U + 2 * d + 1}], v[{U + 2 * d}:{U + 2 * d + 1}], v[{SUM + 2}:{SUM + 3}]')
    a(f'v_add_f32 v{SUM}, v{SUM}, v{SUM + 1}\nv_add_f32 v{SUM + 1}, v{SUM + 2}, v{SUM + 3}')
    for ctl in ('quad_perm:[1,0,3,2]', 'quad_perm:[2,3,0,1]', 'row_half_mirror', 'row_mirror'):
        for r in range(2):
            a(f'v_add_f32_dpp v{SUM + r}, v{SUM + r}, v{SUM + r} {ctl} row_mask:0xf bank_mask:0xf')
    for r in range(2):
        xor16_add(a, SUM + r, TT + r)
    a(f's_mov_b32 s88, {f32hex(1.0 / 1024)}\ns_mov_b32 s89, {f32hex(1e-5)}')
    a(f'v_mul_f32 v{SUM}, s88, v{SUM}\nv_mul_f32 v{SUM + 1}, s88, v{SUM + 1}')
    v = SUM + 1
    a(f'v_fma_f32 v{v}, -v{SUM}, v{SUM}, v{v}\nv_max_f32 v{v}, 0, v{v}')
    round_bf16(a, v, TT)
    a(f'v_add_f32 v{v}, s89, v{v}')
    round_bf16(a, v, TT)
    a(f'v_sqrt_f32 v{v}, v{v}')
    round_bf16(a, v, TT)
    a(f'v_rcp_f32 v{v}, v{v}')
    round_bf16(a, SUM, TT)
    a(f'v_mov_b32 v{SUM + 2}, s{sNONCE}\nv_mov_b32 v{SUM + 3}, 0')
    a(f's_lshl_b32 s87, s92, 4\ns_add_u32 s87, s87, {WS_ROWST}\nv_lshrrev_b32 v5, 5, v{V_LANE}\nv_lshl_add_u32 v5, v5, 4, s87')
    a(f'v_and_b32 v6, 31, v{V_LANE}\nv_cmp_eq_u32 vcc, 0, v6\ns_and_saveexec_b64 s[96:97], vcc')
    a(f'buffer_store_dwordx4 {vr(SUM, 4)}, v5, {S(S_WS)}, 0 offen sc1\ns_mov_b64 exec, s[96:97]')
    stamp(K, 9) if K.opt.get('p1stamps') else None
    a('s_waitcnt vmcnt(1)')
    stamp(K, 10) if K.opt.get('p1stamps') else None
    CA = 16
    for sg in range(3):
        for rg in range(2):
            for d in range(4):
                src = WSL + 8 * sg + 4 * rg + d
                dst = CA + 16 * sg + 8 * rg + 2 * d
                a(f'v_lshlrev_b32 v{dst}, 16, v{src}\nv_and_b32 v{dst + 1}, 0xffff0000, v{src}')
    for sg in range(3):
        for d in range(4):
            c = CA + 16 * sg + 2 * d
            a(f'v_pk_add_f32 v[{c}:{c + 1}], v[{c}:{c + 1}], v[{c + 8}:{c + 9}]')
    for sg in range(3):
        for e in range(4):
            a(f'v_permlane32_swap_b32 v{CA + 16 * sg + e}, v{CA + 16 * sg + e + 4}')
    for sg in range(3):
        for e in range(0, 4, 2):
            c = CA + 16 * sg + e
            a(f'v_pk_add_f32 v[{c}:{c + 1}], v[{c}:{c + 1}], v[{c + 4}:{c + 5}]')
    for sg in range(3):
        for e in range(2):
            a(f'v_permlane16_swap_b32 v{CA + 16 * sg + e}, v{CA + 16 * sg + e + 2}')
    for sg in range(3):
        c = CA + 16 * sg
        a(f'v_pk_add_f32 v[{c}:{c + 1}], v[{c}:{c + 1}], v[{c + 2}:{c + 3}]')
    for sg in range(3):
        c = CA + 16 * sg
        a(f'v_add_f32_dpp v{c + 2}, v{c}, v{c} row_ror:8 row_mask:0xf bank_mask:0xf')
        a(f'v_add_f32_dpp v{c + 3}, v{c + 1}, v{c + 1} row_ror:8 row_mask:0xf bank_mask:0xf')
    a(f'v_and_b32 v5, 8, v{V_LANE}\nv_cmp_eq_u32 vcc, 0, v5')
    a(f'v_lshrrev_b32 v5, 5, v{V_LANE}\nv_lshlrev_b32 v5, 2, v5')
    a(f'v_bfe_u32 v6, v{V_LANE}, 4, 1\nv_lshl_add_u32 v5, v6, 1, v5')
    a(f'v_bfe_u32 v6, v{V_LANE}, 3, 1\nv_add_u32 v5, v5, v6\nv_lshl_add_u32 v5, v11, 3, v5')
    a(f's_mul_i32 s87, s{sW}, 768\ns_add_u32 s87, s87, {L_CSP}\nv_lshl_add_u32 v5, v5, 2, s87')
    for sg in range(3):
        c = CA + 16 * sg
        a(f'v_cndmask_b32 v{c}, v{c + 3}, v{c + 2}, vcc')
    for sg in range(3):
        a(f'ds_write_b32 v5, v{CA + 16 * sg} offset:{256 * sg}')
    for i in range(0, 96, 2):
        a(f'v_mov_b64 v[{ACC + i}:{ACC + i + 1}], 0')
    a('s_waitcnt lgkmcnt(0)')
    stamp(K, 11) if K.opt.get('p1stamps') else None

    def reads(S_, ks):
        r = []
        X = lambda b: f'ds_read_b128 {vr(S_ + 4 * b, 4)}, v{VXC + ks} offset:{b * 2048}'

        def W(j):
            seg, db = j >> 1, j & 1
            base = S_ + 16 + 4 * j
            off = seg * 8192 + ks * 4096
            return [f'ds_read_b64_tr_b16 {vr(base, 2)}, v{VWC + db} offset:{off}',
                    f'ds_read_b64_tr_b16 {vr(base + 2, 2)}, v{VWC + db} offset:{off + 512}']
        r.append(X(0))
        r += W(0)
        r += [X(1), X(2), X(3)]
        for j in range(1, 6):
            r += W(j)
        return r

    def mfmas(S_):
        out = []
        order = K.opt.get('morder', 2)
        if order == 0:
            seq = [(j, b) for j in range(6) for b in range(4)]
        elif order == 1:
            seq = [(j, b) for b in range(4) for j in range(6)]
        elif order == 2:
            seq = []
            for j in range(6):
                seq += [(j, b) for b in (range(4) if j % 2 == 0 else range(3, -1, -1))]
        elif order == 3:
            seq = []
            for b in range(4):
                seq += [(j, b) for j in (range(6) if b % 2 == 0 else range(5, -1, -1))]
        for j, b in seq:
            seg, db = j >> 1, j & 1
            w = vr(S_ + 16 + 4 * j, 4)
            x = vr(S_ + 4 * b, 4)
            if seg == 0:
                c = vr(accQ(db, b), 4)
                out.append(f'{MF16} {c}, {w}, {x}, {c}')
            elif seg == 1:
                c = vr(accK(db, b), 4)
                out.append(f'{MF16} {c}, {w}, {x}, {c}')
            else:
                c = vr(accV(b, db), 4)
                out.append(f'{MF16} {c}, {x}, {w}, {c}')
        return out

    def kstep(S_, N, nks, boundary, last=False):
        m = mfmas(S_)
        r = stat_reads() if last else reads(N, nks)
        a('s_waitcnt lgkmcnt(0)')
        k = 0
        if boundary:
            a(m[0])
            a(m[1])
            k = 2
            if not last:
                a(f's_add_u32 s{sBuf}, s{sBuf}, {STAGE}\ns_cmp_eq_u32 s{sBuf}, {STAGE * 3}\ns_cselect_b32 s{sBuf}, 0, s{sBuf}')
                for i in range(2):
                    a(f'v_add_u32 v{VXC + i}, s{sBuf}, v{VXB + i}\nv_add_u32 v{VWC + i}, s{sBuf}, v{VWB + i}')
            a('s_barrier')
            if K.opt.get('loopstamps') and not last:
                a(f's_memtime s[98:99]\ns_waitcnt lgkmcnt(0)\ns_sub_u32 s98, s98, s100\ns_sub_u32 m0, 16, s{sCnt}\ns_nop 3\nv_writelane_b32 v254, s98, m0')
        ri = 0
        while k < 24:
            a(m[k])
            k += 1
            if ri < len(r):
                a(r[ri])
                ri += 1

    a('s_barrier')
    stamp(K, 1)
    for x in reads(FA, 0):
        a(x)
    a(f's_mov_b32 s{sCnt}, 15')
    a.label('L_p1_cloop')
    kstep(FA, FB, 1, False)
    kstep(FB, FA, 0, True)
    a(f's_sub_u32 s{sCnt}, s{sCnt}, 1\ns_cmp_lg_u32 s{sCnt}, 0\ns_cbranch_scc1 L_p1_cloop')
    kstep(FA, FB, 1, False)
    kstep(FB, FA, 0, True, last=True)
    stamp(K, 2)
    epilogue(K, sWR, sHD)


EA = 200
vLK, vLV, vLQ, vGK, vGV, vSA, vSB, vSC, vSD = range(EA, EA + 9)
vMT, vRT, vCSK, vCSV = 210, 214, 218, 226
vM4, vR4, vCSQ = 112, 128, 144


def epilogue_addresses(K, sWR, sHD):
    a = K.a
    vG, vC, vA, vB_, vD = 2, 4, 5, 6, 7
    a(f'v_lshrrev_b32 v{vG}, 4, v{V_LANE}\nv_and_b32 v{vC}, 15, v{V_LANE}')
    a(f's_lshl_b32 s84, s{sWR}, 8\ns_add_u32 s84, s84, {L_M}')
    a(f'v_lshl_add_u32 v{vSA}, v{vC}, 2, s84\nv_lshl_add_u32 v{vSD}, v{vG}, 4, s84')
    a(f's_lshl_b32 s85, s{sHD}, 7\ns_add_u32 s85, s85, {L_CS}')
    a(f'v_lshl_add_u32 v{vSB}, v{vG}, 4, s85\nv_lshl_add_u32 v{vSC}, v{vC}, 2, s85')
    a(f'v_lshrrev_b32 v{vA}, 1, v{vG}\nv_lshlrev_b32 v{vA}, 10, v{vA}')
    a(f'v_and_b32 v{vB_}, 1, v{vG}\nv_lshlrev_b32 v{vB_}, 9, v{vB_}\nv_add_u32 v{vA}, v{vA}, v{vB_}')
    a(f'v_lshrrev_b32 v{vB_}, 3, v{vC}\nv_lshlrev_b32 v{vB_}, 8, v{vB_}')
    a(f'v_and_b32 v{vD}, 7, v{vC}\nv_lshl_add_u32 v{vB_}, v{vD}, 4, v{vB_}\nv_add_u32 v{vLK}, v{vA}, v{vB_}')
    a(f'v_lshl_add_u32 v{vLV}, v{vC}, 4, v{vA}')
    a(f's_mul_i32 s86, s{sHD}, {KV_HD}\ns_lshl_b32 s87, s{sWR}, 13\ns_add_u32 s86, s86, s87\ns_add_u32 s86, s86, {8 * 4096}')
    a(f's_lshl_b32 s87, s{sRB}, 4\ns_add_u32 s87, s87, s{sHP}\ns_lshl_b32 s87, s87, 15\ns_lshl_b32 s88, s{sHD}, 14\ns_add_u32 s87, s87, s88')
    a(f's_lshl_b32 s88, s{sWR}, 13\ns_add_u32 s87, s87, s88\ns_add_u32 s87, s87, {WS_KV}')
    a(f'v_add_u32 v{vGK}, s87, v{vLK}\nv_add_u32 v{vGV}, s87, v{vLV}')
    a(f's_lshl_b32 s88, s{sHD}, 13\ns_lshl_b32 s89, s{sWR}, 12\ns_add_u32 s88, s88, s89\ns_add_u32 s88, s88, {L_Q}')
    a(f'v_add_u32 v{vLQ}, s88, v{vLV}\nv_add_u32 v{vLK}, s86, v{vLK}\nv_add_u32 v{vLV}, s86, v{vLV}')


def stat_reads():
    r = [f'ds_read2_b32 {vr(vMT, 2)}, v{vSA} offset0:0 offset1:16', f'ds_read2_b32 {vr(vMT + 2, 2)}, v{vSA} offset0:32 offset1:48',
         f'ds_read2_b32 {vr(vRT, 2)}, v{vSA} offset0:128 offset1:144', f'ds_read2_b32 {vr(vRT + 2, 2)}, v{vSA} offset0:160 offset1:176']
    r += [f'ds_read_b128 {vr(vCSK + 4 * db, 4)}, v{vSB} offset:{256 + 64 * db}' for db in range(2)]
    r += [f'ds_read_b32 v{vCSV + db}, v{vSC} offset:{512 + 64 * db}' for db in range(2)]
    for b in range(4):
        r.append(f'ds_read_b128 {vr(vM4 + 4 * b, 4)}, v{vSD} offset:{64 * b}')
        r.append(f'ds_read_b128 {vr(vR4 + 4 * b, 4)}, v{vSD} offset:{512 + 64 * b}')
    r += [f'ds_read_b128 {vr(vCSQ + 4 * db, 4)}, v{vSB} offset:{64 * db}' for db in range(2)]
    return r


def epilogue(K, sWR, sHD):
    a = K.a
    P = 152
    a('s_waitcnt lgkmcnt(0)')

    def pair(r):
        return f'v[{r}:{r + 1}]'

    def bsel(reg):
        return pair(reg & ~1), reg & 1

    def qk_ops(accf, cs, bs):
        for b in bs:
            mp, mb = bsel(vMT + b)
            for db in range(2):
                for h in range(2):
                    r = accf(db, b) + 2 * h
                    a(f'v_pk_fma_f32 {pair(r)}, {pair(cs + 4 * db + 2 * h)}, {mp}, {pair(r)} op_sel:[0,{mb},0] op_sel_hi:[1,{mb},1] neg_lo:[0,1,0] neg_hi:[0,1,0]')
        for b in bs:
            rp, rb_ = bsel(vRT + b)
            for db in range(2):
                for h in range(2):
                    r = accf(db, b) + 2 * h
                    a(f'v_pk_mul_f32 {pair(r)}, {pair(r)}, {rp} op_sel:[0,{rb_}] op_sel_hi:[1,{rb_}]')
        for b in bs:
            for db in range(2):
                for h in range(2):
                    r = accf(db, b) + 2 * h
                    a(f'v_cvt_pk_bf16_f32 v{P + 4 * b + 2 * db + h}, v{r}, v{r + 1}')

    a('s_mov_b32 s89, 4096')
    for bs in ((0, 1), (2, 3)):
        qk_ops(accK, vCSK, bs)
        for b in bs:
            off = (b & 1) * 128
            a(f'buffer_store_dwordx4 {vr(P + 4 * b, 4)}, v{vGK}, {S(S_WS)}, {"0" if b < 2 else "s89"} offen offset:{off} sc1')
        for b in bs:
            a(f'ds_write_b128 v{vLK}, {vr(P + 4 * b, 4)} offset:{(b >> 1) * 4096 + (b & 1) * 128}')
    P2 = P + 16
    for tb in range(2):
        bs = (2 * tb, 2 * tb + 1)
        for b in bs:
            for db in range(2):
                cp, cb_ = bsel(vCSV + db)
                for h in range(2):
                    r = accV(b, db) + 2 * h
                    a(f'v_pk_fma_f32 {pair(r)}, {pair(vM4 + 4 * b + 2 * h)}, {cp}, {pair(r)} op_sel:[0,{cb_},0] op_sel_hi:[1,{cb_},1] neg_lo:[0,1,0] neg_hi:[0,1,0]')
        for b in bs:
            for db in range(2):
                for h in range(2):
                    r = accV(b, db) + 2 * h
                    a(f'v_pk_mul_f32 {pair(r)}, {pair(r)}, {pair(vR4 + 4 * b + 2 * h)}')
        for db in range(2):
            for b in bs:
                for h in range(2):
                    r = accV(b, db) + 2 * h
                    a(f'v_cvt_pk_bf16_f32 v{P2 + 8 * tb + 4 * db + 2 * (b & 1) + h}, v{r}, v{r + 1}')
        for db in range(2):
            a(f'buffer_store_dwordx4 {vr(P2 + 8 * tb + 4 * db, 4)}, v{vGV}, {S(S_WS)}, {"0" if tb == 0 else "s89"} offen offset:{2048 + db * 256} sc1')
        for db in range(2):
            a(f'ds_write_b128 v{vLV}, {vr(P2 + 8 * tb + 4 * db, 4)} offset:{tb * 4096 + 2048 + db * 256}')
    import math
    a(f's_mov_b32 s89, {f32hex(math.log2(math.e) / math.sqrt(32.0))}')
    for b in range(4):
        a(f'v_mul_f32 v{vRT + b}, s89, v{vRT + b}')
    for bs in ((0, 1), (2, 3)):
        qk_ops(accQ, vCSQ, bs)
        for b in bs:
            a(f'ds_write_b128 v{vLQ}, {vr(P + 4 * b, 4)} offset:{(b >> 1) * 2048 + (b & 1) * 256}')
    a('s_waitcnt lgkmcnt(0)')
    stamp(K, 3)


def helper(K):
    a = K.a
    a.label('L_p1_helper')
    sJ = 80
    XO, WO = 8, 12
    F = 40
    a(f's_sub_u32 s{sJ}, s{sW}, 4\ns_mov_b32 s90, 0')
    a(f'v_lshrrev_b32 v2, 3, v{V_LANE}\nv_and_b32 v4, 7, v{V_LANE}')
    a(f's_lshl_b32 s81, s{sJ}, 5\ns_lshl_b32 s82, s{sRB}, 7\ns_add_u32 s81, s81, s82')
    a('v_add_u32 v5, s81, v2\nv_lshlrev_b32 v5, 11, v5')
    a('v_lshrrev_b32 v6, 1, v2\nv_xor_b32 v7, v6, v4\nv_xor_b32 v6, 4, v7')
    for i in range(4):
        a(f'v_lshl_add_u32 v{XO + i}, v{7 if (i & 1) == 0 else 6}, 4, v5')
        if i:
            a(f'v_add_u32 v{XO + i}, {i * 16384}, v{XO + i}')
    sLX, sLW, sROT = 84, 85, 91
    rot = K.opt.get('rot', 2)
    if rot == 0:
        a(f's_mov_b32 s{sROT}, 0')
    elif rot == 1:
        a(f's_mov_b32 s{sROT}, s{sRB}')
    elif rot == 2:
        a(f's_and_b32 s{sROT}, s{sRB}, 7\ns_lshl_b32 s{sROT}, s{sROT}, 1')
    elif rot == 3:
        a(f's_and_b32 s{sROT}, s{sRB}, 7\ns_lshl_b32 s{sROT}, s{sROT}, 1\ns_and_b32 s81, s{sHP}, 3\ns_lshl_b32 s81, s81, 2\ns_add_u32 s{sROT}, s{sROT}, s81')
    elif rot == 4:
        a(f's_and_b32 s{sROT}, s{sRB}, 7\ns_lshl_b32 s{sROT}, s{sROT}, 1\ns_and_b32 s81, s{sHP}, 1\ns_add_u32 s{sROT}, s{sROT}, s81')
    a(f's_lshl_b32 s{sLX}, s{sJ}, 12\ns_mul_i32 s{sLW}, s{sJ}, 6144\ns_add_u32 s{sLW}, s{sLW}, 16384')
    q = []
    q.append('nonce')

    def vm(tag, text):
        a(text)
        q.append(tag)

    def wait_for(tag):
        last = max(i for i, t in enumerate(q) if t == tag)
        n = len(q) - 1 - last
        assert n <= 63
        a(f's_waitcnt vmcnt({n})')

    def issue(slot, fill=(), part='xw'):
        buf = (slot % 3) * STAGE
        fill = list(fill)
        per = -(-len(fill) // 10) if fill else 0

        def gap():
            for _ in range(per):
                if fill:
                    g = fill.pop(0)
                    if isinstance(g, tuple):
                        vm(g[1], g[0])
                    else:
                        a(g)
        a(f's_add_u32 s81, s{sROT}, {slot}\ns_and_b32 s81, s81, 15\ns_lshl_b32 s82, s81, 7\ns_mul_i32 s83, s81, 393216')
        if 'x' in part:
            a(f's_add_u32 m0, s{sLX}, {buf}')
            for i in range(4):
                if i:
                    a('s_add_u32 m0, m0, 0x400')
                vm(f'st{slot}', f'buffer_load_dwordx4 v{XO + i}, {S(S_X)}, s82 offen lds')
                gap()
        if 'w' in part:
            a(f's_add_u32 m0, s{sLW}, {buf}')
            for i in range(6):
                if i:
                    a('s_add_u32 m0, m0, 0x400')
                vm(f'st{slot}', f'buffer_load_dwordx4 v{WO + i}, {S(S_WQ)}, s83 offen lds')
                gap()
        while fill:
            g = fill.pop(0)
            if isinstance(g, tuple):
                vm(g[1], g[0])
            else:
                a(g)

    stamp(K, 4)
    issue(0, part='x')
    a('v_bfe_u32 v5, v2, 1, 1\nv_lshlrev_b32 v5, 2, v5\nv_xor_b32 v5, v5, v4')
    a('s_mov_b32 s89, 6144')
    a(f'v_mul_lo_u32 v6, v2, s89\ns_lshl_b32 s82, s{sHP}, 7\nv_add_u32 v6, s82, v6')
    for i in range(6):
        a(f's_mul_i32 s81, s{sJ}, 6\ns_add_u32 s81, s81, {i}\ns_lshr_b32 s82, s81, 3\ns_and_b32 s81, s81, 7')
        a(f's_lshl_b32 s82, s82, 11\ns_mul_i32 s83, s81, {8 * 6144}\ns_add_u32 s82, s82, s83')
        a('s_and_b32 s81, s81, 1\ns_lshl_b32 s81, s81, 1')
        a(f'v_xor_b32 v7, s81, v5\nv_lshl_add_u32 v7, v7, 4, v6\nv_add_u32 v{WO + i}, s82, v7')
    issue(0, part='w')
    issue(1)
    late_srds(K)

    def lines(txt):
        return [l for l in txt.split('\n') if l]

    class Coll:
        def __init__(self):
            self.g = []

        def __call__(self, t):
            self.g += lines(t)

        def group(self, t):
            self.g.append(t)

        def vm(self, tag, t):
            self.g.append((t, tag))

    f3 = Coll()
    f3(f'v_lshlrev_b32 v5, 2, v{V_LANE}\nv_add_u32 v5, {L_CSP}, v5')
    for w in range(4):
        for sg in range(3):
            f3(f'ds_read_b32 v{F + 4 * w + sg}, v5 offset:{768 * w + 256 * sg}')
    f3(f's_lshl_b32 s87, s{sHP}, 4\ns_add_u32 s87, s87, s{sRB}\ns_lshl_b32 s87, s87, 10\ns_add_u32 s87, s87, {WS_COLS}')
    f3(f'v_lshl_add_u32 v6, v{V_LANE}, 4, s87')
    f3('s_waitcnt lgkmcnt(0)')
    for sg in range(3):
        f3(f'v_add_f32 v{F + sg}, v{F + sg}, v{F + 4 + sg}\nv_add_f32 v{F + 8 + sg}, v{F + 8 + sg}, v{F + 12 + sg}')
    for sg in range(3):
        f3(f'v_add_f32 v{F + sg}, v{F + sg}, v{F + 8 + sg}')
    f3(f'v_mov_b32 v{F + 3}, s{sNONCE}')
    f3.vm('pub', f'v_lshrrev_b32 v5, 4, v{V_LANE}\nv_cmp_eq_u32 vcc, s{sJ}, v5\ns_and_saveexec_b64 s[96:97], vcc\n'
          f'buffer_store_dwordx4 {vr(F, 4)}, v6, {S(S_WS)}, 0 offen sc1\ns_mov_b64 exec, s[96:97]')
    f2 = Coll()
    f2(f's_min_u32 s87, s{sF}, 223\ns_lshr_b32 s88, s87, 2\ns_lshl_b32 s88, s88, 13\ns_and_b32 s89, s87, 3\ns_lshl_b32 s89, s89, 10\ns_add_u32 s88, s88, s89')
    f2(f's_lshr_b32 s89, s{sJ}, 1\ns_lshl_b32 s89, s89, 12\ns_add_u32 s88, s88, s89\ns_and_b32 s89, s{sJ}, 1\ns_lshl_b32 s89, s89, 9\ns_add_u32 s88, s88, s89\ns_add_u32 s88, s88, {WS_YPART}')
    f2(f'v_and_b32 v5, 31, v{V_LANE}\nv_lshl_add_u32 v5, v5, 4, s88\nv_mov_b64 v[{F}:{F + 1}], -1\nv_mov_b64 v[{F + 2}:{F + 3}], -1')
    f2.vm('clr', f'buffer_store_dwordx4 {vr(F, 4)}, v5, {S(S_WS)}, 0 offen sc1')
    f2(f's_lshl_b32 s87, s87, 10\ns_lshl_b32 s88, s{sJ}, 8\ns_add_u32 s87, s87, s88\ns_add_u32 s87, s87, {WS_PACT}')
    f2(f'v_and_b32 v5, 15, v{V_LANE}\nv_lshl_add_u32 v5, v5, 4, s87')
    f2.vm('clr', f'buffer_store_dwordx4 {vr(F, 4)}, v5, {S(S_WS)}, 0 offen sc1')
    f2(f's_lshl_b32 s87, s{sB}, 13\ns_lshl_b32 s88, s{sJ}, 11\ns_add_u32 s87, s87, s88\nv_and_b32 v6, 15, v{V_LANE}\nv_lshl_add_u32 v6, v6, 7, s87')
    f2.vm('touch', f'buffer_load_dword v{F + 8}, v6, {S(S_WO)}, 0 offen')
    GS = K.opt.get('gather_slot', 10)
    GR = F
    f9 = Coll()
    f9(f's_lshl_b32 s87, s{sHP}, 14\ns_lshl_b32 s88, s{sJ}, 8\ns_add_u32 s87, s87, s88\ns_add_u32 s87, s87, {WS_COLS}')
    f9(f'v_lshrrev_b32 v5, 4, v{V_LANE}\nv_lshlrev_b32 v5, 10, v5\nv_and_b32 v6, 15, v{V_LANE}\nv_lshl_add_u32 v5, v6, 4, v5\nv_add_u32 v30, s87, v5')
    f9(f's_lshl_b32 s87, s{sRB}, 11\ns_lshl_b32 s88, s{sJ}, 9\ns_add_u32 s87, s87, s88\ns_add_u32 s87, s87, {WS_ROWST}')
    f9(f'v_and_b32 v6, 31, v{V_LANE}\nv_lshl_add_u32 v31, v6, 4, s87')

    def gather(emit):
        for i in range(4):
            emit('gath', f's_mov_b32 s87, {i * 4096}\nbuffer_load_dwordx4 {vr(GR + 4 * i, 4)}, v30, {S(S_WS)}, s87 offen sc1')
        emit('gath', f'buffer_load_dwordx4 {vr(GR + 16, 4)}, v31, {S(S_WS)}, 0 offen sc1')
    gather(f9.vm)

    fa = Coll()
    for sg in range(3):
        for i in range(1, 4):
            fa(f'v_add_f32 v{GR + sg}, v{GR + sg}, v{GR + 4 * i + sg}')
    for sg in range(3):
        xor16_add(fa, GR + sg, GR + 4 + sg)
    for sg in range(3):
        xor32_add(fa, GR + sg, GR + 4 + sg)
    fa(f's_lshl_b32 s87, s{sJ}, 6\ns_add_u32 s87, s87, {L_CS}\nv_and_b32 v5, 15, v{V_LANE}\nv_lshl_add_u32 v5, v5, 2, s87')
    for sg in range(3):
        fa(f'ds_write_b32 v5, v{GR + sg} offset:{256 * sg}')
    fa(f's_lshl_b32 s87, s{sJ}, 7\ns_add_u32 s87, s87, {L_M}\nv_and_b32 v5, 31, v{V_LANE}\nv_lshl_add_u32 v5, v5, 2, s87')
    fa(f'ds_write_b32 v5, v{GR + 16}\nds_write_b32 v5, v{GR + 17} offset:512')

    def cut(g, parts):
        n = -(-len(g) // parts)
        return [g[k * n:(k + 1) * n] for k in range(parts)]
    da = cut(fa.g, 2)
    fills = {0: list(f3.g), 2: list(f2.g), GS: list(f9.g), GS + 2: list(da[0]), GS + 3: list(da[1])}
    nld = 0
    late = {}
    for s in range(16):
        wait_for(f'st{s}')
        if s == 0:
            take_nonce(K)
        if s == GS + 4:
            a('s_waitcnt lgkmcnt(0)')
        a('s_barrier')
        if s == GS + 2:
            wait_for('gath')
            lr, lo = a.newlabel('gretry'), a.newlabel('gok')
            a.label(lr)
            a(f'v_cmp_ne_u32 vcc, s{sNONCE}, v{GR + 3}')
            for i in range(1, 4):
                a(f'v_cmp_ne_u32 s[88:89], s{sNONCE}, v{GR + 4 * i + 3}\ns_or_b64 vcc, vcc, s[88:89]')
            a(f'v_cmp_ne_u32 s[88:89], s{sNONCE}, v{GR + 18}\ns_or_b64 vcc, vcc, s[88:89]')
            a(f's_cbranch_vccz {lo}')
            a(f's_add_u32 s90, s90, 1\ns_cmp_gt_u32 s90, {K.SPIN}\ns_cbranch_scc1 {lo}\ns_sleep 2')
            gather(lambda tag, t: a(t))
            a(f's_waitcnt vmcnt(0)\ns_branch {lr}')
            a.label(lo)
        if s + 2 < 16:
            issue(s + 2, fills.get(s, ()))
        else:
            for g in fills.get(s, ()):
                a(g)
        for n in late.get(s, ()):
            vm('ffn', phase4.ffn_load_text(n))
    a('s_waitcnt lgkmcnt(0)')
    a('s_barrier')
    K.hook('ffn_load_b16')
    phase2.setup_masks(K)
    stamp(K, 5)
```

```python
from common import *
import phase3

MF32 = 'v_mfma_f32_32x32x16_bf16'
V_LANE = 1
MASK0 = 4

QF, KF, VF = 8, 16, 24
SS, PP, OO, LL, CI, ONE = 32, 48, 56, 72, 88, 104
vKA = 108
vM, vT0, vT1 = 109, 110, 111
vNINF = 112
vOA, vOF = 116, 117
sQS, sHD2, sRED, sT, sTE, sHEAD = 80, 81, 82, 83, 84, 85


def key_of(i, h):
    return 16 * ((i >> 2) & 1) + 8 * ((i >> 3) & 1) + 4 * h + (i & 3)


def mask_const(i):
    m = 0
    for l in range(64):
        if key_of(i, l >> 5) <= (l & 31):
            m |= 1 << l
    return m


def setup_masks(K):
    for i in range(16):
        m = mask_const(i)
        K.a(f's_mov_b32 s{MASK0 + 2 * i}, 0x{m & 0xffffffff:08x}\ns_mov_b32 s{MASK0 + 2 * i + 1}, 0x{m >> 32:08x}')


def read_k(a, off):
    a(f'ds_read_b128 {vr(KF, 4)}, v{vKA} offset:{off}\nds_read_b128 {vr(KF + 4, 4)}, v{vKA} offset:{off + 1024}')


def read_v(a, off):
    a(f'ds_read_b128 {vr(VF, 4)}, v{vKA} offset:{off + 2048}\nds_read_b128 {vr(VF + 4, 4)}, v{vKA} offset:{off + 3072}')


def qk(a, c):
    a(f'{MF32} {vr(SS, 16)}, {vr(KF, 4)}, {vr(QF, 4)}, {c}')
    a(f'{MF32} {vr(SS, 16)}, {vr(KF + 4, 4)}, {vr(QF + 4, 4)}, {vr(SS, 16)}')


def exp_cvt(a):
    for j in range(8):
        a(f'v_exp_f32 v{SS + 2 * j}, v{SS + 2 * j}\nv_exp_f32 v{SS + 2 * j + 1}, v{SS + 2 * j + 1}')
        if j:
            a(f'v_cvt_pk_bf16_f32 v{PP + j - 1}, v{SS + 2 * j - 2}, v{SS + 2 * j - 1}')
    a(f'v_cvt_pk_bf16_f32 v{PP + 7}, v{SS + 14}, v{SS + 15}')


def pv(a, first=False):
    co = '0' if first else vr(OO, 16)
    cl = '0' if first else vr(LL, 16)
    a(f'{MF32} {vr(OO, 16)}, {vr(VF, 4)}, {vr(PP, 4)}, {co}')
    a(f'{MF32} {vr(LL, 16)}, {vr(ONE, 4)}, {vr(PP, 4)}, {cl}')
    a(f'{MF32} {vr(OO, 16)}, {vr(VF + 4, 4)}, {vr(PP + 4, 4)}, {vr(OO, 16)}')
    a(f'{MF32} {vr(LL, 16)}, {vr(ONE, 4)}, {vr(PP + 4, 4)}, {vr(LL, 16)}')


def block_loop(K, name):
    a = K.a
    read_k(a, 0)
    a('s_waitcnt lgkmcnt(0)')
    qk(a, vr(CI, 16))
    a.label(name)
    read_k(a, 4096)
    read_v(a, 0)
    exp_cvt(a)
    a('s_waitcnt lgkmcnt(0)')
    qk(a, vr(CI, 16))
    pv(a)
    a(f'v_add_u32 v{vKA}, 4096, v{vKA}')
    a(f's_add_u32 s{sT}, s{sT}, 1\ns_cmp_lt_u32 s{sT}, s{sTE}\ns_cbranch_scc1 {name}')


def set_block(K, sreg_or_const):
    a = K.a
    a(f's_lshl_b32 s86, {sreg_or_const}, 12\nv_add_u32 v{vKA}, s86, v{vT1}')


def attention(K, stamp):
    a = K.a
    a(f's_and_b32 s{sHD2}, s{sW}, 1\ns_lshr_b32 s86, s{sW}, 1\ns_sub_u32 s87, 5, s86')
    if K.opt.get('ffn_mode', 'dma3') == 'split2':
        a(f's_sub_u32 s87, 3, s86\ns_sub_u32 s86, s86, 2\ns_cmp_lt_u32 s{sW}, 4\ns_cselect_b32 s{sQS}, s87, s86')
    else:
        a(f's_cmp_lt_u32 s{sW}, 4\ns_cselect_b32 s{sQS}, s86, s87')
    a(f's_lshl_b32 s{sHEAD}, s{sHP}, 1\ns_add_u32 s{sHEAD}, s{sHEAD}, s{sHD2}')
    a(f's_mov_b32 s{sRED}, 0')
    lab = a.newlabel('nowo1')
    a(f's_cmp_lt_u32 s{sW}, 4\ns_cbranch_scc1 {lab}')
    phase3.wo_dma(K, 0, 12, sub4=True)
    a.label(lab)
    a(f's_lshl_b32 s86, s{sHD2}, 13\ns_lshl_b32 s87, s{sQS}, 11\ns_add_u32 s86, s86, s87\ns_add_u32 s86, s86, {L_Q}')
    a(f'v_lshl_add_u32 v{vT0}, v{V_LANE}, 4, s86')
    a(f'ds_read_b128 {vr(QF, 4)}, v{vT0}\nds_read_b128 {vr(QF + 4, 4)}, v{vT0} offset:1024')
    a(f's_mul_i32 s86, s{sHD2}, {KV_HD}\nv_lshl_add_u32 v{vT1}, v{V_LANE}, 4, s86')
    for i in range(4):
        a(f'v_mov_b32 v{ONE + i}, 0x3f803f80')
    a(f'v_mov_b32 v{vNINF}, 0xff800000')
    a.label('L_att_start')
    a(f's_add_u32 s{sT}, s{sQS}, 8')
    set_block(K, f's{sT}')
    read_k(a, 0)
    read_v(a, 0)
    a('s_waitcnt lgkmcnt(2)')
    qk(a, '0')
    for i in range(16):
        a(f'v_cndmask_b32 v{SS + i}, v{vNINF}, v{SS + i}, s[{MASK0 + 2 * i}:{MASK0 + 2 * i + 1}]')
    lab = a.newlabel('havemax')
    a(f's_cmp_lg_u32 s{sRED}, 0\ns_cbranch_scc1 {lab}')
    a(f'v_max3_f32 v{vM}, v{SS}, v{SS + 1}, v{SS + 2}')
    a(f'v_max3_f32 v{vT0}, v{SS + 3}, v{SS + 4}, v{SS + 5}')
    for i in range(6, 16, 4):
        a(f'v_max3_f32 v{vM}, v{vM}, v{SS + i}, v{SS + i + 1}')
        if i + 3 < 16:
            a(f'v_max3_f32 v{vT0}, v{vT0}, v{SS + i + 2}, v{SS + i + 3}')
    a(f'v_max_f32 v{vM}, v{vM}, v{vT0}')
    xor32_op(a, 'v_max_f32', vM, vT0)
    a.label(lab)
    a(f'v_sub_f32 v{CI}, 0, v{vM}\nv_sub_f32 v{CI + 1}, 0, v{vM}')
    for j in range(8):
        a(f'v_pk_add_f32 v[{SS + 2 * j}:{SS + 2 * j + 1}], v[{SS + 2 * j}:{SS + 2 * j + 1}], v[{CI}:{CI + 1}]')
    for j in range(1, 8):
        a(f'v_mov_b64 v[{CI + 2 * j}:{CI + 2 * j + 1}], v[{CI}:{CI + 1}]')
    exp_cvt(a)
    a('s_waitcnt lgkmcnt(0)')
    pv(a, first=True)
    stamp(K, 7)
    lab = a.newlabel('noflag')
    a(f's_cmp_ge_u32 s{sW}, 4\ns_cbranch_scc1 {lab}\ns_cmp_lg_u32 s{sRED}, 0\ns_cbranch_scc1 {lab}')
    a('s_waitcnt vmcnt(0)')
    a(f's_lshl_b32 s86, s{sRB}, 4\ns_add_u32 s86, s86, s{sHP}\ns_lshl_b32 s86, s86, 6\ns_lshl_b32 s87, s{sW}, 2\ns_add_u32 s86, s86, s87\ns_add_u32 s86, s86, {WS_KVFLAG}')
    a(f'v_mov_b32 v{vT0}, s86\nv_mov_b32 v2, s{sNONCE}')
    a(f'v_cmp_eq_u32 vcc, 0, v{V_LANE}\ns_and_saveexec_b64 s[96:97], vcc')
    a(f'buffer_store_dword v2, v{vT0}, {S(S_WS)}, 0 offen sc1\ns_mov_b64 exec, s[96:97]')
    stamp(K, 12)
    K.hook('ffn_load0')
    a.label(lab)
    lab = a.newlabel('nolocal')
    a(f's_cmp_eq_u32 s{sQS}, 0\ns_cbranch_scc1 {lab}')
    a(f's_mov_b32 s{sT}, 8\ns_add_u32 s{sTE}, s{sQS}, 8')
    set_block(K, f's{sT}')
    block_loop(K, 'L_att_local')
    a.label(lab)
    stamp(K, 8)
    a(f's_lshl_b32 s86, s{sRB}, 3\ns_lshl_b32 s87, s{sQS}, 1\ns_add_u32 s86, s86, s87\ns_lshl_b32 s86, s86, 5\ns_add_u32 s86, s86, s{sHEAD}\ns_lshl_b32 s86, s86, 10\ns_add_u32 s86, s86, {WS_O}')
    a(f'v_bfe_u32 v2, v{V_LANE}, 4, 1\nv_lshlrev_b32 v2, 15, v2')
    a(f'v_lshrrev_b32 v4, 5, v{V_LANE}\nv_lshlrev_b32 v4, 8, v4\nv_add_u32 v2, v2, v4')
    a(f'v_and_b32 v4, 15, v{V_LANE}\nv_lshl_add_u32 v2, v4, 4, v2\nv_add_u32 v{vOA}, s86, v2')
    a(f's_lshl_b32 s86, s{sRB}, 2\ns_add_u32 s86, s86, s{sQS}\ns_lshl_b32 s86, s86, 7\ns_lshl_b32 s87, s{sHEAD}, 2\ns_add_u32 s86, s86, s87\ns_add_u32 s86, s86, {WS_OFLAG}')
    a(f'v_mov_b32 v{vOF}, s86')
    lskip = a.newlabel('remdone')
    a(f's_cmp_lg_u32 s{sRED}, 0\ns_cbranch_scc1 {lskip}')
    lnod = a.newlabel('nodma')
    a(f's_lshr_b32 s86, s{sW}, 2\ns_add_u32 s87, s{sRB}, s86\ns_cmp_lt_u32 s87, 2\ns_cbranch_scc1 {lnod}')
    a(f's_sub_u32 s87, s87, 2\ns_lshl_b32 s87, s87, 4\ns_add_u32 s87, s87, s{sHP}')
    a(f's_and_b32 s88, s{sW}, 3\ns_lshl_b32 s89, s87, 6\ns_lshl_b32 s91, s88, 2\ns_add_u32 s89, s89, s91\ns_add_u32 s89, s89, {WS_KVFLAG}')
    a(f'v_mov_b32 v{vT0}, s89\ns_mov_b32 s90, 0')
    lp, lok = a.newlabel('kvpoll'), a.newlabel('kvok')
    a.label(lp)
    a(f'buffer_load_dword v2, v{vT0}, {S(S_WS)}, 0 offen sc1\ns_waitcnt vmcnt(0)')
    a(f'v_cmp_ne_u32 vcc, s{sNONCE}, v2\ns_cbranch_vccz {lok}')
    a(f's_add_u32 s90, s90, 1\ns_cmp_gt_u32 s90, {K.SPIN}\ns_cbranch_scc1 {lok}\ns_sleep 1\ns_branch {lp}')
    a.label(lok)
    stamp(K, 30)
    a('s_and_b32 s91, s88, 1\ns_lshr_b32 s92, s88, 1')
    a(f's_lshl_b32 s87, s87, 15\ns_lshl_b32 s93, s91, 14\ns_add_u32 s87, s87, s93\ns_lshl_b32 s93, s92, 13\ns_add_u32 s87, s87, s93\ns_add_u32 s87, s87, {WS_KV}')
    a(f's_mul_i32 s91, s91, {KV_HD}\ns_lshl_b32 s86, s86, 14\ns_add_u32 s91, s91, s86\ns_add_u32 s91, s91, s93')
    a(f'v_lshlrev_b32 v2, 4, v{V_LANE}\ns_mov_b32 m0, s91')
    for i in range(8):
        if i:
            a('s_add_u32 m0, m0, 0x400\ns_add_u32 s87, s87, 0x400')
        a(f'buffer_load_dwordx4 v2, {S(S_WS)}, s87 offen sc1 lds')
    a('s_waitcnt vmcnt(0)')
    stamp(K, 31)
    a.label(lnod)
    a('s_barrier')
    phase3.wo_dma(K, 48, 2)
    lab = a.newlabel('noffn1')
    if K.opt.get('ffn_mode', 'dma3') == 'split2':
        a(f's_cmp_ge_u32 s{sW}, 4\ns_cbranch_scc1 {lab}')
    else:
        a(f's_cmp_lt_u32 s{sW}, 4\ns_cbranch_scc1 {lab}')
    K.hook('ffn_load1')
    a.label(lab)
    a.label(lskip)
    stamp(K, 9)
    lnf, lrem, lend = a.newlabel('nofirst'), a.newlabel('remloop'), a.newlabel('remend')
    a(f's_cmp_eq_u32 s{sRB}, 0\ns_cbranch_scc1 {lend}')
    a(f's_cmp_eq_u32 s{sRB}, 1\ns_cbranch_scc1 {lnf}')
    set_block(K, f's{sQS}')
    read_k(a, 0)
    read_v(a, 0)
    a('s_waitcnt lgkmcnt(2)')
    qk(a, vr(CI, 16))
    for i in range(16):
        a(f'v_cndmask_b32 v{SS + i}, v{SS + i}, v{vNINF}, s[{MASK0 + 2 * i}:{MASK0 + 2 * i + 1}]')
    exp_cvt(a)
    a('s_waitcnt lgkmcnt(0)')
    pv(a)
    a(f's_add_u32 s{sT}, s{sQS}, 1\ns_max_u32 s{sT}, s{sT}, 1')
    a(f's_cmp_ge_u32 s{sT}, 8\ns_cbranch_scc1 {lend}\ns_branch {lrem}')
    a.label(lnf)
    a(f's_mov_b32 s{sT}, 4')
    a.label(lrem)
    a(f's_mov_b32 s{sTE}, 8')
    set_block(K, f's{sT}')
    block_loop(K, 'L_att_remote')
    a.label(lend)
    stamp(K, 10)
    lokk = a.newlabel('att_ok')
    a(f's_cmp_lg_u32 s{sRED}, 0\ns_cbranch_scc1 {lokk}')
    a(f'v_mov_b32 v{vT0}, 0x5f800000')
    a(f'v_cmp_nlt_f32 vcc, v{LL}, v{vT0}\ns_cbranch_vccz {lokk}')
    true_max(K)
    a(f's_mov_b32 s{sRED}, 1\ns_branch L_att_start')
    a.label(lokk)
    a('s_nop 5')
    a(f'v_rcp_f32 v{vM}, v{LL}')
    for j in range(8):
        a(f'v_pk_mul_f32 v[{OO + 2 * j}:{OO + 2 * j + 1}], v[{OO + 2 * j}:{OO + 2 * j + 1}], v[{vM - 1}:{vM}] op_sel:[0,1] op_sel_hi:[1,1]')
    for j in range(8):
        a(f'v_cvt_pk_bf16_f32 v{PP + j}, v{OO + 2 * j}, v{OO + 2 * j + 1}')
    a(f'buffer_store_dwordx4 {vr(PP, 4)}, v{vOA}, {S(S_WS)}, 0 offen sc1')
    a(f'buffer_store_dwordx4 {vr(PP + 4, 4)}, v{vOA}, {S(S_WS)}, 0 offen offset:512 sc1')
    a(f'v_mov_b32 v5, s{sNONCE}\nv_cmp_eq_u32 vcc, 0, v{V_LANE}')
    a('s_waitcnt vmcnt(0)')
    a('s_and_saveexec_b64 s[96:97], vcc')
    a(f'buffer_store_dword v5, v{vOF}, {S(S_WS)}, 0 offen sc1\ns_mov_b64 exec, s[96:97]')
    stamp(K, 11)


def true_max(K):
    a = K.a
    lloop, lnm, ldone = a.newlabel('tm_loop'), a.newlabel('tm_nomask'), a.newlabel('tm_done')
    a(f's_cmp_eq_u32 s{sRB}, 0\ns_cselect_b32 s{sT}, 8, s{sQS}\ns_cmp_eq_u32 s{sRB}, 1\ns_cselect_b32 s{sT}, 4, s{sT}')
    a(f's_add_u32 s{sTE}, s{sQS}, 8')
    a(f's_cmp_ge_u32 s{sT}, s{sTE}\ns_cbranch_scc1 {ldone}')
    a.label(lloop)
    set_block(K, f's{sT}')
    read_k(a, 0)
    a('s_waitcnt lgkmcnt(0)')
    qk(a, '0')
    a(f's_cmp_lt_u32 s{sRB}, 2\ns_cbranch_scc1 {lnm}\ns_cmp_lg_u32 s{sT}, s{sQS}\ns_cbranch_scc1 {lnm}')
    for i in range(16):
        a(f'v_cndmask_b32 v{SS + i}, v{SS + i}, v{vNINF}, s[{MASK0 + 2 * i}:{MASK0 + 2 * i + 1}]')
    a.label(lnm)
    a('s_nop 7\ns_nop 3')
    for i in range(0, 16, 2):
        a(f'v_max3_f32 v{vM}, v{vM}, v{SS + i}, v{SS + i + 1}')
    a(f's_add_u32 s{sT}, s{sT}, 1\ns_cmp_lt_u32 s{sT}, s{sTE}\ns_cbranch_scc1 {lloop}')
    a.label(ldone)
    xor32_op(a, 'v_max_f32', vM, vT0)
```
